```python
import torch

def _softmax(x, axis=-1):
    return torch.softmax(x, dim=axis)
def _gelu(x):
    return torch.nn.functional.gelu(x, approximate="tanh")
def _silu(x):
    return torch.nn.functional.silu(x)
def _sigmoid(x):
    return torch.sigmoid(x)
def _layernorm(x, axis=-1, eps=1e-5):
    m = x.mean(dim=axis, keepdim=True)
    v = x.var(dim=axis, keepdim=True, unbiased=False)
    return (x - m) / torch.sqrt(v + eps)
def _scatter_add(tgt, idx, src, axis=0):
    return tgt.clone().index_add_(axis, idx, src)
def _segment_sum(src, seg, n):
    out = torch.zeros((n,) + src.shape[1:], dtype=src.dtype)
    return out.index_add_(0, seg, src)
def _pad(x, pw):
    flat = tuple(v for pair in reversed(pw) for v in pair)
    return torch.nn.functional.pad(x, flat)

kernel_name = 'gated_mix__ssm_conv_s4d__linear_kernel_hedgehog__prompt'

def setup_inputs():

    _w = (lambda a: (lambda t: t.to(torch.bfloat16) if t.is_floating_point() else t)(torch.as_tensor(a)))
    def _A_setup():
        Bsz, L, D, N = 1, 2048, 512, 128
        return {
            "u": _w((lambda *s: torch.randn(*s, dtype=torch.bfloat16) * 0.05)(Bsz, L, D)),
            "log_A_real": _w((lambda *s: torch.randn(*s, dtype=torch.bfloat16) * 3.2)(D, N) * 0.5),
            "A_imag": _w((lambda *s: torch.randn(*s, dtype=torch.bfloat16) * 0.05)(D, N) * 3.14),
            "C_real": _w((lambda *s: torch.randn(*s, dtype=torch.bfloat16) * 0.4)(D, N) / N ** 0.5),
            "C_imag": _w((lambda *s: torch.randn(*s, dtype=torch.bfloat16) * 0.4)(D, N) / N ** 0.5),
            "log_dt": _w((lambda *s: torch.randn(*s, dtype=torch.bfloat16) * 0.05)(D) * 0.5 - 4.0),
            "D_skip": _w((lambda *s: torch.randn(*s, dtype=torch.bfloat16) * 0.05)(D)),
        }
    _A_in = _A_setup()

    def _B_setup():
        B, S, D, H = 1, 2048, 512, 32
        Dh = D // H
        return {
            "x": _w((lambda *s: torch.randn(*s, dtype=torch.bfloat16) * 0.05)(B, S, D)),
            "wqkv": _w((lambda *s: torch.randn(*s, dtype=torch.bfloat16) * 0.8)(D, 3 * D)),
            "w_phi": _w((lambda *s: torch.randn(*s, dtype=torch.bfloat16) * 0.8)(H, Dh, Dh) * (Dh ** -0.5)),
            "wo": _w((lambda *s: torch.randn(*s, dtype=torch.bfloat16) * 0.05)(D, D)),
        }
    _B_in = _B_setup()

    return {
        "A_u": _A_in["u"],
        "A_log_A_real": _A_in["log_A_real"],
        "A_A_imag": _A_in["A_imag"],
        "A_C_real": _A_in["C_real"],
        "A_C_imag": _A_in["C_imag"],
        "A_log_dt": _A_in["log_dt"],
        "A_D_skip": _A_in["D_skip"],
        "B_x": _B_in["x"],
        "B_wqkv": _B_in["wqkv"],
        "B_w_phi": _B_in["w_phi"],
        "B_wo": _B_in["wo"],
        "gate_w": _w((lambda *s: torch.randn(*s, dtype=torch.bfloat16) * 0.05)(512) * 16.0),
    }

def reference(A_u, A_log_A_real, A_A_imag, A_C_real, A_C_imag, A_log_dt, A_D_skip, B_x, B_wqkv, B_w_phi, B_wo, gate_w):
    def _A_ref(u, log_A_real, A_imag, C_real, C_imag, log_dt, D_skip):
        L = u.shape[1]
        dt = torch.exp(log_dt)
        A = -torch.exp(log_A_real) + 1j * A_imag
        C = (C_real + 1j * C_imag) * dt[:, None]
        pos = (lambda x, dt: x.to(dt))(torch.arange(L), log_dt.dtype)
        P = torch.exp((A * dt[:, None])[:, :, None] * pos[None, None, :])
        K = 2.0 * torch.einsum("dn,dnl->dl", C, P).real
        L2 = 2 * L
        u_t = (lambda x, *d: x.permute(*d))(u, 0, 2, 1)
        Kf = (lambda x, *a, **k: torch.fft.rfft(x.float(), *a, **k))(K, L2)
        Uf = (lambda x, *a, **k: torch.fft.rfft(x.float(), *a, **k))(u_t, L2)
        y = (lambda x, *a, **k: torch.fft.irfft(x, *a, **k).to(torch.bfloat16))(Uf * Kf[None, :, :], L2)[:, :, :L]
        y = (lambda x, *d: x.permute(*d))(y, 0, 2, 1)
        return y + u * D_skip[None, None, :]

    def _B_ref(x, wqkv, w_phi, wo):
        B, S, D = x.shape
        H = 32; Dh = D // H
        qkv = (lambda x, *d: x.permute(*d))((x @ wqkv).reshape(B, S, 3, H, Dh), 2, 0, 3, 1, 4)
        q, k, v = qkv[0], qkv[1], qkv[2]
        pq = torch.einsum("bhsd,hdf->bhsf", q, w_phi)
        pk = torch.einsum("bhsd,hdf->bhsf", k, w_phi)
        phi_q = torch.concatenate([_softmax(pq, axis=-1), _softmax(-pq, axis=-1)], axis=-1)
        phi_k = torch.concatenate([_softmax(pk, axis=-1), _softmax(-pk, axis=-1)], axis=-1)
        kv = torch.einsum("bhsf,bhsd->bhfd", phi_k, v)
        z  = torch.einsum("bhsf->bhf", phi_k)
        num = torch.einsum("bhqf,bhfd->bhqd", phi_q, kv)
        den = torch.einsum("bhqf,bhf->bhq", phi_q, z)[..., None] + 1e-6
        o = num / den
        return (lambda x, *d: x.permute(*d))(o, 0, 2, 1, 3).reshape(B, S, D) @ wo

    x = A_u
    g = _sigmoid((x * gate_w).sum(-1, keepdims=True))
    a = _A_ref(x, A_log_A_real, A_A_imag, A_C_real, A_C_imag, A_log_dt, A_D_skip)
    b = _B_ref(x, B_wqkv, B_w_phi, B_wo)
    return g * a + (1 - g) * b
```

```python
import re
TRANS = ('v_exp_f32','v_log_f32','v_rcp_f32','v_rsq_f32','v_sqrt_f32','v_sin_f32','v_cos_f32','v_rcp_iflag_f32')
def expand(tok):
    tok = tok.strip()
    tok = tok.lstrip('-').strip('|')
    if tok.startswith('abs(') or tok.startswith('neg('): tok = tok[4:-1]
    m = re.fullmatch(r'([vas])\[(\d+):(\d+)\]', tok)
    if m: return [f"{m.group(1)}{i}" for i in range(int(m.group(2)), int(m.group(3))+1)]
    m = re.fullmatch(r'([vas])(\d+)', tok)
    if m: return [tok]
    if tok in ('vcc','exec'): return [tok+'_lo', tok+'_hi']
    if tok in ('vcc_lo','vcc_hi','exec_lo','exec_hi','m0'): return [tok]
    return []
class Ins:
    def __init__(self, text):
        self.text = text
        t = text.split(';')[0].strip()
        self.label = None; self.kind = None; self.dst=set(); self.src=set(); self.mn=''
        self.target=None; self.ws=1
        if t.endswith(':'):
            self.label = t[:-1]; self.kind='label'; self.ws=0; return
        if t=='' or t.startswith('.'):
            self.kind='dir'; self.ws=0; return
        parts = t.split(None,1); mn = parts[0]; self.mn = mn
        rest = parts[1] if len(parts)>1 else ''
        ops=[]; cur=''; dep=0
        for ch in rest:
            if ch in '[(': dep+=1
            if ch in '])': dep-=1
            if ch==',' and dep==0: ops.append(cur.strip()); cur=''
            else: cur+=ch
        if cur.strip(): ops.append(cur.strip())
        mods=''
        if ops:
            last = ops[-1].split(None,1)
            ops[-1]=last[0]
            mods = last[1] if len(last)>1 else ''
        self.ops=ops; self.mods=mods
        E=lambda l:set(x for o in l for x in expand(o))
        if mn.startswith('v_mfma'):
            self.kind='mfma'; self.passes = 8 if '32x32x16' in mn else 4
            self.D=expand(ops[0]); self.A=set(expand(ops[1])); self.B=set(expand(ops[2])); self.C=expand(ops[3])
            self.dst=set(self.D); self.src=self.A|self.B|set(self.C)
        elif mn.startswith('v_'):
            self.kind='valu'
            self.dst=E(ops[:1]); self.src=E(ops[1:])
            b=mn.replace('_e32','').replace('_e64','').replace('_dpp','').replace('_sdwa','')
            self.base=b
            if b.startswith(('v_fmac','v_dot2c','v_writelane','v_mac')): self.src|=self.dst
            if b.startswith('v_permlane') and 'swap' in b: self.dst=E(ops); self.src=E(ops)
            if b.startswith('v_cmpx'): self.dst|={'exec_lo','exec_hi'}
            self.trans = b in TRANS
            self.dpp = ('_dpp' in mn) or ('quad_perm' in mods) or ('row_' in mods)
            if self.dpp: self.src|=self.dst
            self.dot = b.startswith('v_dot')
            if b=='v_nop': self.dst=set(); self.src=set()
        elif mn.startswith('ds_'):
            self.kind='ds'
            if mn.startswith(('ds_read','ds_bpermute','ds_permute','ds_swizzle')) or '_rtn' in mn:
                self.dst=E(ops[:1]); self.src=E(ops[1:])
            else: self.src=E(ops)
        elif mn.startswith(('buffer_','global_')):
            self.kind='vmem'
            self.lds = (' lds' in ' '+mods) or ('_lds_' in mn)
            self.store = ('store' in mn) or ('atomic' in mn)
            if 'load' in mn and not self.lds:
                self.dst=E(ops[:1]); self.src=E(ops[1:])
                if 'd16' in mn: self.src|=self.dst
            else: self.src=E(ops)
            if 'atomic' in mn and 'sc0' in mods: self.dst=E(ops[:1])
            self.wide = self.store and ('x3' in mn or 'x4' in mn)
            self.data = E(ops[:1]) if mn.startswith('buffer_') else E(ops[1:2])
            if self.lds: self.src|={'m0'}
        elif mn.startswith('s_'):
            if mn=='s_nop': self.kind='nop'; self.ws=int(ops[0],0)+1
            elif mn in('s_branch',) or mn.startswith('s_cbranch'):
                self.kind='branch'; self.target=ops[0]
            elif mn=='s_endpgm': self.kind='end'
            elif mn.startswith(('s_load','s_memtime','s_memrealtime','s_buffer_load','s_atomic')):
                self.kind='smem'; self.dst=E(ops[:1]); self.src=E(ops[1:])
            elif mn.startswith(('s_waitcnt','s_barrier','s_sleep','s_setprio')): self.kind='misc'
            elif mn.startswith(('s_cmp','s_bitcmp')): self.kind='salu'; self.src=E(ops)
            else:
                self.kind='salu'; self.dst=E(ops[:1]); self.src=E(ops[1:])
                if 'saveexec' in mn: self.dst|={'exec_lo','exec_hi'}
        else:
            raise ValueError("unknown instr "+text)
def isv(r): return r[0] in 'va' and r[1].isdigit()
def iss(r): return not isv(r)
def required(p, c):
    n=0
    if p.kind=='valu':
        pv={r for r in p.dst if isv(r)}; ps={r for r in p.dst if iss(r)}
        if c.kind=='mfma' and pv & c.src: n=max(n,2)
        if c.kind=='mfma' and ('exec_lo' in ps): n=max(n,4)
        if c.kind=='valu':
            if p.trans and not c.trans and pv & (c.src): n=max(n,1)
            if c.base.startswith(('v_readfirstlane','v_readlane')) and pv & c.src: n=max(n,1)
            if c.dpp and pv & c.src: n=max(n,2)
            if c.base.startswith('v_permlane') and pv & c.src: n=max(n,2)
            if ps & c.src: n=max(n, 4 if c.base.startswith(('v_readlane','v_writelane')) else 2)
            if 'exec_lo' in ps and (c.dpp): n=max(n,5)
            if 'exec_lo' in ps and c.base.startswith(('v_readfirstlane','v_readlane','v_writelane','v_permlane')): n=max(n,4)
            if p.dot and pv & (c.src|c.dst):
                if not (c.base==p.base and not (pv & set(x for o in c.ops[1:3] for x in expand(o)))): n=max(n,3)
            if ('op_sel' in p.mods and not p.base.startswith('v_pk')) and pv & (c.src|c.dst): n=max(n,1)
            if '_sdwa' in p.mn and pv & (c.src|c.dst): n=max(n,1)
        if c.kind in('vmem',) and ps & c.src: n=max(n,5)
        if p.dot and c.kind in ('ds','vmem','mfma') and pv & c.src: n=max(n,3)
    if p.kind=='mfma':
        D=set(p.D); P=p.passes
        if c.kind=='mfma':
            if D & (c.A|c.B): n=max(n, P+4)
            if D & set(c.C):
                if not (c.C==p.D and c.passes==P): n=max(n, P+2)
            elif D & set(c.D): n=max(n,P+4)
        elif c.kind in('valu','ds','vmem'):
            if D & (c.src|c.dst): n=max(n,P+4)
        if c.kind=='valu' and set(p.C) & c.dst: n=max(n,P-1)
        if c.kind in ('ds','vmem') and set(p.C) & c.dst: n=max(n,P-1)
    if p.kind=='vmem' and p.wide:
        if c.kind=='valu' and p.data & c.dst: n=max(n,2)
        elif c.kind in ('ds','vmem','mfma') and p.data & c.dst: n=max(n,1)
    if p.kind=='salu' and 'm0' in p.dst:
        if c.kind=='vmem' and c.lds: n=max(n,1)
        if c.kind=='valu' and c.base.startswith(('v_writelane','v_readlane')) and 'm0' in c.src: n=max(n,1)
    return n
def fix_hazards(lines, verbose=False):
    ins=[Ins(l) for l in lines]
    MAXD=14
    inserted=0
    i=0
    def build():
        lab={}
        for k,x in enumerate(ins):
            if x.kind=='label': lab[x.label]=k
        br={}
        for k,x in enumerate(ins):
            if x.kind=='branch': br.setdefault(lab[x.target],[]).append(k)
        return br
    br=build()
    def need(i):
        c=ins[i]; worst=0
        seen={}
        stack=[(i,0)]
        while stack:
            k,d=stack.pop()
            preds=[]
            j=k-1
            if j>=0:
                x=ins[j]
                if not (x.kind=='end' or (x.kind=='branch' and x.mn=='s_branch')): preds.append(j)
            if ins[k].kind=='label': preds+=br.get(k,[])
            for j in preds:
                x=ins[j]
                if x.kind not in('label','dir'):
                    r=required(x,c)
                    if r-d>worst: worst=r-d
                nd=d+x.ws
                if nd<MAXD and seen.get(j,99)>nd:
                    seen[j]=nd; stack.append((j,nd))
        return worst
    for rep in range(3):
        i=0; ch=False
        while i<len(ins):
            c=ins[i]
            if c.kind in('valu','mfma','ds','vmem'):
                w=need(i)
                if w>0:
                    ins.insert(i, Ins(f"s_nop {w-1}")); inserted+=w; ch=True
                    br=build(); i+=1
            i+=1
        if not ch: break
    if verbose: print("hazard nops inserted (wait states):",inserted)
    return [x.text for x in ins]

class Asm:
    def __init__(self):
        self.L=[]; self.vm=[]; self.uid=0
    def __call__(self, s):
        for l in s.split('\n'):
            l=l.strip()
            if not l: continue
            self.L.append(l)
            if l.startswith(('buffer_','global_')): self.vm.append(None)
    def tag(self, name):
        self.vm[-1]=name
    def vmwait(self, name, extra=''):
        idx=max(i for i,n in enumerate(self.vm) if n==name)
        n=len(self.vm)-1-idx
        assert n<=63,(name,n)
        self(f"s_waitcnt vmcnt({n}){extra}")
    def label(self, base='L'):
        self.uid+=1; return f"{base}_{self.uid}"
    def text(self, verbose=False):
        return "\n".join(fix_hazards(self.L, verbose))
def vr(a,n=1):
    return f"v{a}" if n==1 else f"v[{a}:{a+n-1}]"
def sr(a,n=1):
    return f"s{a}" if n==1 else f"s[{a}:{a+n-1}]"

import os
STAMPS = bool(int(os.environ.get('STAMPS','0')))
CYC = bool(int(os.environ.get('CYC','0')))
def stamp(a, k):
    if STAMPS: a(f"{'s_memtime' if CYC else 's_memrealtime'} s[{64+2*k}:{65+2*k}]")
def dump_stamps(a, n, base, wave_sgpr, srd=12):
    if not STAMPS: return
    a("s_waitcnt lgkmcnt(0)")
    a("s_mov_b64 exec, 1")
    a(f"s_lshl_b32 s62, s2, 3\ns_add_u32 s62, s62, s{wave_sgpr}\ns_lshl_b32 s62, s62, 6\ns_add_u32 s62, s62, {base}")
    a("v_mov_b32 v1, 0")
    for k in range(n):
        a(f"v_mov_b32 v2, s{64+2*k}")
        a(f"buffer_store_dword v2, v1, s[{srd}:{srd+3}], s62 offen offset:{4*k}")
```

```python
from asmlib import *
from lay import *
from kb import srd
import struct
def f2u(x): return struct.unpack('<I', struct.pack('<f', x))[0]
import math
PAIR = 16640
def lds_map(base):
    return dict(STG=base, UZ=base+2*PAIR, U=base+2*PAIR+1024, END=base+2*PAIR+9216)
USE_PK = True
def cmul(a, z, x, y, t):
    if USE_PK:
        a(f"v_pk_mul_f32 {vr(t,2)}, {vr(x,2)}, {vr(y,2)} op_sel:[0,0] op_sel_hi:[0,1]")
        a(f"v_pk_fma_f32 {vr(z,2)}, {vr(x,2)}, {vr(y,2)}, {vr(t,2)} op_sel:[1,1,0] op_sel_hi:[1,0,1] neg_lo:[1,0,0]")
    else:
        a(f"v_mul_f32 v{t}, v{x}, v{y}")
        a(f"v_mul_f32 v{t+1}, v{x}, v{y+1}")
        a(f"v_fma_f32 v{t}, -v{x+1}, v{y+1}, v{t}")
        a(f"v_fma_f32 v{z+1}, v{x+1}, v{y}, v{t+1}")
        a(f"v_mov_b32 v{z}, v{t}")

def exp_acc(a, d, x, t, sL, sLlo, sLn2):
    a(f"v_mul_f32 v{t}, s{sL}, v{x}")
    a(f"v_fma_f32 v{t+1}, v{x}, s{sL}, -v{t}")
    a(f"v_fma_f32 v{t+1}, v{x}, s{sLlo}, v{t+1}")
    a(f"v_exp_f32 v{d}, v{t}")
    a(f"v_mul_f32 v{t+1}, s{sLn2}, v{t+1}")
    a(f"v_fma_f32 v{d}, v{d}, v{t+1}, v{d}")

def gen_apath(a, bar, base, wave_sub=0, uwait=None):
    M = lds_map(base)
    SP, SWS = 4, 12
    sCP, sWv, sT0, sT1, sCH, sMH, sSTG, sPB = 24, 26, 27, 28, 29, 30, 31, 34
    sL, sLlo, sLn2 = 36, 37, 38
    stamp(a,0)
    a("""s_load_dwordx4 s[4:7], s[0:1], 8
s_load_dwordx4 s[8:11], s[0:1], 24
s_load_dwordx4 s[16:19], s[0:1], 40
s_load_dwordx2 s[12:13], s[0:1], 112""")
    a(f"""s_mov_b32 s{sCP}, s2
v_lshrrev_b32 v1, 6, v0
v_and_b32 v0, 63, v0
v_readfirstlane_b32 s{sWv}, v1""")
    if wave_sub: a(f"s_sub_u32 s{sWv}, s{sWv}, {wave_sub}")
    srd(a, SWS, WS_BYTES)
    L = 1.4426950408889634
    Lhi = struct.unpack('<f', struct.pack('<f', L))[0]
    a(f"""s_lshr_b32 s{sCH}, s{sWv}, 1
s_and_b32 s{sMH}, s{sWv}, 1
s_mov_b32 s{sL}, {f2u(Lhi):#x}
s_mov_b32 s{sLlo}, {f2u(L-Lhi):#x}
s_mov_b32 s{sLn2}, {f2u(math.log(2)):#x}
s_lshl_b32 s{sT0}, s{sCP}, 9
s_lshl_b32 s{sT1}, s{sWv}, 7
s_add_u32 s{sT0}, s{sT0}, s{sT1}
v_lshlrev_b32 v1, 1, v0
v_add_u32 v1, s{sT0}, v1
s_mul_i32 s{sPB}, s{sCH}, {PAIR}
s_add_u32 s{sPB}, s{sPB}, {M['STG']}
s_mul_i32 s{sSTG}, s{sMH}, 8448
s_add_u32 s{sSTG}, s{sSTG}, s{sPB}
s_lshl_b32 s{sT1}, s{sCP}, 2
s_waitcnt lgkmcnt(0)""")
    a("""global_load_ushort v2, v1, s[4:5]
global_load_ushort v3, v1, s[6:7]
global_load_ushort v4, v1, s[8:9]
global_load_ushort v5, v1, s[10:11]""")
    a.tag("par")
    a(f"""s_load_dword s20, s[16:17], s{sT1}
s_load_dword s21, s[18:19], s{sT1}""")
    vUD = 6
    a(f"""v_bfe_u32 v7, v0, 4, 1
v_xor_b32 v7, v7, v0
v_lshlrev_b32 v{vUD}, 4, v7""")
    def u_dma():
        a(f"""s_lshl_b32 s{sT0}, s{sCP}, 13
s_lshl_b32 s{sT1}, s{sWv}, 11
s_add_u32 s{sT0}, s{sT0}, s{sT1}
s_add_u32 s{sT0}, s{sT0}, {UT2}
s_add_u32 m0, s{sT1}, {M['U']}
buffer_load_dwordx4 v{vUD}, {sr(SWS,4)}, s{sT0} offen lds
buffer_load_dwordx4 v{vUD}, {sr(SWS,4)}, s{sT0} offen offset:1024 lds""")
        a.tag("u")
    if uwait is None: u_dma()
    a(f"""v_mov_b32 v8, 0
v_mov_b32 v9, 0
v_mov_b32 v10, 0
v_mov_b32 v11, 0
s_lshl_b32 s{sT1}, s{sWv}, 8
s_add_u32 s{sT1}, s{sT1}, {M['UZ']}
v_and_b32 v7, 15, v0
v_lshlrev_b32 v7, 4, v7
v_add_u32 v7, s{sT1}, v7
ds_write_b128 v7, v[8:11]""")
    vSW, vSR0, vSR1 = 24, 25, 26
    a(f"""v_and_b32 v7, 7, v0
v_lshlrev_b32 v7, 4, v7
v_lshl_add_u32 v7, v0, 7, v7
v_add_u32 v{vSW}, s{sSTG}, v7""")
    a(f"""v_lshrrev_b32 v7, 5, v0
v_bfe_u32 v12, v0, 3, 1
v_lshl_add_u32 v7, v7, 2, v12
v_bfe_u32 v12, v0, 2, 1
v_bfe_u32 v13, v0, 4, 1
v_lshlrev_b32 v13, 1, v13
v_lshl_add_u32 v12, v12, 2, v13
v_bfe_u32 v13, v0, 1, 1
v_add_u32 v12, v12, v13
v_xor_b32 v12, v12, v7
v_lshlrev_b32 v12, 4, v12
v_lshl_add_u32 v12, v7, 7, v12
v_and_b32 v13, 1, v0
v_lshl_add_u32 v12, v13, 3, v12
v_add_u32 v{vSR0}, s{sSTG}, v12
v_xor_b32 v12, 32, v12
v_add_u32 v{vSR1}, s{sSTG}, v12
s_waitcnt lgkmcnt(0)
s_lshl_b32 s{sT0}, s{sCH}, 4
s_lshr_b32 s20, s20, s{sT0}
s_lshl_b32 s20, s20, 16
s_lshr_b32 s21, s21, s{sT0}
s_lshl_b32 s21, s21, 16
v_mov_b32 v7, s20""")
    vDT = 27
    exp_acc(a, vDT, 7, 12, sL, sLlo, sLn2)
    a(f"""v_cvt_pk_bf16_f32 v{vDT}, v{vDT}, v{vDT}
v_and_b32 v{vDT}, 0xffff0000, v{vDT}""")
    a.vmwait("par")
    stamp(a,1)
    for r in (2,3,4,5): a(f"v_lshlrev_b32 v{r}, 16, v{r}")
    exp_acc(a, 2, 2, 12, sL, sLlo, sLn2)
    E1, E2, E4, E8, E256, EX, W0, T = 8, 10, 12, 14, 16, 18, 20, 22
    a(f"""v_cvt_pk_bf16_f32 v2, v2, v2
v_and_b32 v2, 0xffff0000, v2
v_mul_f32 v2, v2, v{vDT}
v_mul_f32 v3, v3, v{vDT}
v_mul_f32 v2, s{sL}, v2
v_mul_f32 v3, 0.15915494, v3
v_mul_f32 v4, v4, v{vDT}
v_mul_f32 v5, v5, v{vDT}
v_add_f32 v{W0}, v4, v4
v_add_f32 v{W0+1}, v5, v5""")
    def anchor(E, x):
        if x == 1:
            a(f"v_exp_f32 v{T}, -v2\nv_fract_f32 v{T+1}, v3")
        else:
            a(f"v_mul_f32 v{T}, {f2u(-float(x)):#x}, v2\nv_mul_f32 v{T+1}, {f2u(float(x)):#x}, v3")
            a(f"v_exp_f32 v{T}, v{T}\nv_fract_f32 v{T+1}, v{T+1}")
        a(f"v_cos_f32 v{E}, v{T+1}\nv_sin_f32 v{E+1}, v{T+1}")
        a(f"v_mul_f32 v{E}, v{E}, v{T}\nv_mul_f32 v{E+1}, v{E+1}, v{T}")
    anchor(E8, 8)
    G, PK = 32, 48
    def stage(gi, regs, negim):
        n = '-' if negim else ''
        for j in range(4):
            a(f"v_cvt_pk_bf16_f32 v{PK+j}, v{regs[2*j]}, v{regs[2*j+1]}")
        for j in range(4):
            a(f"v_cvt_pk_bf16_f32 v{PK+4+j}, {n}v{regs[2*j]+1}, {n}v{regs[2*j+1]+1}")
        for part in range(2):
            g = 4*part+gi
            if g == 0: ad = vSW
            else:
                a(f"v_xor_b32 v{28+part}, {16*g}, v{vSW}"); ad = 28+part
            a(f"ds_write_b128 v{ad}, {vr(PK+4*part,4)}")
    a(f"v_mov_b32 v{G}, 1.0\nv_mov_b32 v{G+1}, 0\nv_mov_b32 v{G+2}, v{E8}\nv_mov_b32 v{G+3}, v{E8+1}")
    for gi in range(4):
        for j in range(8):
            if gi == 0 and j < 2: continue
            prev = G+2*((j-1) % 8)
            cmul(a, G+2*j, prev, E8, T)
        stage(gi, [G+2*j for j in range(8)], False)
    LF, HF, D, PT = 128, 160, 192, 208
    def trreads(dst):
        for ks in range(8):
            a(f"ds_read_b64_tr_b16 {vr(dst+4*ks,2)}, v{vSR0} offset:{1024*ks}")
            a(f"ds_read_b64_tr_b16 {vr(dst+4*ks+2,2)}, v{vSR1} offset:{1024*ks+256}")
    trreads(LF)
    stamp(a,2)
    anchor(E1, 1); anchor(E256, 256)
    cmul(a, E2, E1, E1, T); cmul(a, E4, E2, E2, T)
    g = lambda j: G+2*j
    cmul(a, g(1), W0, E1, T)
    for j in range(2, 8): cmul(a, g(j), g(j-1), E1, T)
    a("s_waitcnt lgkmcnt(0)")
    stage(0, [W0]+[g(j) for j in range(1,8)], True)
    cmul(a, g(0), W0, E256, T)
    for j in range(1, 5): cmul(a, g(j), g(j-1), E2, T)
    stage(1, [g(0),g(1),g(2),g(2),g(2),g(3),g(4),g(4)], True)
    cmul(a, EX, E256, E256, T)
    cmul(a, g(0), W0, EX, T)
    cmul(a, g(1), g(0), E4, T); cmul(a, g(2), g(1), E4, T)
    cmul(a, g(3), g(0), E256, T)
    cmul(a, g(4), g(3), E4, T); cmul(a, g(5), g(4), E4, T)
    stage(2, [g(0),g(1),g(2),g(2),g(3),g(4),g(5),g(5)], True)
    cmul(a, g(0), g(0), EX, T)
    cmul(a, g(1), g(0), E8, T)
    for j in range(1, 4):
        cmul(a, g(2*j), g(2*j-2), E256, T)
        cmul(a, g(2*j+1), g(2*j), E8, T)
    stage(3, [g(j) for j in range(8)], True)
    trreads(HF)
    stamp(a,3)
    vEX = 28
    a(f"""s_mul_i32 s{sT0}, s{sMH}, 12544
s_add_u32 s{sT0}, s{sT0}, s{sPB}
s_add_u32 s{sT1}, s{sPB}, s{sPB}
s_add_u32 s{sT1}, s{sT1}, 12544
s_sub_u32 s{sT1}, s{sT1}, s{sT0}
v_lshlrev_b32 v7, 4, v0
v_add_u32 v{vEX}, s{sT0}, v7
v_add_u32 v{vEX+1}, s{sT1}, v7""")
    for ks in range(8):
        a(f"s_waitcnt lgkmcnt({14-2*ks})")
        c = "0" if ks == 0 else vr(D,16)
        a(f"v_mfma_f32_32x32x16_bf16 {vr(D,16)}, {vr(HF+4*ks,4)}, {vr(LF+4*ks,4)}, {c}")
    vTQ, vT2, vT3 = 30, 31, 7
    a(f"""s_mul_i32 s{sT0}, s{sMH}, 4160
s_add_u32 s{sT0}, s{sT0}, s{sPB}
s_add_u32 s{sT0}, s{sT0}, {4080}
v_and_b32 v8, 31, v0
v_lshlrev_b32 v8, 4, v8
v_sub_u32 v8, s{sT0}, v8
v_lshrrev_b32 v9, 5, v0
v_lshlrev_b32 v10, 3, v9
v_sub_u32 v{vTQ}, v8, v10
v_lshlrev_b32 v10, 9, v9
v_sub_u32 v{vT2}, v8, v10
v_lshlrev_b32 v10, 10, v9
v_sub_u32 v{vT3}, v8, v10
v_lshlrev_b32 v11, 4, v0
v_add_u32 v11, s{sT0}, v11
v_mov_b32 v12, 0
v_mov_b32 v13, 0
v_mov_b32 v14, 0
v_mov_b32 v15, 0""")
    for j in range(4): a(f"ds_write_b128 v{vEX}, {vr(D+4*j,4)} offset:{1024*j}")
    a("s_waitcnt lgkmcnt(0)"); bar(a)
    for j in range(4): a(f"ds_read_b128 {vr(PT+4*j,4)}, v{vEX+1} offset:{1024*j}")
    a(f"""s_mov_b64 exec, 7
ds_write_b128 v11, v[12:15] offset:4096
s_mov_b64 exec, 1
v_mov_b32 v12, s21
s_mov_b64 exec, -1
s_mov_b32 vcc_lo, 0xaaaaaaaa
s_mov_b32 vcc_hi, 0xaaaaaaaa
s_waitcnt lgkmcnt(1)""")
    a(f"v_add_f32 v{D}, v{D}, v12")
    for j in range(8): a(f"v_pk_add_f32 {vr(D+2*j,2)}, {vr(D+2*j,2)}, {vr(PT+2*j,2)}")
    stamp(a,4)
    r = lambda j: f"v{D+j}"
    P = 32
    L1, L2 = a.label('TAP'), a.label('TAP')
    a(f"s_cmp_eq_u32 s{sMH}, 0\ns_cbranch_scc1 {L1}")
    cv = lambda d, x, y: a(f"v_cvt_pk_bf16_f32 v{d}, {x}, {y}")
    cv(P, r(3), r(2)); cv(P+1, r(1), r(0)); a(f"ds_write_b64 v{vTQ}, {vr(P,2)} offset:{4096+8}")
    cv(P+2, r(6), r(5)); cv(P+3, r(4), r(4)); a(f"ds_write_b64 v{vTQ}, {vr(P+2,2)} offset:{4096+8-512}")
    cv(P+4, r(10), r(10)); cv(P+5, r(9), r(9)); cv(P+6, r(9), r(8)); cv(P+7, r(8), r(8))
    a(f"ds_write_b128 v{vT2}, {vr(P+4,4)} offset:{4096-1024}")
    for k in range(2):
        v0_, v1_ = r(12+2*k), r(13+2*k); Q = P+8+4*k
        a(f"v_cndmask_b32 v8, {v0_}, {v1_}, vcc")
        cv(Q, v1_, v1_); cv(Q+1, v1_, "v8"); cv(Q+2, v0_, v0_); cv(Q+3, v0_, v0_)
        a(f"ds_write_b128 v{vT3}, {vr(Q,4)} offset:{4096-2048-512*k}")
    a(f"s_branch {L2}\n{L1}:")
    cv(P+2, r(5), r(4)); cv(P+3, r(4), r(4)); a(f"ds_write_b64 v{vTQ}, {vr(P+2,2)} offset:{4096+8-512}")
    cv(P, r(2), r(1)); cv(P+1, r(0), r(3))
    a(f"ds_write_b32 v{vTQ}, v{P} offset:{4108-4}")
    a(f"ds_write_b16 v{vTQ}, v{P+1} offset:{4108}")
    a(f"ds_write_b16_d16_hi v{vTQ}, v{P+1} offset:{4108-6}")
    cv(P+4, r(10), r(9)); cv(P+5, r(9), r(9)); cv(P+6, r(8), r(8)); cv(P+7, r(8), r(8))
    a(f"ds_write_b128 v{vT2}, {vr(P+4,4)} offset:{4096-1024}")
    for k in range(2):
        v0_, v1_ = r(12+2*k), r(13+2*k); Q = P+8+4*k
        a(f"v_cndmask_b32 v8, {v0_}, {v1_}, vcc")
        cv(Q, v1_, v1_); cv(Q+1, "v8", v0_); cv(Q+2, v0_, v0_); cv(Q+3, v0_, v0_)
        a(f"ds_write_b128 v{vT3}, {vr(Q,4)} offset:{4096-2048-512*k}")
    a(f"{L2}:")
    vTA = 8
    a(f"""v_and_b32 v12, 1, v0
v_mul_u32_u24 v13, {4160+2}, v12
v_and_b32 v12, 15, v0
v_lshlrev_b32 v12, 1, v12
v_sub_u32 v13, v13, v12
v_lshrrev_b32 v12, 4, v0
v_lshl_add_u32 v13, v12, 4, v13
s_lshl_b32 s{sT0}, s{sMH}, 6
s_sub_u32 s{sT0}, s{sPB}, s{sT0}
s_add_u32 s{sT0}, s{sT0}, {4080+12+4096-32-128*7}
v_add_u32 v{vTA}, s{sT0}, v13""")
    for gq in range(1, 4): a(f"v_add_u32 v{vTA+gq}, {(-1024*gq) & 0xffffffff:#x}, v{vTA}")
    vB0, vB1 = 12, 13
    a(f"""v_and_b32 v14, 15, v0
v_lshrrev_b32 v15, 4, v0
v_lshl_add_u32 v14, v14, 1, v15
s_lshl_b32 s{sT0}, s{sMH}, 2
s_sub_u32 s{sT0}, 6, s{sT0}
v_add_u32 v14, s{sT0}, v14
v_bfe_u32 v15, v14, 3, 1
v_xor_b32 v15, s{sCH}, v15
v_lshlrev_b32 v15, 4, v15
v_lshl_add_u32 v14, v14, 5, v15
v_add_u32 v{vB0}, {M['UZ']}, v14
v_xor_b32 v14, 16, v14
v_add_u32 v{vB1}, {M['UZ']}, v14
s_waitcnt lgkmcnt(0)""")
    bar(a)
    stamp(a,5)
    TF, ACC, BF = 128, 96, 64
    order = [m for s in (3,2,1,0) for m in range(s, 32, 4)]
    for mu in order:
        o = (7-(mu & 7))*32
        a(f"ds_read2_b32 {vr(TF+4*mu,2)}, v{vTA+(mu>>3)} offset0:{o} offset1:{o+1}")
        a(f"ds_read2_b32 {vr(TF+4*mu+2,2)}, v{vTA+(mu>>3)} offset0:{o+2} offset1:{o+3}")
    if uwait is not None:
        uwait(a); u_dma()
    vOW, vOR = 14, 15
    a(f"""v_and_b32 v16, 15, v0
v_lshrrev_b32 v17, 4, v0
v_lshlrev_b32 v18, 2, v17
v_xor_b32 v16, v16, v18
v_lshl_add_u32 v16, v17, 4, v16
v_lshlrev_b32 v16, 4, v16
s_lshl_b32 s{sT0}, s{sWv}, 13
s_add_u32 s{sT0}, s{sT0}, {M['STG']}
v_add_u32 v{vOW}, s{sT0}, v16
v_lshrrev_b32 v16, 2, v0
v_and_b32 v17, 3, v0
v_lshlrev_b32 v18, 2, v17
v_xor_b32 v16, v16, v18
v_lshl_add_u32 v16, v17, 4, v16
v_lshlrev_b32 v16, 4, v16
s_lshl_b32 s{sT0}, s{sWv}, 11
s_add_u32 s{sT0}, s{sT0}, {M['STG']}
v_add_u32 v{vOR}, s{sT0}, v16
v_lshlrev_b32 v16, 4, v0""")
    a.vmwait("u", " lgkmcnt(0)")
    bar(a)
    stamp(a,6)
    NB = 8
    def bread(e):
        a(f"ds_read_b128 {vr(BF+4*(e%NB),4)}, v{vB0+(e&1)} offset:{256*e}")
    PF = 4
    for e in range(PF): bread(e)
    started = set()
    for e in range(32):
        if e+PF < 32: bread(e+PF)
        a(f"s_waitcnt lgkmcnt({min(PF, 31-e)})")
        for seg in range(7, -1, -1):
            mu = 4*seg-e+3
            if mu < 0: continue
            c = vr(ACC+4*seg,4) if seg in started else "0"
            started.add(seg)
            a(f"v_mfma_f32_16x16x32_bf16 {vr(ACC+4*seg,4)}, {vr(TF+4*mu,4)}, {vr(BF+4*(e%NB),4)}, {c}")
        if e % 4 == 3:
            seg = e//4
            if seg >= 1: a(f"ds_write_b128 v{vOW}, {vr(ACC+4*(seg-1),4)} offset:{1024*(seg-1)}")
    stamp(a,7)
    a(f"ds_write_b128 v{vOW}, {vr(ACC+28,4)} offset:{1024*7}")
    a(f"""s_lshl_b32 s{sT0}, s{sCP}, 13
s_lshl_b32 s{sT1}, s{sWv}, 11
s_add_u32 s{sT0}, s{sT0}, s{sT1}
s_add_u32 s{sT0}, s{sT0}, {AP}
s_waitcnt lgkmcnt(0)""")
    bar(a)
    R = 128
    for s in range(2):
        for w in range(4):
            a(f"ds_read_b128 {vr(R+16*s+4*w,4)}, v{vOR} offset:{8192*w+1024*s}")
    for s in range(2):
        a(f"s_waitcnt lgkmcnt({4-4*s})")
        b = R+16*s
        for j in range(2):
            a(f"v_pk_add_f32 {vr(b+2*j,2)}, {vr(b+2*j,2)}, {vr(b+4+2*j,2)}")
            a(f"v_pk_add_f32 {vr(b+8+2*j,2)}, {vr(b+8+2*j,2)}, {vr(b+12+2*j,2)}")
        for j in range(4):
            a(f"v_cvt_pk_bf16_f32 v{b+4+j}, v{b+j}, v{b+8+j}")
        a(f"buffer_store_dwordx4 {vr(b+4,4)}, v16, {sr(SWS,4)}, s{sT0} offen offset:{1024*s}")
    stamp(a,8)

def xreduce(a, x):
    a(f"""v_permlane32_swap_b32 v{x}, v{x+1}
v_permlane32_swap_b32 v{x+2}, v{x+3}
v_add_f32 v{x}, v{x}, v{x+1}
v_add_f32 v{x+2}, v{x+2}, v{x+3}
v_permlane16_swap_b32 v{x}, v{x+2}
v_add_f32 v{x}, v{x}, v{x+2}""")

def gen_reduce_kv(a, R=128, SWS=12, st=27):
    a(f"""v_lshlrev_b32 v1, 4, v0
s_lshl_b32 s{st}, s2, 13
s_add_u32 s{st}, s{st}, {KVP}
s_add_u32 s{st+1}, s{st}, 4096""")
    for t in range(8):
        a(f"buffer_load_dwordx4 {vr(R+4*t,4)}, v1, {sr(SWS,4)}, s{st+(t>>2)} offen offset:{1024*(t&3)}")
    a(f"""v_and_b32 v2, 7, v0
v_lshlrev_b32 v2, 4, v2
v_and_b32 v3, 8, v0
v_add_u32 v2, v2, v3
v_bfe_u32 v3, v0, 4, 1
v_lshl_add_u32 v2, v3, 2, v2
v_lshrrev_b32 v3, 5, v0
v_lshl_add_u32 v2, v3, 1, v2
s_lshl_b32 s{st}, s2, 7
s_add_u32 s{st}, s{st}, {KVF}""")
    for t in range(1, 8):
        a(f"s_waitcnt vmcnt({7-t})")
        for j in range(2): a(f"v_pk_add_f32 {vr(R+2*j,2)}, {vr(R+2*j,2)}, {vr(R+4*t+2*j,2)}")
    xreduce(a, R)
    a(f"v_cvt_pk_bf16_f32 v{R}, v{R}, v{R}")
    a(f"buffer_store_short v{R}, v2, {sr(SWS,4)}, s{st} offen")

def gen_reduce_z(a, R=128, SWS=12, st=27):
    a(f"""v_lshlrev_b32 v1, 4, v0
s_lshr_b32 s{st+1}, s2, 3
s_lshl_b32 s{st}, s{st+1}, 12
s_add_u32 s{st}, s{st}, {ZP}""")
    for t in range(4):
        a(f"buffer_load_dwordx4 {vr(R+4*t,4)}, v1, {sr(SWS,4)}, s{st} offen offset:{1024*t}")
    a(f"""v_and_b32 v2, 7, v0
v_lshlrev_b32 v2, 3, v2
v_bfe_u32 v3, v0, 4, 1
v_lshl_add_u32 v2, v3, 2, v2
v_lshrrev_b32 v3, 5, v0
v_lshl_add_u32 v2, v3, 1, v2
s_lshl_b32 s{st}, s{st+1}, 6
s_add_u32 s{st}, s{st}, {ZF}""")
    for t in range(1, 4):
        a(f"s_waitcnt vmcnt({3-t})")
        for j in range(2): a(f"v_pk_add_f32 {vr(R+2*j,2)}, {vr(R+2*j,2)}, {vr(R+4*t+2*j,2)}")
    xreduce(a, R)
    a(f"v_add_f32_dpp v{R}, v{R}, v{R} row_ror:8 row_mask:0xf bank_mask:0xf")
    a(f"v_cvt_pk_bf16_f32 v{R}, v{R}, v{R}")
    a(f"s_mov_b32 exec_lo, 0x00ff00ff\ns_mov_b32 exec_hi, 0x00ff00ff")
    a(f"buffer_store_short v{R}, v2, {sr(SWS,4)}, s{st} offen")
    a("s_mov_b64 exec, -1")

def k_apath():
    a = Asm()
    a("s_cmp_ge_u32 s2, 256\ns_cbranch_scc1 KA_END")
    gen_apath(a, lambda a: a("s_barrier"), 0)
    a("s_waitcnt vmcnt(0)")
    stamp(a,9)
    a("s_cmp_eq_u32 s26, 0\ns_cbranch_scc0 KA_Z")
    gen_reduce_kv(a)
    a("s_branch KA_DONE\nKA_Z:")
    a("s_cmp_eq_u32 s26, 1\ns_cbranch_scc0 KA_DONE\ns_and_b32 s27, s2, 7\ns_cmp_eq_u32 s27, 0\ns_cbranch_scc0 KA_DONE")
    gen_reduce_z(a)
    a("KA_DONE:")
    stamp(a,10)
    a("s_add_u32 s26, s26, 4")
    dump_stamps(a, 11, KD, 26)
    a("KA_END:\ns_endpgm")
    return dict(name="apath_kernel", grid=256, block=256, lds=lds_map(0)['END'], body=a.text(True))
```

```python
from asmlib import *
from lay import *

def X(j): return 8192*j
def WK(j): return 40960+16384*j
def WV(j): return WK(j)+8192
PHI = 122880
B_LDS_END = PHI+2048
WQLOC = [X(3), WK(3), WV(3), X(4), WK(4), WV(4), WK(0), WV(0)]

def softmax16(a, P, dst, t, sL):
    a(f"v_max3_f32 v{t}, v{P}, v{P+1}, v{P+2}")
    a(f"v_max3_f32 v{t+1}, v{P+3}, v{P+4}, v{P+5}")
    a(f"v_max3_f32 v{t}, v{t}, v{P+6}, v{P+7}")
    a(f"v_max3_f32 v{t+1}, v{t+1}, v{P+8}, v{P+9}")
    a(f"v_max3_f32 v{t}, v{t}, v{P+10}, v{P+11}")
    a(f"v_max3_f32 v{t+1}, v{t+1}, v{P+12}, v{P+13}")
    a(f"v_max3_f32 v{t}, v{t}, v{P+14}, v{P+15}")
    a(f"v_max_f32 v{t}, v{t}, v{t+1}")
    a(f"v_mul_f32 v{t}, s{sL}, v{t}")
    for j in range(8):
        a(f"v_pk_fma_f32 {vr(P+2*j,2)}, {vr(P+2*j,2)}, {sr(sL,2)}, {vr(t,2)} op_sel_hi:[1,1,0] neg_lo:[0,0,1] neg_hi:[0,0,1]")
    for j in range(16):
        a(f"v_exp_f32 v{P+j}, v{P+j}")
    a(f"v_pk_add_f32 {vr(t,2)}, {vr(P,2)}, {vr(P+2,2)}")
    a(f"v_pk_add_f32 {vr(t+2,2)}, {vr(P+4,2)}, {vr(P+6,2)}")
    a(f"v_pk_add_f32 {vr(t,2)}, {vr(t,2)}, {vr(P+8,2)}")
    a(f"v_pk_add_f32 {vr(t+2,2)}, {vr(t+2,2)}, {vr(P+10,2)}")
    a(f"v_pk_add_f32 {vr(t,2)}, {vr(t,2)}, {vr(P+12,2)}")
    a(f"v_pk_add_f32 {vr(t+2,2)}, {vr(t+2,2)}, {vr(P+14,2)}")
    a(f"v_pk_add_f32 {vr(t,2)}, {vr(t,2)}, {vr(t+2,2)}")
    a(f"v_add_f32 v{t}, v{t}, v{t+1}")
    a(f"v_rcp_f32 v{t}, v{t}")
    for j in range(8):
        a(f"v_pk_mul_f32 {vr(P+2*j,2)}, {vr(P+2*j,2)}, {vr(t,2)} op_sel_hi:[1,0]")
    for j in range(8):
        a(f"v_cvt_pk_bf16_f32 v{dst+j}, v{P+2*j}, v{P+2*j+1}")

def srd(a, d, nbytes):
    a(f"s_mov_b32 s{d+2}, {nbytes}")
    a(f"s_mov_b32 s{d+3}, 0x00020000")

def gen_bfront(a, bar, wave_sub=0):
    SX, SW, SWS, SPH, SG = 4, 8, 12, 16, 20
    sRB, sHG, sWv, sT0, sT1, sXo, sWo, sL = 24, 25, 26, 27, 28, 29, 30, 32
    stamp(a,0)
    a("""s_load_dwordx2 s[4:5], s[0:1], 0
s_load_dwordx2 s[8:9], s[0:1], 64
s_load_dwordx2 s[16:17], s[0:1], 72
s_load_dwordx2 s[20:21], s[0:1], 88
s_load_dwordx2 s[12:13], s[0:1], 112""")
    a(f"""s_and_b32 s{sT0}, s2, 7
s_lshr_b32 s{sT1}, s2, 3
s_lshr_b32 s{sRB}, s{sT0}, 1
s_lshl_b32 s{sRB}, s{sRB}, 3
s_lshr_b32 s{sHG}, s{sT1}, 2
s_add_u32 s{sRB}, s{sRB}, s{sHG}
s_and_b32 s{sHG}, s{sT0}, 1
s_lshl_b32 s{sHG}, s{sHG}, 2
s_and_b32 s{sT1}, s{sT1}, 3
s_add_u32 s{sHG}, s{sHG}, s{sT1}
v_lshrrev_b32 v1, 6, v0
v_and_b32 v0, 63, v0
v_readfirstlane_b32 s{sWv}, v1""")
    if wave_sub: a(f"s_sub_u32 s{sWv}, s{sWv}, {wave_sub}")
    srd(a, SX, 2097152); srd(a, SW, 1572864); srd(a, SWS, WS_BYTES); srd(a, SPH, 16384); srd(a, SG, 1024)
    a(f"s_mov_b32 s{sL}, {LOG2E}\ns_mov_b32 s{sL+1}, {LOG2E}")
    vXD0, vXD1, vWK, vWV, vLIN = 13, 14, 15, 16, 17
    a(f"""v_lshrrev_b32 v2, 3, v0
v_and_b32 v3, 7, v0
v_lshrrev_b32 v4, 4, v0
v_xor_b32 v5, v3, v4
v_lshlrev_b32 v5, 4, v5
v_lshl_add_u32 v5, v2, 10, v5
s_lshl_b32 s{sT0}, s{sRB}, 16
s_lshl_b32 s{sT1}, s{sWv}, 14
s_add_u32 s{sT0}, s{sT0}, s{sT1}
v_add_u32 v{vXD0}, s{sT0}, v5
v_xor_b32 v{vXD1}, 64, v{vXD0}
v_add_u32 v{vXD1}, 0x2000, v{vXD1}""")
    a(f"""v_and_b32 v4, 1, v4
v_lshlrev_b32 v4, 2, v4
v_xor_b32 v5, v3, v4
v_lshlrev_b32 v5, 4, v5
s_mul_i32 s{sT0}, s{sWv}, {16*3072}
s_lshl_b32 s{sT1}, s{sHG}, 7
s_add_u32 s{sT0}, s{sT0}, s{sT1}
v_mul_u32_u24 v6, 0xc00, v2
v_add3_u32 v{vWK}, v6, v5, s{sT0}
v_xor_b32 v{vWV}, 32, v{vWK}
v_lshlrev_b32 v{vLIN}, 4, v0""")
    sM = 31
    a(f"s_lshl_b32 s{sM}, s{sWv}, 11")
    a("s_waitcnt lgkmcnt(0)")
    def chunk_off(i):
        a(f"""s_add_u32 s{sT0}, s{sHG}, {i}
s_and_b32 s{sT0}, s{sT0}, 7
s_lshl_b32 s{sXo}, s{sT0}, 7
s_mul_i32 s{sWo}, s{sT0}, 196608""")
    def dma(ldsaddr, voff, srdn, soff, tag=None):
        a(f"s_add_u32 m0, s{sM}, {ldsaddr}")
        a(f"buffer_load_dwordx4 v{voff}, {sr(srdn,4)}, {soff} offen lds")
        if tag: a.tag(tag)
    def dma_w(loc, voff, col, tag=None):
        for t in range(2):
            a(f"s_add_u32 s{sT1}, s{sWo}, {col+24576*t}")
            dma(loc+1024*t, voff, SW, f"s{sT1}", tag if t == 1 else None)
    def dma_chunk(i):
        j = i % 5
        chunk_off(i)
        dma(X(j), vXD0, SX, f"s{sXo}")
        dma(X(j)+1024, vXD1, SX, f"s{sXo}")
        dma_w(WK(j), vWK, 1024)
        dma_w(WV(j), vWV, 2048, f"c{i}")
    def dma_wq(i):
        chunk_off(i)
        dma_w(WQLOC[i], vWK, 0, f"q{i}")
    stamp(a,1)
    dma_chunk(0)
    a(f"""s_and_b32 s{sT0}, s{sWv}, 1
s_lshl_b32 s{sT0}, s{sT0}, 10
s_add_u32 m0, s{sT0}, {PHI}
s_lshl_b32 s{sT1}, s{sHG}, 11
s_add_u32 s{sT1}, s{sT1}, s{sT0}
buffer_load_dwordx4 v{vLIN}, {sr(SPH,4)}, s{sT1} offen lds""")
    a(f"""v_lshrrev_b32 v2, 5, v0
v_lshlrev_b32 v2, 4, v2
s_lshl_b32 s{sT1}, s{sHG}, 7""")
    for ks in range(4):
        a(f"buffer_load_dwordx4 {vr(240+4*ks,4)}, v2, {sr(SG,4)}, s{sT1} offen offset:{32*ks}")
    a.tag("gw")
    for i in range(1, 5): dma_chunk(i)
    vXA, vXO, vWA0, vWA1, vQA0, vQA1 = 1, 5, 9, 10, 11, 12
    a(f"""v_and_b32 v18, 31, v0
v_lshrrev_b32 v19, 5, v0
v_bfe_u32 v20, v0, 1, 3
v_xor_b32 v20, v20, v19
v_lshlrev_b32 v20, 4, v20
v_lshl_add_u32 v20, v18, 7, v20
s_and_b32 s{sT0}, s{sWv}, 1
s_lshl_b32 s{sT0}, s{sT0}, 12
v_add_u32 v{vXA}, s{sT0}, v20""")
    for ks in range(1, 4): a(f"v_xor_b32 v{vXA+ks}, {32*ks}, v{vXA}")
    for ks in range(4): a(f"v_xor_b32 v{vXO+ks}, 0x1000, v{vXA+ks}")
    a(f"""v_bfe_u32 v20, v0, 2, 2
v_lshl_add_u32 v21, v19, 3, v20
v_lshlrev_b32 v21, 7, v21
v_and_b32 v22, 1, v0
v_lshl_add_u32 v21, v22, 3, v21
v_bfe_u32 v22, v0, 1, 1
v_bfe_u32 v23, v0, 3, 1
v_bfe_u32 v24, v0, 4, 1
v_lshlrev_b32 v25, 1, v24
v_lshl_add_u32 v25, v23, 2, v25
s_lshl_b32 s{sT0}, s{sWv}, 1
v_add_u32 v26, s{sT0}, v22
v_xor_b32 v26, v26, v25
v_lshl_add_u32 v26, v26, 4, v21
v_lshl_add_u32 v26, v24, 13, v26
v_add_u32 v{vWA0}, {WK(0)}, v26
v_add_u32 v{vWA1}, {WK(3)}, v26""")
    a(f"""s_lshr_b32 s{sT0}, s{sWv}, 1
s_lshl_b32 s{sT0}, s{sT0}, 2
v_lshl_add_u32 v26, v24, 1, v22
v_add_u32 v26, s{sT0}, v26
v_lshlrev_b32 v23, 2, v23
v_xor_b32 v26, v26, v23
v_lshl_add_u32 v{vQA0}, v26, 4, v21
v_add_u32 v{vQA1}, 0x10000, v{vQA0}""")
    vUT = 18
    a(f"""v_lshrrev_b32 v24, 4, v0
v_lshl_add_u32 v24, v24, 4, v20
v_lshlrev_b32 v24, 7, v24
v_and_b32 v25, 1, v0
v_lshl_add_u32 v24, v25, 3, v24
s_lshl_b32 s{sT0}, s{sWv}, 1
v_add_u32 v25, s{sT0}, v22
v_bfe_u32 v26, v0, 3, 1
v_xor_b32 v25, v25, v26
v_lshl_add_u32 v{vUT}, v25, 4, v24""")
    XO = [20, 36]; WF = [52, 68]; ACC = [84, 100]; XQ = 128
    def reads(i):
        j = i % 5; b = i & 1
        wa, wo = (vWA0, 16384*j) if j < 3 else (vWA1, 16384*(j-3))
        for ks in range(4):
            for t in range(2):
                a(f"ds_read_b64_tr_b16 {vr(WF[b]+4*ks+2*t,2)}, v{wa} offset:{wo+2048*ks+512*t}")
            a(f"ds_read_b128 {vr(XQ+16*i+4*ks,4)}, v{vXA+ks} offset:{X(j)}")
            a(f"ds_read_b128 {vr(XO[b]+4*ks,4)}, v{vXO+ks} offset:{X(j)}")
    def mfmas(i):
        b = i & 1
        for ks in range(4):
            c0 = "0" if (i == 0 and ks == 0) else vr(ACC[0],16)
            c1 = "0" if (i == 0 and ks == 0) else vr(ACC[1],16)
            a(f"v_mfma_f32_32x32x16_bf16 {vr(ACC[0],16)}, {vr(WF[b]+4*ks,4)}, {vr(XQ+16*i+4*ks,4)}, {c0}")
            a(f"v_mfma_f32_32x32x16_bf16 {vr(ACC[1],16)}, {vr(WF[b]+4*ks,4)}, {vr(XO[b]+4*ks,4)}, {c1}")
    stamp(a,2)
    a.vmwait("c0"); bar(a)
    stamp(a,3)
    for Y in range(2):
        for tt in range(2):
            sw = 4*Y+2*tt
            if sw == 0: ad = vUT
            else:
                a(f"v_xor_b32 v19, {16*sw}, v{vUT}"); ad = 19
            a(f"ds_read_b64_tr_b16 {vr(224+4*Y+2*tt,2)}, v{ad} offset:{X(0)+(8*Y+4*tt)*128}")
    reads(0)
    a(f"""v_bfe_u32 v19, v0, 2, 2
v_lshlrev_b32 v19, 14, v19
v_lshrrev_b32 v116, 4, v0
v_lshl_add_u32 v19, v116, 6, v19
v_and_b32 v116, 3, v0
v_lshl_add_u32 v19, v116, 4, v19
s_lshl_b32 s{sT0}, s{sHG}, 18
s_lshl_b32 s{sT1}, s{sWv}, 16
s_add_u32 s{sT0}, s{sT0}, s{sT1}
s_lshl_b32 s{sT1}, s{sRB}, 8
s_add_u32 s34, s{sT0}, s{sT1}
s_add_u32 s34, s34, {UT2}
s_add_u32 s35, s34, 8192
s_mov_b32 vcc_lo, 0x33333333
s_mov_b32 vcc_hi, 0x33333333""")
    a("s_waitcnt lgkmcnt(12)")
    for j in range(4):
        a(f"v_cndmask_b32_dpp v{232+j}, v{228+j}, v{224+j}, vcc quad_perm:[2,3,0,1] row_mask:0xf bank_mask:0xf")
    a("s_not_b64 vcc, vcc")
    for j in range(4):
        a(f"v_cndmask_b32_dpp v{236+j}, v{224+j}, v{228+j}, vcc quad_perm:[2,3,0,1] row_mask:0xf bank_mask:0xf")
    a(f"buffer_store_dwordx4 v[232:235], v19, {sr(SWS,4)}, s34 offen")
    a(f"buffer_store_dwordx4 v[236:239], v19, {sr(SWS,4)}, s35 offen")
    for i in range(8):
        a("s_waitcnt lgkmcnt(0)")
        if i == 0:
            a.vmwait("gw")
            a(f"v_mov_b32 v116, 0")
            for ks in range(4):
                for j in range(4):
                    a(f"v_dot2c_f32_bf16 v116, v{XQ+4*ks+j}, v{240+4*ks+j}")
            a(f"""v_mov_b32 v117, v116
v_and_b32 v118, 31, v0
v_lshlrev_b32 v118, 2, v118
v_permlane32_swap_b32 v116, v117
s_lshl_b32 s{sT0}, s{sHG}, 13
s_lshl_b32 s{sT1}, s{sRB}, 8
s_add_u32 s{sT0}, s{sT0}, s{sT1}
s_and_b32 s{sT1}, s{sWv}, 1
s_lshl_b32 s{sT1}, s{sT1}, 7
s_add_u32 s{sT0}, s{sT0}, s{sT1}
s_add_u32 s{sT0}, s{sT0}, {GP}
v_add_f32 v116, v116, v117
s_mov_b32 exec_hi, 0
buffer_store_dword v116, v118, {sr(SWS,4)}, s{sT0} offen
s_mov_b32 exec_hi, -1""")
        if i < 7:
            a.vmwait(f"c{i+1}"); bar(a)
            stamp(a,4+i)
            if i <= 2: dma_chunk(i+5)
            elif i == 3:
                for q in (0,1,2): dma_wq(q)
            elif i == 4:
                for q in (3,4,5): dma_wq(q)
            elif i == 5:
                for q in (6,7): dma_wq(q)
            reads(i+1)
            if i == 6:
                a(f"""v_lshrrev_b32 v13, 5, v0
v_bfe_u32 v14, v0, 2, 2
v_lshl_add_u32 v13, v13, 2, v14
v_lshlrev_b32 v13, 5, v13
v_bfe_u32 v14, v0, 4, 1
v_lshl_add_u32 v13, v14, 4, v13
v_bfe_u32 v14, v0, 1, 1
v_lshl_add_u32 v13, v14, 3, v13
v_add_u32 v13, {PHI}, v13
s_lshl_b32 s{sT0}, s{sWv}, 9
v_add_u32 v14, s{sT0}, v13
ds_read_b64_tr_b16 v[116:117], v14 
ds_read_b64_tr_b16 v[118:119], v14 offset:256""")
        mfmas(i)
    B1, B2, WP = 120, 124, 116
    stamp(a,11)
    a(f"""v_bfe_u32 v15, v0, 2, 1
v_lshrrev_b32 v16, 5, v0
v_cmp_eq_u32 vcc, v15, v16
v_and_b32 v16, 1, v0
v_lshlrev_b32 v16, 4, v16
v_mov_b32 v17, 0x3f80
v_lshlrev_b32 v17, v16, v17
v_cndmask_b32 v17, 0, v17, vcc
v_bfe_u32 v16, v0, 3, 2
v_bfe_u32 v18, v0, 1, 1
v_lshl_add_u32 v16, v16, 1, v18""")
    for j in range(8):
        a(f"v_cmp_eq_u32 vcc, {j}, v16")
        a(f"v_cndmask_b32 v{B1+j}, 0, v17, vcc")
    a(f"""v_lshlrev_b32 v15, 31, v15
v_lshrrev_b32 v16, 16, v15
v_or_b32 v15, v15, v16
v_bfe_u32 v16, v0, 4, 1
v_mul_u32_u24 v16, 0x3f80, v16
v_lshl_or_b32 v16, v16, 16, v16""")
    for j in range(4): a(f"v_xor_b32 v{WP+j}, v15, v{WP+j}")
    vONE = 16
    P = [20, 36]; KB = [52, 60]; KV = 68
    for h in range(2):
        for j in range(8): a(f"v_cvt_pk_bf16_f32 v{KB[h]+j}, v{ACC[h]+2*j}, v{ACC[h]+2*j+1}")
        a(f"v_mfma_f32_32x32x16_bf16 {vr(P[h],16)}, {vr(WP,4)}, {vr(KB[h],4)}, 0")
    for h in range(2):
        a(f"v_mfma_f32_32x32x16_bf16 {vr(ACC[h],16)}, {vr(KB[h]+4,4)}, {vr(B1,4)}, 0")
    for h in range(2):
        softmax16(a, P[h], KB[h], 2, sL)
        a(f"v_mfma_f32_32x32x16_bf16 {vr(P[h],16)}, {vr(KB[h],4)}, {vr(B1,4)}, 0")
        a(f"v_mfma_f32_32x32x16_bf16 {vr(P[h],16)}, {vr(KB[h]+4,4)}, {vr(B2,4)}, {vr(P[h],16)}")
        for j in range(8):
            a(f"v_cvt_pk_bf16_f32 v{ACC[h]+j}, v{ACC[h]+2*j}, v{ACC[h]+2*j+1}")
        for j in range(8):
            a(f"v_or_b32 v{ACC[h]+j}, v{vONE}, v{ACC[h]+j}")
    for h in range(2):
        for j in range(8):
            a(f"v_cvt_pk_bf16_f32 v{P[h]+j}, v{P[h]+2*j}, v{P[h]+2*j+1}")
        c = "0" if h == 0 else vr(KV,16)
        a(f"v_mfma_f32_32x32x16_bf16 {vr(KV,16)}, {vr(P[h],4)}, {vr(ACC[h],4)}, {c}")
        a(f"v_mfma_f32_32x32x16_bf16 {vr(KV,16)}, {vr(P[h]+4,4)}, {vr(ACC[h]+4,4)}, {vr(KV,16)}")
    a(f"""v_lshrrev_b32 v2, 5, v0
v_bfe_u32 v3, v0, 3, 1
v_lshl_add_u32 v2, v2, 2, v3
v_lshlrev_b32 v2, 13, v2
v_and_b32 v3, 7, v0
v_lshl_add_u32 v2, v3, 4, v2
s_lshl_b32 s{sT0}, s{sHG}, 2
s_add_u32 s{sT0}, s{sT0}, s{sWv}
s_lshl_b32 s{sT1}, s{sT0}, 16
s_lshl_b32 s34, s{sRB}, 8
s_add_u32 s34, s34, s{sT1}
s_add_u32 s34, s34, {KVP}
s_add_u32 s35, s34, 16384
s_lshl_b32 s{sT1}, s{sT0}, 12
s_lshl_b32 s36, s{sRB}, 7
s_add_u32 s36, s36, s{sT1}
s_add_u32 s36, s36, {ZP}
v_lshrrev_b32 v3, 5, v0
v_lshlrev_b32 v3, 6, v3
v_and_b32 v4, 3, v0
v_lshl_add_u32 v3, v4, 4, v3
s_and_b32 s{sT0}, s{sWv}, 2
s_lshl_b32 s{sT0}, s{sT0}, 9
v_add_u32 v14, s{sT0}, v13
ds_read_b64_tr_b16 v[116:117], v14 
ds_read_b64_tr_b16 v[118:119], v14 offset:256
ds_read_b64_tr_b16 v[120:121], v14 offset:512
ds_read_b64_tr_b16 v[122:123], v14 offset:768
s_mov_b32 exec_lo, 0x0000ffff
s_mov_b32 exec_hi, 0x0000ffff""")
    for q in range(4):
        a(f"buffer_store_dwordx4 {vr(KV+4*q,4)}, v2, {sr(SWS,4)}, s{34+(q>>1)} offen offset:{128*(q&1)}")
    a("s_mov_b64 exec, -1")
    for q in range(1, 4):
        m = sum(1 << b for b in range(32) if (b & 3) == q)
        a(f"s_mov_b32 vcc_lo, {m:#x}\ns_mov_b32 vcc_hi, {m:#x}")
        for j in range(4):
            s = KV+j if q == 1 else 6+j
            a(f"v_cndmask_b32 v{6+j}, v{s}, v{KV+4*q+j}, vcc")
    a(f"""s_mov_b32 exec_lo, 0x000f0000
s_mov_b32 exec_hi, 0x000f0000
buffer_store_dwordx4 v[6:9], v3, {sr(SWS,4)}, s36 offen
s_mov_b64 exec, -1""")
    stamp(a,12)
    a.vmwait("q7"); bar(a)
    stamp(a,13)
    QA = 20; QF = [36, 52]
    def qreads(i):
        loc = WQLOC[i]
        ad, off = (vQA0, loc) if loc < 65536-8192 else (vQA1, loc-65536)
        for ks in range(4):
            for t in range(2):
                a(f"ds_read_b64_tr_b16 {vr(QF[i&1]+4*ks+2*t,2)}, v{ad} offset:{off+2048*ks+512*t}")
    qreads(0)
    for i in range(8):
        if i < 7:
            qreads(i+1); a("s_waitcnt lgkmcnt(8)")
        else: a("s_waitcnt lgkmcnt(0)")
        if i == 0:
            for j in range(8): a(f"v_xor_b32 v{116+j}, v15, v{116+j}")
        for ks in range(4):
            c = "0" if (i == 0 and ks == 0) else vr(QA,16)
            a(f"v_mfma_f32_32x32x16_bf16 {vr(QA,16)}, {vr(QF[i&1]+4*ks,4)}, {vr(XQ+16*i+4*ks,4)}, {c}")
    a(f"""v_bfe_u32 v2, v0, 4, 1
v_lshlrev_b32 v2, 15, v2
v_lshrrev_b32 v3, 5, v0
v_lshl_add_u32 v2, v3, 9, v2
v_and_b32 v3, 15, v0
v_lshl_add_u32 v10, v3, 4, v2
s_lshl_b32 s{sT0}, s{sRB}, 17
s_and_b32 s{sT1}, s{sWv}, 1
s_lshl_b32 s{sT1}, s{sT1}, 16
s_add_u32 s{sT0}, s{sT0}, s{sT1}
s_lshl_b32 s{sT1}, s{sHG}, 12
s_add_u32 s{sT0}, s{sT0}, s{sT1}
s_and_b32 s{sT1}, s{sWv}, 2
s_lshl_b32 s{sT1}, s{sT1}, 10
s_add_u32 s{sT0}, s{sT0}, s{sT1}
s_add_u32 s34, s{sT0}, {PHQ}""")
    for j in range(8): a(f"v_cvt_pk_bf16_f32 v{36+j}, v{QA+2*j}, v{QA+2*j+1}")
    PQ = [84, 100]
    for h in range(2):
        a(f"v_mfma_f32_32x32x16_bf16 {vr(PQ[h],16)}, {vr(116+4*h,4)}, {vr(36+4*h,4)}, 0")
    for h in range(2):
        softmax16(a, PQ[h], 44+8*h, 2, sL)
        for rhi in range(2):
            a(f"buffer_store_dwordx4 {vr(44+8*h+4*rhi,4)}, v10, {sr(SWS,4)}, s34 offen offset:{1024*h+256*rhi}")
    stamp(a,14)
    if STAMPS:
        a("s_waitcnt vmcnt(0)")
        stamp(a,15)
    dump_stamps(a, 16, KD, sWv)
```

```python
from asmlib import *
from lay import *
from kb import srd
import struct
def f2u(x): return struct.unpack('<I', struct.pack('<f', x))[0]
WOL = 0
OB = 131072
F_LDS_END = OB+32768

def gen_final(a, bar):
    SWO, SOUT, SWS = 4, 8, 12
    sRB, sCB, sWv, sT0, sT1, sT2, sM = 24, 25, 26, 27, 28, 29, 30
    stamp(a,0)
    a("""s_load_dwordx2 s[4:5], s[0:1], 80
s_load_dwordx2 s[8:9], s[0:1], 96
s_load_dwordx2 s[12:13], s[0:1], 112""")
    a(f"""s_and_b32 s{sT0}, s2, 7
s_lshl_b32 s{sRB}, s{sT0}, 3
s_lshr_b32 s{sT0}, s2, 5
s_add_u32 s{sRB}, s{sRB}, s{sT0}
s_lshr_b32 s{sCB}, s2, 3
s_and_b32 s{sCB}, s{sCB}, 3
v_lshrrev_b32 v1, 6, v0
v_and_b32 v0, 63, v0
v_readfirstlane_b32 s{sWv}, v1""")
    srd(a, SWO, 524288); srd(a, SOUT, 2097152); srd(a, SWS, WS_BYTES)
    vLIN, vZ, vG, vAP, vWD = 1, 2, 3, 4, 5
    KVF_R, Z_R, PH_R, GP_R, AP_R = 16, 32, 36, 68, 72
    a(f"""v_lshlrev_b32 v{vLIN}, 4, v0
v_and_b32 v6, 3, v0
v_lshlrev_b32 v6, 6, v6
v_lshrrev_b32 v7, 4, v0
v_lshl_add_u32 v{vZ}, v7, 4, v6
v_and_b32 v6, 15, v0
v_lshlrev_b32 v8, 2, v6
v_lshl_add_u32 v{vG}, v7, 14, v8
v_lshl_add_u32 v{vAP}, v7, 15, v8""")
    a(f"""v_and_b32 v8, 1, v7
v_lshrrev_b32 v9, 1, v7
v_lshl_add_u32 v8, v9, 2, v8
v_xor_b32 v8, v8, v6
v_lshlrev_b32 v8, 4, v8
v_lshl_add_u32 v{vWD}, v7, 10, v8
v_xor_b32 v{vWD+1}, 0x80, v{vWD}
s_lshl_b32 s{sT0}, s{sRB}, 16
s_lshl_b32 s{sT1}, s{sWv}, 12
s_add_u32 s{sT0}, s{sT0}, s{sT1}
s_add_u32 s34, s{sT0}, {PHQ}
s_add_u32 s35, s34, 32768
s_add_u32 s36, s{sT1}, {KVF}
s_lshl_b32 s{sT1}, s{sWv}, 8
s_add_u32 s37, s{sT1}, {ZF}
s_lshl_b32 s{sT1}, s{sRB}, 7
s_add_u32 s38, s{sT1}, {GP}
s_add_u32 s39, s38, 8192
s_lshr_b32 s{sT0}, s{sWv}, 2
s_lshl_b32 s{sT0}, s{sT0}, 6
s_add_u32 s{sT1}, s{sT1}, s{sT0}
s_lshl_b32 s{sT0}, s{sCB}, 19
s_add_u32 s{sT1}, s{sT1}, s{sT0}
s_and_b32 s{sT0}, s{sWv}, 3
s_lshl_b32 s{sT0}, s{sT0}, 17
s_add_u32 s{sT1}, s{sT1}, s{sT0}
s_add_u32 s40, s{sT1}, {AP}
s_add_u32 s41, s40, 8192
s_add_u32 s42, s40, 16384
s_add_u32 s43, s40, 24576
s_lshl_b32 s{sM}, s{sWv}, 14
s_lshl_b32 s{sT0}, s{sWv}, 16
s_lshl_b32 s{sT1}, s{sCB}, 8
s_add_u32 s44, s{sT0}, s{sT1}
s_waitcnt lgkmcnt(0)""")
    stamp(a,1)
    for h in range(4):
        a(f"buffer_load_dwordx4 {vr(KVF_R+4*h,4)}, v{vLIN}, {sr(SWS,4)}, s36 offen offset:{1024*h}")
    a(f"buffer_load_dwordx4 {vr(Z_R,4)}, v{vZ}, {sr(SWS,4)}, s37 offen")
    for rt in range(2):
        for q in range(2):
            a(f"buffer_load_dword v{GP_R+2*rt+q}, v{vG}, {sr(SWS,4)}, s{38+q} offen offset:{64*rt}")
    a.tag("g")
    for rt in range(2):
        for h in range(4):
            a(f"buffer_load_dwordx4 {vr(PH_R+16*rt+4*h,4)}, v{vLIN}, {sr(SWS,4)}, s{34+rt} offen offset:{1024*h}")
            a.tag(f"ph{rt}{h}")
    for q in range(4):
        a(f"buffer_load_dword v{AP_R+q}, v{vAP}, {sr(SWS,4)}, s{40+q} offen")
    a.tag("ap")
    for j in range(16):
        a(f"s_add_u32 m0, s{sM}, {WOL+1024*j}")
        a(f"s_add_u32 s{sT0}, s44, {4096*j}")
        a(f"buffer_load_dwordx4 v{vWD+(j&1)}, {sr(SWO,4)}, s{sT0} offen lds")
    a.tag("wo")
    vA0, vA1, vA2, vA3, vOBW, vOBR, vOUT = 8, 9, 10, 11, 12, 13, 14
    a(f"""v_bfe_u32 v76, v0, 2, 1
v_bfe_u32 v77, v0, 3, 2
v_lshl_add_u32 v76, v77, 2, v76
v_and_b32 v77, 3, v0
s_and_b32 s{sT0}, s{sWv}, 3
s_lshl_b32 s{sT0}, s{sT0}, 2
v_add_u32 v77, s{sT0}, v77
v_xor_b32 v76, v76, v77
v_lshlrev_b32 v76, 4, v76
v_lshrrev_b32 v77, 2, v0
v_lshl_add_u32 v76, v77, 8, v76
v_and_b32 v77, 1, v0
v_lshl_add_u32 v{vA0}, v77, 3, v76
v_xor_b32 v{vA1}, 8, v{vA0}
v_add_u32 v{vA2}, 0x10000, v{vA0}
v_add_u32 v{vA3}, 0x10000, v{vA1}
s_lshl_b32 s{sT0}, s{sWv}, 12
s_add_u32 s{sT0}, s{sT0}, {OB}
v_add_u32 v{vOBW}, s{sT0}, v{vLIN}
s_lshr_b32 s{sT0}, s{sWv}, 2
s_lshl_b32 s{sT0}, s{sT0}, 10
s_add_u32 s{sT0}, s{sT0}, {OB}
v_add_u32 v{vOBR}, s{sT0}, v{vLIN}
v_and_b32 v76, 15, v0
v_lshlrev_b32 v76, 10, v76
v_lshrrev_b32 v77, 4, v0
v_lshl_add_u32 v{vOUT}, v77, 4, v76
s_lshl_b32 s{sT0}, s{sRB}, 15
s_lshr_b32 s{sT1}, s{sWv}, 2
s_lshl_b32 s{sT1}, s{sT1}, 14
s_add_u32 s{sT0}, s{sT0}, s{sT1}
s_lshl_b32 s{sT1}, s{sCB}, 8
s_add_u32 s{sT0}, s{sT0}, s{sT1}
s_and_b32 s{sT1}, s{sWv}, 3
s_lshl_b32 s{sT1}, s{sT1}, 6
s_add_u32 s45, s{sT0}, s{sT1}
s_mov_b32 s46, {LOG2E}
s_mov_b32 s47, {f2u(1e-6):#x}""")
    a.vmwait("g")
    stamp(a,2)
    G0, G1 = 76, 78
    for rt in range(2):
        x = GP_R+2*rt
        a(f"""v_add_f32 v{x}, v{x}, v{x+1}
v_mov_b32 v{x+1}, v{x}
v_permlane32_swap_b32 v{x}, v{x+1}
v_add_f32 v{x}, v{x}, v{x+1}
v_mov_b32 v{x+1}, v{x}
v_permlane16_swap_b32 v{x}, v{x+1}
v_add_f32 v{x}, v{x}, v{x+1}
v_mul_f32 v{x}, s46, v{x}
v_exp_f32 v{x}, v{x}
v_add_f32 v{x+1}, 1.0, v{x}
v_rcp_f32 v{G0+rt}, v{x+1}""")
    a(f"""s_cmp_lt_u32 s{sWv}, 4
s_cselect_b64 vcc, -1, 0
v_cndmask_b32 v{G1}, v{G0+1}, v{G0}, vcc
v_sub_f32 v{G1}, 1.0, v{G1}""")
    NUM, DEN, OF = 80, 112, 144
    for rt in range(2):
        for h in range(4):
            a.vmwait(f"ph{rt}{h}")
            i = 4*rt+h
            a(f"v_mfma_f32_16x16x32_bf16 {vr(DEN+4*i,4)}, {vr(Z_R,4)}, {vr(PH_R+4*i,4)}, 0")
            a(f"v_mfma_f32_16x16x32_bf16 {vr(NUM+4*i,4)}, {vr(KVF_R+4*h,4)}, {vr(PH_R+4*i,4)}, 0")
    stamp(a,3)
    for rt in range(2):
        for h in range(4):
            i = 4*rt+h
            d = DEN+4*i+h
            a(f"v_add_f32 v{d}, s47, v{d}")
        for h in range(4):
            d = DEN+4*(4*rt+h)+h
            a(f"v_rcp_f32 v{d}, v{d}")
        for h in range(4):
            d = DEN+4*(4*rt+h)+h
            a(f"v_mul_f32 v{d}, v{d}, v{G0+rt}")
        for h in range(4):
            i = 4*rt+h
            d = DEN+4*i+h
            for r in range(4): a(f"v_mul_f32 v{NUM+4*i+r}, v{NUM+4*i+r}, v{d}")
            f = OF+8*rt+2*h
            a(f"v_cvt_pk_bf16_f32 v{f}, v{NUM+4*i}, v{NUM+4*i+1}")
            a(f"v_cvt_pk_bf16_f32 v{f+1}, v{NUM+4*i+2}, v{NUM+4*i+3}")
            if h & 1:
                a(f"ds_write_b128 v{vOBW}, {vr(f-2,4)} offset:{2048*(h>>1)+1024*rt}")
    ACC = 160
    a.vmwait("ap")
    a(f"s_mov_b32 vcc_lo, 0xffff0000\ns_mov_b32 vcc_hi, 0xffff0000")
    for q in range(2):
        a(f"v_cndmask_b32 v{80+q}, v{AP_R+q}, v{AP_R+2+q}, vcc")
        a(f"v_cndmask_b32 v{82+q}, v{AP_R+2+q}, v{AP_R+q}, vcc")
    for q in range(4):
        a(f"v_lshlrev_b32 v{ACC+2*q}, 16, v{80+q}")
        a(f"v_and_b32 v{ACC+2*q+1}, 0xffff0000, v{80+q}")
    for q in range(8):
        a(f"v_mul_f32 v{ACC+q}, v{ACC+q}, v{G1}")
    stamp(a,4)
    a("s_waitcnt vmcnt(0) lgkmcnt(0)")
    bar(a)
    stamp(a,5)
    NB = 3
    AF = [16, 28, 40]
    def rd(k):
        b = AF[k % NB]
        o = (k & 7)*8192
        a0, a1 = (vA0, vA1) if k < 8 else (vA2, vA3)
        a(f"ds_read_b128 {vr(b+8,4)}, v{vOBR} offset:{2048*k}")
        a(f"ds_read_b64_tr_b16 {vr(b,2)}, v{a0} offset:{o}")
        a(f"ds_read_b64_tr_b16 {vr(b+2,2)}, v{a0} offset:{o+4096}")
        a(f"ds_read_b64_tr_b16 {vr(b+4,2)}, v{a1} offset:{o}")
        a(f"ds_read_b64_tr_b16 {vr(b+6,2)}, v{a1} offset:{o+4096}")
    rd(0); rd(1)
    for k in range(16):
        if k+2 < 16: rd(k+2)
        a(f"s_waitcnt lgkmcnt({5*min(2,15-k)})")
        b = AF[k % NB]
        a(f"v_mfma_f32_16x16x32_bf16 {vr(ACC,4)}, {vr(b,4)}, {vr(b+8,4)}, {vr(ACC,4)}")
        a(f"v_mfma_f32_16x16x32_bf16 {vr(ACC+4,4)}, {vr(b+4,4)}, {vr(b+8,4)}, {vr(ACC+4,4)}")
    stamp(a,6)
    for q in range(4):
        a(f"v_cvt_pk_bf16_f32 v{80+q}, v{ACC+2*q}, v{ACC+2*q+1}")
    for q in range(2):
        a(f"v_cndmask_b32 v{84+q}, v{80+q}, v{82+q}, vcc")
        a(f"v_cndmask_b32 v{86+q}, v{82+q}, v{80+q}, vcc")
    a(f"buffer_store_dwordx4 v[84:87], v{vOUT}, {sr(SOUT,4)}, s45 offen")
    stamp(a,7)

def k_final():
    a = Asm()
    a("s_cmp_ge_u32 s2, 256\ns_cbranch_scc1 KF_END")
    gen_final(a, lambda a: a("s_barrier"))
    if STAMPS:
        a("s_waitcnt vmcnt(0)")
        stamp(a,8)
        dump_stamps(a, 9, KD+0x20000, 26)
    a("KF_END:\ns_endpgm")
    return dict(name="final_kernel", grid=256, block=512, lds=F_LDS_END, body=a.text(True))
```

```python
KN = "gated_mix__ssm_conv_s4d__linear_kernel_hedgehog__prompt_kernel"
HEAD = open('gated_mix__ssm_conv_s4d__linear_kernel_hedgehog__prompt.s.ref').read().split('; Override launch')[0]
def wrap(kernels):
    s = HEAD
    if len(kernels) == 1 and kernels[0]['name'] == KN:
        k = kernels[0]
        s += f"; @launch grid=({k['grid']},1,1) block=({k['block']},1,1) lds={k['lds']}\n"
    else:
        for k in kernels:
            s += f"; @launch kernel={k['name']} grid=({k['grid']},1,1) block=({k['block']},1,1) lds={k['lds']}\n"
    s += '.amdgcn_target "amdgcn-amd-amdhsa--gfx950"\n.text\n'
    seen = set()
    for k in kernels:
        if k['name'] in seen: continue
        seen.add(k['name'])
        s += f".globl {k['name']}\n.p2align 8\n.type {k['name']},@function\n{k['name']}:\n{k['body']}\n"
    s += '.section .rodata,"a"\n'
    seen = set()
    for k in kernels:
        if k['name'] in seen: continue
        seen.add(k['name'])
        s += f""".p2align 6
.amdhsa_kernel {k['name']}
  .amdhsa_next_free_vgpr {k.get('vgpr',256)}
  .amdhsa_next_free_sgpr {k.get('sgpr',102)}
  .amdhsa_accum_offset {k.get('accum',256)}
  .amdhsa_group_segment_fixed_size 0
  .amdhsa_kernarg_size 120
  .amdhsa_user_sgpr_count 2
  .amdhsa_user_sgpr_kernarg_segment_ptr 1
  .amdhsa_system_sgpr_workgroup_id_x 1
.end_amdhsa_kernel
"""
    return s
```

```python
import sys
sys.path.insert(0,'work'); sys.path.insert(0,'gen')
from asmlib import *
from gen_common import wrap, KN
import kb
def k_bfront():
    a=Asm()
    a("s_cmp_ge_u32 s2, 256\ns_cbranch_scc1 KB_END")
    kb.gen_bfront(a, lambda a: a("s_barrier"))
    a("KB_END:\ns_endpgm")
    return dict(name="bfront_kernel", grid=256, block=256, lds=kb.B_LDS_END, body=a.text(True))
ks=[k_bfront()]
which=sys.argv[2] if len(sys.argv)>2 else 'b'
if 'a' in which:
    import ka
    ks.append(ka.k_apath())
if 'f' in which:
    import kf
    ks.append(kf.k_final())
if len(ks)==1:
    ks.append(dict(name="nop_kernel", grid=1, block=64, lds=0, body="s_endpgm"))
open(sys.argv[1],'w').write(wrap(ks))
```

```python
import re
TRANS = ('v_exp_f32','v_log_f32','v_rcp_f32','v_rsq_f32','v_sqrt_f32','v_sin_f32','v_cos_f32','v_rcp_iflag_f32')
def expand(tok):
    tok = tok.strip()
    tok = tok.lstrip('-').strip('|')
    if tok.startswith('abs(') or tok.startswith('neg('): tok = tok[4:-1]
    m = re.fullmatch(r'([vas])\[(\d+):(\d+)\]', tok)
    if m: return [f"{m.group(1)}{i}" for i in range(int(m.group(2)), int(m.group(3))+1)]
    m = re.fullmatch(r'([vas])(\d+)', tok)
    if m: return [tok]
    if tok in ('vcc','exec'): return [tok+'_lo', tok+'_hi']
    if tok in ('vcc_lo','vcc_hi','exec_lo','exec_hi','m0'): return [tok]
    return []
class Ins:
    def __init__(self, text):
        self.text = text
        t = text.split(';')[0].strip()
        self.label = None; self.kind = None; self.dst=set(); self.src=set(); self.mn=''
        self.target=None; self.ws=1
        if t.endswith(':'):
            self.label = t[:-1]; self.kind='label'; self.ws=0; return
        if t=='' or t.startswith('.'):
            self.kind='dir'; self.ws=0; return
        parts = t.split(None,1); mn = parts[0]; self.mn = mn
        rest = parts[1] if len(parts)>1 else ''
        ops=[]; cur=''; dep=0
        for ch in rest:
            if ch in '[(': dep+=1
            if ch in '])': dep-=1
            if ch==',' and dep==0: ops.append(cur.strip()); cur=''
            else: cur+=ch
        if cur.strip(): ops.append(cur.strip())
        mods=''
        if ops:
            last = ops[-1].split(None,1)
            ops[-1]=last[0]
            mods = last[1] if len(last)>1 else ''
        self.ops=ops; self.mods=mods
        E=lambda l:set(x for o in l for x in expand(o))
        if mn.startswith('v_mfma'):
            self.kind='mfma'; self.passes = 8 if '32x32x16' in mn else 4
            self.D=expand(ops[0]); self.A=set(expand(ops[1])); self.B=set(expand(ops[2])); self.C=expand(ops[3])
            self.dst=set(self.D); self.src=self.A|self.B|set(self.C)
        elif mn.startswith('v_'):
            self.kind='valu'
            self.dst=E(ops[:1]); self.src=E(ops[1:])
            b=mn.replace('_e32','').replace('_e64','').replace('_dpp','').replace('_sdwa','')
            self.base=b
            if b.startswith(('v_fmac','v_dot2c','v_writelane','v_mac')): self.src|=self.dst
            if b.startswith('v_permlane') and 'swap' in b: self.dst=E(ops); self.src=E(ops)
            if b.startswith('v_cmpx'): self.dst|={'exec_lo','exec_hi'}
            self.trans = b in TRANS
            self.dpp = ('_dpp' in mn) or ('quad_perm' in mods) or ('row_' in mods)
            if self.dpp: self.src|=self.dst
            self.dot = b.startswith('v_dot')
            if b=='v_nop': self.dst=set(); self.src=set()
        elif mn.startswith('ds_'):
            self.kind='ds'
            if mn.startswith(('ds_read','ds_bpermute','ds_permute','ds_swizzle')) or '_rtn' in mn:
                self.dst=E(ops[:1]); self.src=E(ops[1:])
            else: self.src=E(ops)
        elif mn.startswith(('buffer_','global_')):
            self.kind='vmem'
            self.lds = (' lds' in ' '+mods) or ('_lds_' in mn)
            self.store = ('store' in mn) or ('atomic' in mn)
            if 'load' in mn and not self.lds:
                self.dst=E(ops[:1]); self.src=E(ops[1:])
                if 'd16' in mn: self.src|=self.dst
            else: self.src=E(ops)
            if 'atomic' in mn and 'sc0' in mods: self.dst=E(ops[:1])
            self.wide = self.store and ('x3' in mn or 'x4' in mn)
            self.data = E(ops[:1]) if mn.startswith('buffer_') else E(ops[1:2])
            if self.lds: self.src|={'m0'}
        elif mn.startswith('s_'):
            if mn=='s_nop': self.kind='nop'; self.ws=int(ops[0],0)+1
            elif mn in('s_branch',) or mn.startswith('s_cbranch'):
                self.kind='branch'; self.target=ops[0]
            elif mn=='s_endpgm': self.kind='end'
            elif mn.startswith(('s_load','s_memtime','s_memrealtime','s_buffer_load','s_atomic')):
                self.kind='smem'; self.dst=E(ops[:1]); self.src=E(ops[1:])
            elif mn.startswith(('s_waitcnt','s_barrier','s_sleep','s_setprio')): self.kind='misc'
            elif mn.startswith(('s_cmp','s_bitcmp')): self.kind='salu'; self.src=E(ops)
            else:
                self.kind='salu'; self.dst=E(ops[:1]); self.src=E(ops[1:])
                if 'saveexec' in mn: self.dst|={'exec_lo','exec_hi'}
        else:
            raise ValueError("unknown instr "+text)
def isv(r): return r[0] in 'va' and r[1].isdigit()
def iss(r): return not isv(r)
def required(p, c):
    n=0
    if p.kind=='valu':
        pv={r for r in p.dst if isv(r)}; ps={r for r in p.dst if iss(r)}
        if c.kind=='mfma' and pv & c.src: n=max(n,2)
        if c.kind=='mfma' and ('exec_lo' in ps): n=max(n,4)
        if c.kind=='valu':
            if p.trans and not c.trans and pv & (c.src): n=max(n,1)
            if c.base.startswith(('v_readfirstlane','v_readlane')) and pv & c.src: n=max(n,1)
            if c.dpp and pv & c.src: n=max(n,2)
            if c.base.startswith('v_permlane') and pv & c.src: n=max(n,2)
            if ps & c.src: n=max(n, 4 if c.base.startswith(('v_readlane','v_writelane')) else 2)
            if 'exec_lo' in ps and (c.dpp): n=max(n,5)
            if 'exec_lo' in ps and c.base.startswith(('v_readfirstlane','v_readlane','v_writelane','v_permlane')): n=max(n,4)
            if p.dot and pv & (c.src|c.dst):
                if not (c.base==p.base and not (pv & set(x for o in c.ops[1:3] for x in expand(o)))): n=max(n,3)
            if ('op_sel' in p.mods and not p.base.startswith('v_pk')) and pv & (c.src|c.dst): n=max(n,1)
            if '_sdwa' in p.mn and pv & (c.src|c.dst): n=max(n,1)
        if c.kind in('vmem',) and ps & c.src: n=max(n,5)
        if p.dot and c.kind in ('ds','vmem','mfma') and pv & c.src: n=max(n,3)
    if p.kind=='mfma':
        D=set(p.D); P=p.passes
        if c.kind=='mfma':
            if D & (c.A|c.B): n=max(n, P+4)
            if D & set(c.C):
                if not (c.C==p.D and c.passes==P): n=max(n, P+2)
            elif D & set(c.D): n=max(n,P+4)
        elif c.kind in('valu','ds','vmem'):
            if D & (c.src|c.dst): n=max(n,P+4)
        if c.kind=='valu' and set(p.C) & c.dst: n=max(n,P-1)
        if c.kind in ('ds','vmem') and set(p.C) & c.dst: n=max(n,P-1)
    if p.kind=='vmem' and p.wide:
        if c.kind=='valu' and p.data & c.dst: n=max(n,2)
        elif c.kind in ('ds','vmem','mfma') and p.data & c.dst: n=max(n,1)
    if p.kind=='salu' and 'm0' in p.dst:
        if c.kind=='vmem' and c.lds: n=max(n,1)
        if c.kind=='valu' and c.base.startswith(('v_writelane','v_readlane')) and 'm0' in c.src: n=max(n,1)
    return n
def fix_hazards(lines, verbose=False):
    ins=[Ins(l) for l in lines]
    MAXD=14
    inserted=0
    i=0
    def build():
        lab={}
        for k,x in enumerate(ins):
            if x.kind=='label': lab[x.label]=k
        br={}
        for k,x in enumerate(ins):
            if x.kind=='branch': br.setdefault(lab[x.target],[]).append(k)
        return br
    br=build()
    def need(i):
        c=ins[i]; worst=0
        seen={}
        stack=[(i,0)]
        while stack:
            k,d=stack.pop()
            preds=[]
            j=k-1
            if j>=0:
                x=ins[j]
                if not (x.kind=='end' or (x.kind=='branch' and x.mn=='s_branch')): preds.append(j)
            if ins[k].kind=='label': preds+=br.get(k,[])
            for j in preds:
                x=ins[j]
                if x.kind not in('label','dir'):
                    r=required(x,c)
                    if r-d>worst: worst=r-d
                nd=d+x.ws
                if nd<MAXD and seen.get(j,99)>nd:
                    seen[j]=nd; stack.append((j,nd))
        return worst
    for rep in range(3):
        i=0; ch=False
        while i<len(ins):
            c=ins[i]
            if c.kind in('valu','mfma','ds','vmem'):
                w=need(i)
                if w>0:
                    ins.insert(i, Ins(f"s_nop {w-1}")); inserted+=w; ch=True
                    br=build(); i+=1
            i+=1
        if not ch: break
    if verbose: print("hazard nops inserted (wait states):",inserted)
    return [x.text for x in ins]

class Asm:
    def __init__(self):
        self.L=[]; self.vm=[]; self.uid=0; self.grp=None
    def __call__(self, s):
        for l in s.split('\n'):
            l=l.strip()
            if not l: continue
            self.L.append(l)
            if l.startswith(('buffer_','global_')): self.vm.append([None,self.grp])
    def tag(self, name):
        self.vm[-1][0]=name
    def vmcount(self, name):
        idx=max(i for i,n in enumerate(self.vm) if n[0]==name)
        tg=self.vm[idx][1]
        assert tg is None or tg==self.grp, (name,tg,self.grp)
        n=sum(1 for x in self.vm[idx+1:] if x[1] is None or (self.grp is not None and x[1]==self.grp))
        return n
    def vmwait(self, name, extra=''):
        n=self.vmcount(name)
        assert n<=63,(name,n)
        self(f"s_waitcnt vmcnt({n}){extra}")
    def label(self, base='L'):
        self.uid+=1; return f"{base}_{self.uid}"
    def text(self, verbose=False):
        return "\n".join(fix_hazards(self.L, verbose))
def vr(a,n=1):
    return f"v{a}" if n==1 else f"v[{a}:{a+n-1}]"
def sr(a,n=1):
    return f"s{a}" if n==1 else f"s[{a}:{a+n-1}]"

import os
STAMPS = bool(int(os.environ.get('STAMPS','0')))
CYC = bool(int(os.environ.get('CYC','0')))
def stamp(a, k):
    if STAMPS: a(f"{'s_memtime' if CYC else 's_memrealtime'} s[{64+2*k}:{65+2*k}]")
def dump_stamps(a, n, base, wave_sgpr, srd=12):
    if not STAMPS: return
    a("s_waitcnt lgkmcnt(0)")
    a("s_mov_b64 exec, 1")
    a(f"s_lshl_b32 s62, s2, 3\ns_add_u32 s62, s62, s{wave_sgpr}\ns_lshl_b32 s62, s62, 6\ns_add_u32 s62, s62, {base}")
    a("v_mov_b32 v1, 0")
    for k in range(n):
        a(f"v_mov_b32 v2, s{64+2*k}")
        a(f"buffer_store_dword v2, v1, s[{srd}:{srd+3}], s62 offen offset:{4*k}")
```

```python
from asmlib import *
from lay2 import *
from km_b import srd, Sync, SLOT, w_dma_addr, SC, SPIN_G, f2u
from ka import cmul, exp_acc, lds_map, PAIR
import struct, math

def gen_a(a, common):
    M = lds_map(ABASE)
    assert M['END'] == LDS_TOTAL
    SWS, SW = 12, 40
    sRB, sHG, sWv, sT0, sT1, sCH, sMH, sSTG, sPB = 24, 25, 26, 27, 28, 29, 30, 31, 34
    sL, sLlo, sLn2 = 36, 37, 38
    sN, sSP, sCP, sC = 48, 49, 50, 51
    vFLW, vFLR, vJ, vP, vWD, vFA, vFL = 56, 57, 58, 59, 60, 61, 62
    sy = Sync(a, vFLW, vJ, vP, sSP, 'A')
    def bar(k):
        sy.signal(k); sy.poll(vFLR, 1024); sy.check(k, vFLR, 1024)
    a("""s_load_dwordx4 s[4:7], s[0:1], 8
s_load_dwordx4 s[8:11], s[0:1], 24
s_load_dwordx4 s[16:19], s[0:1], 40
s_load_dwordx2 s[12:13], s[0:1], 112
s_load_dwordx2 s[40:41], s[0:1], 64""")
    common(a)
    a(f"v_mov_b32 v{vFLW}, v8\ns_sub_u32 s{sWv}, s{sWv}, 4")
    srd(a, SWS, WS_BYTES); srd(a, SW, 1572864)
    L = 1.4426950408889634
    Lhi = struct.unpack('<f', struct.pack('<f', L))[0]
    a(f"""s_lshr_b32 s{sCH}, s{sWv}, 1
s_and_b32 s{sMH}, s{sWv}, 1
s_mov_b32 s{sL}, {f2u(Lhi):#x}
s_mov_b32 s{sLlo}, {f2u(L-Lhi):#x}
s_mov_b32 s{sLn2}, {f2u(math.log(2)):#x}
s_mov_b32 s{sSP}, 0
s_lshl_b32 s{sT0}, s{sCP}, 9
s_lshl_b32 s{sT1}, s{sWv}, 7
s_add_u32 s{sT0}, s{sT0}, s{sT1}
v_lshlrev_b32 v1, 1, v0
v_add_u32 v1, s{sT0}, v1
s_mul_i32 s{sPB}, s{sCH}, {PAIR}
s_add_u32 s{sPB}, s{sPB}, {M['STG']}
s_mul_i32 s{sSTG}, s{sMH}, 8448
s_add_u32 s{sSTG}, s{sSTG}, s{sPB}
s_lshl_b32 s{sT1}, s{sCP}, 2
s_waitcnt lgkmcnt(0)""")
    a("""global_load_ushort v2, v1, s[4:5]
global_load_ushort v3, v1, s[6:7]
global_load_ushort v4, v1, s[8:9]
global_load_ushort v5, v1, s[10:11]""")
    a.tag("par")
    a(f"""s_load_dword s20, s[16:17], s{sT1}
s_load_dword s21, s[18:19], s{sT1}
s_barrier""")
    vUD = 6
    a(f"""v_bfe_u32 v7, v0, 4, 1
v_xor_b32 v7, v7, v0
v_lshlrev_b32 v{vUD}, 4, v7
v_lshrrev_b32 v7, 4, v0
v_lshlrev_b32 v7, 8, v7
v_lshl_add_u32 v7, v0, 2, v7
v_add_u32 v{vFLR}, {FLB}, v7""")
    w_dma_addr(a, vWD, sHG, sWv, sT0, sT1, 8)
    a(f"""v_and_b32 v7, 7, v0
s_lshl_b32 s{sT0}, s{sHG}, 5
s_lshl_b32 s{sT1}, s{sWv}, 3
s_add_u32 s{sT0}, s{sT0}, s{sT1}
v_add_u32 v8, s{sT0}, v7
v_lshlrev_b32 v9, 5, v7
v_add_u32 v9, s{sRB}, v9
s_mov_b32 vcc_lo, 0xff00ff00
s_mov_b32 vcc_hi, 0xff00ff00
v_cndmask_b32 v8, v8, v9, vcc
v_lshlrev_b32 v{vFA}, 7, v8
s_mov_b32 s56, {RDY}""")
    def u_dma():
        a(f"""s_lshl_b32 s{sT0}, s{sCP}, 13
s_lshl_b32 s{sT1}, s{sWv}, 11
s_add_u32 s{sT0}, s{sT0}, s{sT1}
s_add_u32 s{sT0}, s{sT0}, {UT2}
s_add_u32 m0, s{sT1}, {M['U']}
buffer_load_dwordx4 v{vUD}, {sr(SWS,4)}, s{sT0} offen {SC} lds
buffer_load_dwordx4 v{vUD}, {sr(SWS,4)}, s{sT0} offen offset:1024 {SC} lds""")
        a.tag("u")
    a(f"""v_mov_b32 v8, 0
v_mov_b32 v9, 0
v_mov_b32 v10, 0
v_mov_b32 v11, 0
s_lshl_b32 s{sT1}, s{sWv}, 8
s_add_u32 s{sT1}, s{sT1}, {M['UZ']}
v_and_b32 v7, 15, v0
v_lshlrev_b32 v7, 4, v7
v_add_u32 v7, s{sT1}, v7
ds_write_b128 v7, v[8:11]""")
    vSW, vSR0, vSR1 = 24, 25, 26
    a(f"""v_and_b32 v7, 7, v0
v_lshlrev_b32 v7, 4, v7
v_lshl_add_u32 v7, v0, 7, v7
v_add_u32 v{vSW}, s{sSTG}, v7""")
    a(f"""v_lshrrev_b32 v7, 5, v0
v_bfe_u32 v12, v0, 3, 1
v_lshl_add_u32 v7, v7, 2, v12
v_bfe_u32 v12, v0, 2, 1
v_bfe_u32 v13, v0, 4, 1
v_lshlrev_b32 v13, 1, v13
v_lshl_add_u32 v12, v12, 2, v13
v_bfe_u32 v13, v0, 1, 1
v_add_u32 v12, v12, v13
v_xor_b32 v12, v12, v7
v_lshlrev_b32 v12, 4, v12
v_lshl_add_u32 v12, v7, 7, v12
v_and_b32 v13, 1, v0
v_lshl_add_u32 v12, v13, 3, v12
v_add_u32 v{vSR0}, s{sSTG}, v12
v_xor_b32 v12, 32, v12
v_add_u32 v{vSR1}, s{sSTG}, v12
s_waitcnt lgkmcnt(0)
s_lshl_b32 s{sT0}, s{sCH}, 4
s_lshr_b32 s20, s20, s{sT0}
s_lshl_b32 s20, s20, 16
s_lshr_b32 s21, s21, s{sT0}
s_lshl_b32 s21, s21, 16
v_mov_b32 v7, s20""")
    vDT = 27
    exp_acc(a, vDT, 7, 12, sL, sLlo, sLn2)
    a(f"""v_cvt_pk_bf16_f32 v{vDT}, v{vDT}, v{vDT}
v_and_b32 v{vDT}, 0xffff0000, v{vDT}""")
    a.vmwait("par")
    stamp(a,1)
    for r in (2,3,4,5): a(f"v_lshlrev_b32 v{r}, 16, v{r}")
    exp_acc(a, 2, 2, 12, sL, sLlo, sLn2)
    E1, E2, E4, E8, E256, EX, W0, T = 8, 10, 12, 14, 16, 18, 20, 22
    a(f"""v_cvt_pk_bf16_f32 v2, v2, v2
v_and_b32 v2, 0xffff0000, v2
v_mul_f32 v2, v2, v{vDT}
v_mul_f32 v3, v3, v{vDT}
v_mul_f32 v2, s{sL}, v2
v_mul_f32 v3, 0.15915494, v3
v_mul_f32 v4, v4, v{vDT}
v_mul_f32 v5, v5, v{vDT}
v_add_f32 v{W0}, v4, v4
v_add_f32 v{W0+1}, v5, v5""")
    def anchor(E, x):
        if x == 1:
            a(f"v_exp_f32 v{T}, -v2\nv_fract_f32 v{T+1}, v3")
        else:
            a(f"v_mul_f32 v{T}, {f2u(-float(x)):#x}, v2\nv_mul_f32 v{T+1}, {f2u(float(x)):#x}, v3")
            a(f"v_exp_f32 v{T}, v{T}\nv_fract_f32 v{T+1}, v{T+1}")
        a(f"v_cos_f32 v{E}, v{T+1}\nv_sin_f32 v{E+1}, v{T+1}")
        a(f"v_mul_f32 v{E}, v{E}, v{T}\nv_mul_f32 v{E+1}, v{E+1}, v{T}")
    anchor(E8, 8)
    G, PK = 32, 48
    def stage(gi, regs, negim):
        n = '-' if negim else ''
        for j in range(4):
            a(f"v_cvt_pk_bf16_f32 v{PK+j}, v{regs[2*j]}, v{regs[2*j+1]}")
        for j in range(4):
            a(f"v_cvt_pk_bf16_f32 v{PK+4+j}, {n}v{regs[2*j]+1}, {n}v{regs[2*j+1]+1}")
        for part in range(2):
            g = 4*part+gi
            if g == 0: ad = vSW
            else:
                a(f"v_xor_b32 v{28+part}, {16*g}, v{vSW}"); ad = 28+part
            a(f"ds_write_b128 v{ad}, {vr(PK+4*part,4)}")
    a(f"v_mov_b32 v{G}, 1.0\nv_mov_b32 v{G+1}, 0\nv_mov_b32 v{G+2}, v{E8}\nv_mov_b32 v{G+3}, v{E8+1}")
    for gi in range(4):
        for j in range(8):
            if gi == 0 and j < 2: continue
            prev = G+2*((j-1) % 8)
            cmul(a, G+2*j, prev, E8, T)
        stage(gi, [G+2*j for j in range(8)], False)
    LF, HF, D, PT = 128, 160, 192, 208
    def trreads(dst):
        for ks in range(8):
            a(f"ds_read_b64_tr_b16 {vr(dst+4*ks,2)}, v{vSR0} offset:{1024*ks}")
            a(f"ds_read_b64_tr_b16 {vr(dst+4*ks+2,2)}, v{vSR1} offset:{1024*ks+256}")
    trreads(LF)
    stamp(a,2)
    anchor(E1, 1); anchor(E256, 256)
    cmul(a, E2, E1, E1, T); cmul(a, E4, E2, E2, T)
    g = lambda j: G+2*j
    cmul(a, g(1), W0, E1, T)
    for j in range(2, 8): cmul(a, g(j), g(j-1), E1, T)
    a("s_waitcnt lgkmcnt(0)")
    stage(0, [W0]+[g(j) for j in range(1,8)], True)
    cmul(a, g(0), W0, E256, T)
    for j in range(1, 5): cmul(a, g(j), g(j-1), E2, T)
    stage(1, [g(0),g(1),g(2),g(2),g(2),g(3),g(4),g(4)], True)
    cmul(a, EX, E256, E256, T)
    cmul(a, g(0), W0, EX, T)
    cmul(a, g(1), g(0), E4, T); cmul(a, g(2), g(1), E4, T)
    cmul(a, g(3), g(0), E256, T)
    cmul(a, g(4), g(3), E4, T); cmul(a, g(5), g(4), E4, T)
    stage(2, [g(0),g(1),g(2),g(2),g(3),g(4),g(5),g(5)], True)
    cmul(a, g(0), g(0), EX, T)
    cmul(a, g(1), g(0), E8, T)
    for j in range(1, 4):
        cmul(a, g(2*j), g(2*j-2), E256, T)
        cmul(a, g(2*j+1), g(2*j), E8, T)
    stage(3, [g(j) for j in range(8)], True)
    trreads(HF)
    stamp(a,3)
    vEX = 28
    a(f"""s_mul_i32 s{sT0}, s{sMH}, 12544
s_add_u32 s{sT0}, s{sT0}, s{sPB}
s_add_u32 s{sT1}, s{sPB}, s{sPB}
s_add_u32 s{sT1}, s{sT1}, 12544
s_sub_u32 s{sT1}, s{sT1}, s{sT0}
v_lshlrev_b32 v7, 4, v0
v_add_u32 v{vEX}, s{sT0}, v7
v_add_u32 v{vEX+1}, s{sT1}, v7""")
    for ks in range(8):
        a(f"s_waitcnt lgkmcnt({14-2*ks})")
        c = "0" if ks == 0 else vr(D,16)
        a(f"v_mfma_f32_32x32x16_bf16 {vr(D,16)}, {vr(HF+4*ks,4)}, {vr(LF+4*ks,4)}, {c}")
    vTQ, vT2, vT3 = 30, 31, 7
    a(f"""s_mul_i32 s{sT0}, s{sMH}, 4160
s_add_u32 s{sT0}, s{sT0}, s{sPB}
s_add_u32 s{sT0}, s{sT0}, {4080}
v_and_b32 v8, 31, v0
v_lshlrev_b32 v8, 4, v8
v_sub_u32 v8, s{sT0}, v8
v_lshrrev_b32 v9, 5, v0
v_lshlrev_b32 v10, 3, v9
v_sub_u32 v{vTQ}, v8, v10
v_lshlrev_b32 v10, 9, v9
v_sub_u32 v{vT2}, v8, v10
v_lshlrev_b32 v10, 10, v9
v_sub_u32 v{vT3}, v8, v10
v_lshlrev_b32 v11, 4, v0
v_add_u32 v11, s{sT0}, v11
v_mov_b32 v12, 0
v_mov_b32 v13, 0
v_mov_b32 v14, 0
v_mov_b32 v15, 0""")
    for j in range(4): a(f"ds_write_b128 v{vEX}, {vr(D+4*j,4)} offset:{1024*j}")
    bar(1)
    FLOAD = f"buffer_load_dword v{vFL}, v{vFA}, {sr(SWS,4)}, s56 offen {SC}"
    a(FLOAD); a.tag("fl")
    for j in range(4): a(f"ds_read_b128 {vr(PT+4*j,4)}, v{vEX+1} offset:{1024*j}")
    a(f"""s_mov_b64 exec, 7
ds_write_b128 v11, v[12:15] offset:4096
s_mov_b64 exec, 1
v_mov_b32 v12, s21
s_mov_b64 exec, -1
s_mov_b32 vcc_lo, 0xaaaaaaaa
s_mov_b32 vcc_hi, 0xaaaaaaaa
s_waitcnt lgkmcnt(1)""")
    a(f"v_add_f32 v{D}, v{D}, v12")
    for j in range(8): a(f"v_pk_add_f32 {vr(D+2*j,2)}, {vr(D+2*j,2)}, {vr(PT+2*j,2)}")
    stamp(a,4)
    r = lambda j: f"v{D+j}"
    P = 32
    L1, L2 = a.label('ATAP'), a.label('ATAP')
    a(f"s_cmp_eq_u32 s{sMH}, 0\ns_cbranch_scc1 {L1}")
    cv = lambda d, x, y: a(f"v_cvt_pk_bf16_f32 v{d}, {x}, {y}")
    cv(P, r(3), r(2)); cv(P+1, r(1), r(0)); a(f"ds_write_b64 v{vTQ}, {vr(P,2)} offset:{4096+8}")
    cv(P+2, r(6), r(5)); cv(P+3, r(4), r(4)); a(f"ds_write_b64 v{vTQ}, {vr(P+2,2)} offset:{4096+8-512}")
    cv(P+4, r(10), r(10)); cv(P+5, r(9), r(9)); cv(P+6, r(9), r(8)); cv(P+7, r(8), r(8))
    a(f"ds_write_b128 v{vT2}, {vr(P+4,4)} offset:{4096-1024}")
    for k in range(2):
        v0_, v1_ = r(12+2*k), r(13+2*k); Q = P+8+4*k
        a(f"v_cndmask_b32 v8, {v0_}, {v1_}, vcc")
        cv(Q, v1_, v1_); cv(Q+1, v1_, "v8"); cv(Q+2, v0_, v0_); cv(Q+3, v0_, v0_)
        a(f"ds_write_b128 v{vT3}, {vr(Q,4)} offset:{4096-2048-512*k}")
    a(f"s_branch {L2}\n{L1}:")
    cv(P+2, r(5), r(4)); cv(P+3, r(4), r(4)); a(f"ds_write_b64 v{vTQ}, {vr(P+2,2)} offset:{4096+8-512}")
    cv(P, r(2), r(1)); cv(P+1, r(0), r(3))
    a(f"ds_write_b32 v{vTQ}, v{P} offset:{4108-4}")
    a(f"ds_write_b16 v{vTQ}, v{P+1} offset:{4108}")
    a(f"ds_write_b16_d16_hi v{vTQ}, v{P+1} offset:{4108-6}")
    cv(P+4, r(10), r(9)); cv(P+5, r(9), r(9)); cv(P+6, r(8), r(8)); cv(P+7, r(8), r(8))
    a(f"ds_write_b128 v{vT2}, {vr(P+4,4)} offset:{4096-1024}")
    for k in range(2):
        v0_, v1_ = r(12+2*k), r(13+2*k); Q = P+8+4*k
        a(f"v_cndmask_b32 v8, {v0_}, {v1_}, vcc")
        cv(Q, v1_, v1_); cv(Q+1, "v8", v0_); cv(Q+2, v0_, v0_); cv(Q+3, v0_, v0_)
        a(f"ds_write_b128 v{vT3}, {vr(Q,4)} offset:{4096-2048-512*k}")
    a(f"{L2}:")
    sy.signal(2); sy.poll(vFLR, 0)
    vTA = 8
    a(f"""v_and_b32 v12, 1, v0
v_mul_u32_u24 v13, {4160+2}, v12
v_and_b32 v12, 15, v0
v_lshlrev_b32 v12, 1, v12
v_sub_u32 v13, v13, v12
v_lshrrev_b32 v12, 4, v0
v_lshl_add_u32 v13, v12, 4, v13
s_lshl_b32 s{sT0}, s{sMH}, 6
s_sub_u32 s{sT0}, s{sPB}, s{sT0}
s_add_u32 s{sT0}, s{sT0}, {4080+12+4096-32-128*7}
v_add_u32 v{vTA}, s{sT0}, v13""")
    for gq in range(1, 4): a(f"v_add_u32 v{vTA+gq}, {(-1024*gq) & 0xffffffff:#x}, v{vTA}")
    vB0, vB1 = 12, 13
    a(f"""v_and_b32 v14, 15, v0
v_lshrrev_b32 v15, 4, v0
v_lshl_add_u32 v14, v14, 1, v15
s_lshl_b32 s{sT0}, s{sMH}, 2
s_sub_u32 s{sT0}, 6, s{sT0}
v_add_u32 v14, s{sT0}, v14
v_bfe_u32 v15, v14, 3, 1
v_xor_b32 v15, s{sCH}, v15
v_lshlrev_b32 v15, 4, v15
v_lshl_add_u32 v14, v14, 5, v15
v_add_u32 v{vB0}, {M['UZ']}, v14
v_xor_b32 v14, 16, v14
v_add_u32 v{vB1}, {M['UZ']}, v14""")
    sy.check(10, vFLR, 0)
    stamp(a,5)
    a(f"v_mov_b32 v14, {NW}\nds_read_b32 v14, v14")
    sy.poll(vFLR, 1024)
    for i in range(8):
        a(f"""s_add_u32 s{sT0}, s{sHG}, {i}
s_and_b32 s{sT0}, s{sT0}, 7
s_mul_i32 s{sT0}, s{sT0}, 196608
s_lshl_b32 s{sT1}, s{sWv}, 11
s_add_u32 m0, s{sT1}, {8192*SLOT[24+i]}
buffer_load_dwordx4 v{vWD}, {sr(SW,4)}, s{sT0} offen lds
s_add_u32 s{sT0}, s{sT0}, 24576
s_add_u32 m0, s{sT1}, {8192*SLOT[24+i]+1024}
buffer_load_dwordx4 v{vWD}, {sr(SW,4)}, s{sT0} offen lds""")
    a.tag("wq")
    sy.check(2, vFLR, 1024)
    a(f"v_readfirstlane_b32 s{sN}, v14")
    stamp(a,6)
    TF, ACC, BF = 128, 96, 64
    order = [m for s in (3,2,1,0) for m in range(s, 32, 4)]
    def treads(ms):
        for mu in ms:
            o = (7-(mu & 7))*32
            a(f"ds_read2_b32 {vr(TF+4*mu,2)}, v{vTA+(mu>>3)} offset0:{o} offset1:{o+1}")
            a(f"ds_read2_b32 {vr(TF+4*mu+2,2)}, v{vTA+(mu>>3)} offset0:{o+2} offset1:{o+3}")
    LOK, LP = a.label('AOK'), a.label('AFP')
    a.vmwait("fl")
    a(f"""v_cmp_ne_u32 vcc, s{sN}, v{vFL}
s_cbranch_vccz {LOK}
s_waitcnt vmcnt(0)""")
    sy.signal(3)
    a(f"s_mov_b32 s{sC}, 0\n{LP}:")
    a.L.append(FLOAD)
    a(f"""s_add_u32 s{sC}, s{sC}, 1
s_waitcnt vmcnt(0)
v_cmp_ne_u32 vcc, s{sN}, v{vFL}
s_cbranch_vccz {LOK}
s_cmp_lt_u32 s{sC}, {SPIN_G}
s_cbranch_scc1 {LP}
{LOK}:""")
    u_dma()
    treads(order)
    vOW, vOR = 14, 15
    a(f"""v_and_b32 v16, 15, v0
v_lshrrev_b32 v17, 4, v0
v_lshlrev_b32 v18, 2, v17
v_xor_b32 v16, v16, v18
v_lshl_add_u32 v16, v17, 4, v16
v_lshlrev_b32 v16, 4, v16
s_lshl_b32 s{sT0}, s{sWv}, 13
s_add_u32 s{sT0}, s{sT0}, {M['STG']}
v_add_u32 v{vOW}, s{sT0}, v16
v_lshrrev_b32 v16, 2, v0
v_and_b32 v17, 3, v0
v_lshlrev_b32 v18, 2, v17
v_xor_b32 v16, v16, v18
v_lshl_add_u32 v16, v17, 4, v16
v_lshlrev_b32 v16, 4, v16
s_lshl_b32 s{sT0}, s{sWv}, 11
s_add_u32 s{sT0}, s{sT0}, {M['STG']}
v_add_u32 v{vOR}, s{sT0}, v16
v_lshlrev_b32 v16, 4, v0""")
    a.vmwait("wq")
    sy.signal(3)
    stamp(a,7)
    a.vmwait("u")
    bar(4)
    stamp(a,8)
    NB = 8
    def bread(e):
        a(f"ds_read_b128 {vr(BF+4*(e%NB),4)}, v{vB0+(e&1)} offset:{256*e}")
    PF = 4
    for e in range(PF): bread(e)
    started = set()
    for e in range(32):
        if e+PF < 32: bread(e+PF)
        a(f"s_waitcnt lgkmcnt({min(PF, 31-e)})")
        for seg in range(7, -1, -1):
            mu = 4*seg-e+3
            if mu < 0: continue
            c = vr(ACC+4*seg,4) if seg in started else "0"
            started.add(seg)
            a(f"v_mfma_f32_16x16x32_bf16 {vr(ACC+4*seg,4)}, {vr(TF+4*mu,4)}, {vr(BF+4*(e%NB),4)}, {c}")
        if e % 4 == 3:
            seg = e//4
            if seg >= 1: a(f"ds_write_b128 v{vOW}, {vr(ACC+4*(seg-1),4)} offset:{1024*(seg-1)}")
    stamp(a,9)
    a(f"ds_write_b128 v{vOW}, {vr(ACC+28,4)} offset:{1024*7}")
    a(f"""s_lshl_b32 s{sT0}, s{sCP}, 13
s_lshl_b32 s{sT1}, s{sWv}, 11
s_add_u32 s{sT0}, s{sT0}, s{sT1}
s_add_u32 s{sT0}, s{sT0}, {AP}""")
    bar(5)
    R = 128
    for s in range(2):
        for w in range(4):
            a(f"ds_read_b128 {vr(R+16*s+4*w,4)}, v{vOR} offset:{8192*w+1024*s}")
    for s in range(2):
        a(f"s_waitcnt lgkmcnt({4-4*s})")
        b = R+16*s
        for j in range(2):
            a(f"v_pk_add_f32 {vr(b+2*j,2)}, {vr(b+2*j,2)}, {vr(b+4+2*j,2)}")
            a(f"v_pk_add_f32 {vr(b+8+2*j,2)}, {vr(b+8+2*j,2)}, {vr(b+12+2*j,2)}")
        for j in range(4):
            a(f"v_cvt_pk_bf16_f32 v{b+4+j}, v{b+j}, v{b+8+j}")
        a(f"buffer_store_dwordx4 {vr(b+4,4)}, v16, {sr(SWS,4)}, s{sT0} offen offset:{1024*s} {SC}")
    a.tag("ap")
    stamp(a,10)
    GPR, APR, GA = 20, 24, 32
    vRow, vGA = 17, 18
    a(f"""v_lshrrev_b32 v19, 5, v0
v_and_b32 v{vRow}, 31, v0
v_lshlrev_b32 v{vRow}, 2, v{vRow}
v_lshl_add_u32 v{vGA}, v19, 15, v{vRow}
v_lshl_add_u32 v{vRow}, v19, 16, v{vRow}
s_lshl_b32 s{sT0}, s{sRB}, 8
s_and_b32 s{sT1}, s{sHG}, 1
s_lshl_b32 s{sT1}, s{sT1}, 7
s_add_u32 s52, s{sT0}, s{sT1}
s_add_u32 s{sT0}, s52, {GP}""")
    for u in range(4):
        a(f"buffer_load_dword v{GPR+u}, v{vGA}, {sr(SWS,4)}, s{sT0} offen {SC}")
        if u < 3: a(f"s_add_u32 s{sT0}, s{sT0}, 8192")
    a(f"""s_lshr_b32 s53, s{sHG}, 1
s_lshl_b32 s53, s53, 6
s_lshl_b32 s{sT1}, s{sWv}, 4
s_add_u32 s53, s53, s{sT1}
v_and_b32 v19, 15, v0
v_add_u32 v19, s53, v19
v_lshlrev_b32 v{vFA}, 7, v19
s_mov_b32 s56, {APF}
s_lshl_b32 s53, s53, 13
s_add_u32 s52, s52, s53
s_add_u32 s52, s52, {AP}
s_lshl_b32 s{sT1}, s{sWv}, 12
s_add_u32 s{sT1}, s{sT1}, {ABASE}
v_add_u32 v{vGA}, s{sT1}, v16""")
    a.vmwait("ap")
    bar(6)
    LF_ = a.label('AFL')
    a(f"""s_cmp_lg_u32 s{sWv}, 0
s_cbranch_scc1 {LF_}
s_lshl_b32 s{sT0}, s{sCP}, 7
s_add_u32 s{sT0}, s{sT0}, {APF}
v_mov_b32 v28, s{sN}
v_mov_b32 v29, 0
s_mov_b64 exec, 1""")
    a.L.append(f"buffer_store_dword v28, v29, {sr(SWS,4)}, s{sT0} offen {SC}")
    a(f"s_mov_b64 exec, -1\n{LF_}:")
    stamp(a,11)
    LP, LD = a.label('AFP'), a.label('AFD')
    a(f"s_mov_b32 s{sC}, 0\n{LP}:")
    a.L.append(FLOAD)
    a(f"""s_add_u32 s{sC}, s{sC}, 1
s_waitcnt vmcnt(0)
v_cmp_ne_u32 vcc, s{sN}, v{vFL}
s_cbranch_vccz {LD}
s_cmp_lt_u32 s{sC}, {SPIN_G}
s_cbranch_scc1 {LP}
{LD}:""")
    stamp(a,12)
    for u in range(8):
        a(f"buffer_load_dword v{APR+u}, v{vRow}, {sr(SWS,4)}, s52 offen {SC}")
        a.tag(f"apr{u}")
        if u < 7: a(f"s_add_u32 s52, s52, 8192")
    x = GPR
    a(f"""v_add_f32 v{x}, v{x}, v{x+1}
v_add_f32 v{x+2}, v{x+2}, v{x+3}
v_add_f32 v{x}, v{x}, v{x+2}
v_mov_b32 v{x+1}, v{x}
v_permlane32_swap_b32 v{x}, v{x+1}
v_add_f32 v{x}, v{x}, v{x+1}
v_mul_f32 v{x}, s{sL}, v{x}
v_exp_f32 v{x}, v{x}
v_add_f32 v{x}, 1.0, v{x}
v_rcp_f32 v{x}, v{x}
v_sub_f32 v{x}, 1.0, v{x}""")
    for q in range(4):
        a.vmwait(f"apr{2*q+1}")
        for u in (2*q, 2*q+1):
            a(f"""v_lshlrev_b32 v{GA+2*u}, 16, v{APR+u}
v_and_b32 v{GA+2*u+1}, 0xffff0000, v{APR+u}
v_mul_f32 v{GA+2*u}, v{GA+2*u}, v{x}
v_mul_f32 v{GA+2*u+1}, v{GA+2*u+1}, v{x}""")
        a(f"ds_write_b128 v{vGA}, {vr(GA+4*q,4)} offset:{1024*q}")
    a("s_waitcnt lgkmcnt(0)")
    stamp(a,13)
    a("s_barrier")
    if STAMPS:
        a(f"s_add_u32 s{sWv}, s{sWv}, 4")
        dump_stamps(a, 14, KD, sWv)
```

```python
from asmlib import *
from lay2 import *
import struct
def f2u(x): return struct.unpack('<I', struct.pack('<f', x))[0]
SPIN_L = 1<<17
SPIN_G = 1<<12
LCG_A, LCG_C = 0x41C64E6D, 0x3039
def srd(a, d, nbytes):
    a(f"s_mov_b32 s{d+2}, {nbytes}")
    a(f"s_mov_b32 s{d+3}, 0x00020000")
def softmax16(a, P, dst, t, sL, pk=True):
    a(f"v_max3_f32 v{t}, v{P}, v{P+1}, v{P+2}")
    a(f"v_max3_f32 v{t+1}, v{P+3}, v{P+4}, v{P+5}")
    a(f"v_max3_f32 v{t}, v{t}, v{P+6}, v{P+7}")
    a(f"v_max3_f32 v{t+1}, v{t+1}, v{P+8}, v{P+9}")
    a(f"v_max3_f32 v{t}, v{t}, v{P+10}, v{P+11}")
    a(f"v_max3_f32 v{t+1}, v{t+1}, v{P+12}, v{P+13}")
    a(f"v_max3_f32 v{t}, v{t}, v{P+14}, v{P+15}")
    a(f"v_max_f32 v{t}, v{t}, v{t+1}")
    a(f"v_mul_f32 v{t}, s{sL}, v{t}")
    if pk:
        for j in range(8):
            a(f"v_pk_fma_f32 {vr(P+2*j,2)}, {vr(P+2*j,2)}, {sr(sL,2)}, {vr(t,2)} op_sel_hi:[1,1,0] neg_lo:[0,0,1] neg_hi:[0,0,1]")
    else:
        for j in range(16): a(f"v_fma_f32 v{P+j}, v{P+j}, s{sL}, -v{t}")
    for j in range(16):
        a(f"v_exp_f32 v{P+j}, v{P+j}")
    sum16(a, P, t, pk)
    a(f"v_rcp_f32 v{t}, v{t}")
    if pk:
        for j in range(8):
            a(f"v_pk_mul_f32 {vr(P+2*j,2)}, {vr(P+2*j,2)}, {vr(t,2)} op_sel_hi:[1,0]")
    else:
        for j in range(16): a(f"v_mul_f32 v{P+j}, v{P+j}, v{t}")
    for j in range(8):
        a(f"v_cvt_pk_bf16_f32 v{dst+j}, v{P+2*j}, v{P+2*j+1}")
def sum16(a, P, t, pk):
    if pk:
        a(f"v_pk_add_f32 {vr(t,2)}, {vr(P,2)}, {vr(P+2,2)}")
        a(f"v_pk_add_f32 {vr(t+2,2)}, {vr(P+4,2)}, {vr(P+6,2)}")
        a(f"v_pk_add_f32 {vr(t,2)}, {vr(t,2)}, {vr(P+8,2)}")
        a(f"v_pk_add_f32 {vr(t+2,2)}, {vr(t+2,2)}, {vr(P+10,2)}")
        a(f"v_pk_add_f32 {vr(t,2)}, {vr(t,2)}, {vr(P+12,2)}")
        a(f"v_pk_add_f32 {vr(t+2,2)}, {vr(t+2,2)}, {vr(P+14,2)}")
        a(f"v_pk_add_f32 {vr(t,2)}, {vr(t,2)}, {vr(t+2,2)}")
        a(f"v_add_f32 v{t}, v{t}, v{t+1}")
    else:
        for j in range(4): a(f"v_add_f32 v{t+j}, v{P+j}, v{P+4+j}")
        for q in (8, 12):
            for j in range(4): a(f"v_add_f32 v{t+j}, v{t+j}, v{P+q+j}")
        a(f"v_add_f32 v{t}, v{t}, v{t+1}\nv_add_f32 v{t+2}, v{t+2}, v{t+3}\nv_add_f32 v{t}, v{t}, v{t+2}")

class Sync:
    def __init__(s, a, vW, vJ, vP, sS, pref):
        s.a, s.vW, s.vJ, s.vP, s.sS, s.pref = a, vW, vJ, vP, sS, pref
    def signal(s, j):
        s.a(f"v_mov_b32 v{s.vJ}, {j}\nds_write_b32 v{s.vW}, v{s.vJ}")
    def poll(s, vR, off=0):
        s.a(f"ds_read_b32 v{s.vP}, v{vR} offset:{off}")
    def check(s, j, vR, off=0, rows=0xF):
        a = s.a
        L, D = a.label(s.pref+'S'), a.label(s.pref+'D')
        a(f"{L}:\ns_waitcnt lgkmcnt(0)\nv_cmp_gt_u32 vcc, {j}, v{s.vP}")
        if rows != 0xF:
            lo = (0xFFFF if rows & 1 else 0) | (0xFFFF0000 if rows & 2 else 0)
            hi = (0xFFFF if rows & 4 else 0) | (0xFFFF0000 if rows & 8 else 0)
            a(f"s_and_b32 vcc_lo, vcc_lo, {lo:#x}\ns_and_b32 vcc_hi, vcc_hi, {hi:#x}\ns_cmp_eq_u64 vcc, 0\ns_cbranch_scc1 {D}")
        else:
            a(f"s_cbranch_vccz {D}")
        a(f"ds_read_b32 v{s.vP}, v{vR} offset:{off}\ns_add_u32 s{s.sS}, s{s.sS}, 1\ns_cmp_lt_u32 s{s.sS}, {SPIN_L}\ns_cbranch_scc1 {L}\n{D}:")

def weave(a, fg, bg):
    i = 0
    for gap, op in bg:
        n = min(gap, len(fg)-i)
        for k in range(n): a(fg[i+k])
        i += n
        op()
    for k in range(i, len(fg)): a(fg[k])

def gpoll(a, pref, loads, regs, vM, sCnt):
    L, D = a.label(pref+'P'), a.label(pref+'Q')
    a(f"s_mov_b32 s{sCnt}, 0\n{L}:")
    for l in loads: a(l)
    a(f"s_add_u32 s{sCnt}, s{sCnt}, 1")
    n = len(loads)
    for i in range(n):
        a(f"s_waitcnt vmcnt({n-1-i})")
        r = regs[i]
        if i == 0: a(f"v_max_u32 v{vM}, v{r}, v{r+1}")
        else: a(f"v_max3_u32 v{vM}, v{vM}, v{r}, v{r+1}")
        a(f"v_max3_u32 v{vM}, v{vM}, v{r+2}, v{r+3}")
    a(f"v_cmp_eq_u32 vcc, -1, v{vM}\ns_cbranch_vccz {D}\ns_cmp_lt_u32 s{sCnt}, {SPIN_G}\ns_cbranch_scc1 {L}\n{D}:")

def fpoll(a, pref, load, vF, sN, sCnt, first_issued=False):
    L, D, C = a.label(pref+'F'), a.label(pref+'G'), a.label(pref+'H')
    a(f"s_mov_b32 s{sCnt}, 0")
    if first_issued: a(f"s_branch {C}")
    a(f"{L}:")
    a(load)
    a(f"{C}:\ns_add_u32 s{sCnt}, s{sCnt}, 1\ns_waitcnt vmcnt(0)\nv_cmp_ne_u32 vcc, s{sN}, v{vF}\ns_cbranch_vccz {D}\ns_cmp_lt_u32 s{sCnt}, {SPIN_G}\ns_cbranch_scc1 {L}\n{D}:")

SLOT = {}
for u in range(24): SLOT[u] = u % 14
for i, s in enumerate((10,11,12,13,0,1,2,3)): SLOT[24+i] = s
WOSLOT = [6,7,8,9,4,5,10,11,12,13,0,1,2,3,6,7]
EXB = 8192*4
OB = 0
D0 = 4
SC = "sc1"

def w_dma_addr(a, vW, sHG, sWv, t0, t1, tv):
    a(f"""v_lshrrev_b32 v{tv}, 3, v0
v_and_b32 v{tv+1}, 7, v0
v_bfe_u32 v{tv+2}, v0, 4, 1
v_lshlrev_b32 v{tv+2}, 2, v{tv+2}
v_xor_b32 v{tv+1}, v{tv+1}, v{tv+2}
v_lshlrev_b32 v{tv+1}, 4, v{tv+1}
s_mul_i32 s{t0}, s{sWv}, {16*3072}
s_lshl_b32 s{t1}, s{sHG}, 7
s_add_u32 s{t0}, s{t0}, s{t1}
v_mul_u32_u24 v{tv}, 0xc00, v{tv}
v_add3_u32 v{vW}, v{tv}, v{tv+1}, s{t0}""")

def gen_b(a, common):
    SX, SW, SWS, SPH, SG, SWO, SOUT = 4, 8, 12, 16, 20, 40, 44
    sRB, sHG, sWv, sT0, sT1, sXo, sWo, sM, sL = 24, 25, 26, 27, 28, 29, 30, 31, 32
    sN, sSP, sCP, sPC = 48, 49, 50, 51
    sKVP, sZP, sOP, sKF = 34, 35, 36, 37
    vXA, vWA, vFLW, vFLR, T, vXD0, vXD1, vWD, vLIN, vJ, vP = 2, 6, 8, 9, 10, 14, 15, 16, 17, 18, 19
    WF = [20, 36]; ACCK, ACCV, P, WP, B1, B2, XQ = 52, 68, [84, 100], 116, 124, 2, 128
    sy = Sync(a, vFLW, vJ, vP, sSP, 'B')
    a("s_setprio 3")
    a("""s_load_dwordx2 s[4:5], s[0:1], 0
s_load_dwordx2 s[8:9], s[0:1], 64
s_load_dwordx2 s[12:13], s[0:1], 112
s_load_dwordx2 s[16:17], s[0:1], 72
s_load_dwordx2 s[20:21], s[0:1], 88
s_load_dwordx2 s[40:41], s[0:1], 80
s_load_dwordx2 s[44:45], s[0:1], 96""")
    common(a)
    srd(a, SX, 2097152); srd(a, SW, 1572864); srd(a, SWS, WS_BYTES); srd(a, SPH, 16384); srd(a, SG, 1024)
    srd(a, SWO, 524288); srd(a, SOUT, 2097152)
    a(f"s_mov_b32 s{sL}, {LOG2E}\ns_mov_b32 s{sL+1}, {LOG2E}\ns_mov_b32 s{sSP}, 0")
    a(f"""v_lshrrev_b32 v20, 3, v0
v_and_b32 v21, 7, v0
v_lshrrev_b32 v22, 4, v0
v_xor_b32 v23, v21, v22
v_lshlrev_b32 v23, 4, v23
v_lshl_add_u32 v23, v20, 10, v23
s_lshl_b32 s{sT0}, s{sRB}, 16
s_lshl_b32 s{sT1}, s{sWv}, 14
s_add_u32 s{sT0}, s{sT0}, s{sT1}
v_add_u32 v{vXD0}, s{sT0}, v23
v_xor_b32 v{vXD1}, 64, v{vXD0}
v_add_u32 v{vXD1}, 0x2000, v{vXD1}""")
    w_dma_addr(a, vWD, sHG, sWv, sT0, sT1, 20)
    a(f"v_lshlrev_b32 v{vLIN}, 4, v0\ns_lshl_b32 s{sM}, s{sWv}, 11")
    a("s_waitcnt lgkmcnt(0)")
    stamp(a, 1)
    def chunk_off(i):
        a(f"s_add_u32 s{sT0}, s{sHG}, {i}\ns_and_b32 s{sT0}, s{sT0}, 7\ns_lshl_b32 s{sXo}, s{sT0}, 7\ns_mul_i32 s{sWo}, s{sT0}, 196608")
    def dma(ldsaddr, voff, srdn, soff):
        a(f"s_add_u32 m0, s{sM}, {ldsaddr}")
        a(f"buffer_load_dwordx4 v{voff}, {sr(srdn,4)}, {soff} offen lds")
    def dma_w(u, col):
        for t in range(2):
            a(f"s_add_u32 s{sT1}, s{sWo}, {col+24576*t}")
            dma(8192*SLOT[u]+1024*t, vWD, SW, f"s{sT1}")
        a.tag(f"u{u}")
    def dma_pair(u):
        if u < 16:
            chunk_off(u//2)
            dma(8192*SLOT[u], vXD0, SX, f"s{sXo}"); dma(8192*SLOT[u]+1024, vXD1, SX, f"s{sXo}")
            dma_w(u+1, 1024)
        else:
            for x in (u, u+1):
                chunk_off(x-16); dma_w(x, 2048)
    a(f"v_mov_b32 v1, 0\ns_mov_b32 s{sT1}, {GEN}")
    a(f"buffer_load_dword v1, v1, {sr(SWS,4)}, s{sT1} offen {SC}")
    dma_pair(0)
    GW = P[0]
    a(f"""s_and_b32 s{sT0}, s{sWv}, 1
s_lshl_b32 s{sT0}, s{sT0}, 10
s_add_u32 m0, s{sT0}, {PHI}
s_lshl_b32 s{sT1}, s{sHG}, 11
s_add_u32 s{sT1}, s{sT1}, s{sT0}
buffer_load_dwordx4 v{vLIN}, {sr(SPH,4)}, s{sT1} offen lds
v_lshrrev_b32 v20, 5, v0
v_lshlrev_b32 v20, 4, v20
s_lshl_b32 s{sT1}, s{sHG}, 7""")
    for ks in range(4):
        a(f"buffer_load_dwordx4 {vr(GW+4*ks,4)}, v20, {sr(SG,4)}, s{sT1} offen offset:{32*ks}")
    a.tag("gw")
    for i in range(1, D0): dma_pair(2*i)
    a("s_barrier")
    vUT, vUS, vGO, vKO, CL = 68, 69, 70, 71, 72
    a(f"""s_and_b32 s{sT0}, s{sWv}, 1
s_lshr_b32 s{sT1}, s{sWv}, 1
s_lshl_b32 s{sT1}, s{sT1}, 1
s_add_u32 s{sT1}, s{sT1}, s{sT0}
s_lshl_b32 s38, s{sHG}, 2
s_add_u32 s38, s38, s{sT1}
s_lshl_b32 s{sKVP}, s38, 16
s_lshl_b32 s{sT1}, s{sRB}, 8
s_add_u32 s{sKVP}, s{sKVP}, s{sT1}
s_add_u32 s{sKVP}, s{sKVP}, {KVP}
s_lshl_b32 s{sZP}, s38, 12
s_lshl_b32 s{sT1}, s{sRB}, 7
s_add_u32 s{sZP}, s{sZP}, s{sT1}
s_add_u32 s{sZP}, s{sZP}, {ZP}
s_lshl_b32 s{sOP}, s{sRB}, 16
s_lshl_b32 s{sT0}, s{sT0}, 15
s_add_u32 s{sOP}, s{sOP}, s{sT0}
s_lshl_b32 s{sT0}, s{sHG}, 12
s_add_u32 s{sOP}, s{sOP}, s{sT0}
s_and_b32 s{sT0}, s{sWv}, 2
s_lshl_b32 s{sT0}, s{sT0}, 10
s_add_u32 s{sOP}, s{sOP}, s{sT0}
s_add_u32 s{sOP}, s{sOP}, {OO}
s_lshr_b32 s{sT0}, s{sCP}, 3
s_lshl_b32 s{sKF}, s{sT0}, 11
s_add_u32 s{sKF}, s{sKF}, {KVF}
s_and_b32 s{sT0}, s{sRB}, 7
s_lshl_b32 s{sT0}, s{sT0}, 7
s_cmp_eq_u32 s{sWv}, 0
s_cselect_b32 s{sT0}, s{sT0}, 1024
s_add_u32 s{sKF}, s{sKF}, s{sT0}
s_add_u32 s39, s{sKVP}, 32768
v_lshrrev_b32 v20, 4, v0
v_and_b32 v21, 15, v0
v_lshlrev_b32 v21, 4, v21
v_lshl_add_u32 v{vKO}, v20, 13, v21
v_mov_b32 v{CL}, -1
v_mov_b32 v{CL+1}, -1
v_mov_b32 v{CL+2}, -1
v_mov_b32 v{CL+3}, -1
buffer_store_dwordx4 {vr(CL,4)}, v{vKO}, {sr(SWS,4)}, s{sKVP} offen {SC}
buffer_store_dwordx4 {vr(CL,4)}, v{vKO}, {sr(SWS,4)}, s39 offen {SC}
buffer_store_dwordx4 {vr(CL,4)}, v{vLIN}, {sr(SWS,4)}, s{sOP} offen {SC}
buffer_store_dwordx4 {vr(CL,4)}, v{vLIN}, {sr(SWS,4)}, s{sOP} offen offset:1024 {SC}
s_mov_b64 exec, 0xff
buffer_store_dwordx4 {vr(CL,4)}, v{vLIN}, {sr(SWS,4)}, s{sZP} offen {SC}""")
    a(f"""s_and_b32 s{sT0}, s{sRB}, 7
s_cmp_eq_u32 s{sT0}, 0
s_cselect_b32 s{sPC}, 1, 2
s_cmp_eq_u32 s{sWv}, 1
s_cselect_b32 s{sPC}, s{sPC}, 2
s_cmp_eq_u32 s{sWv}, 0
s_cselect_b32 s{sPC}, 0, s{sPC}
s_cselect_b32 exec_lo, 0xff, 0xf
s_cmp_eq_u32 s{sPC}, 2
s_cselect_b32 s{sT0}, s{sZP}, s{sKF}
buffer_store_dwordx4 {vr(CL,4)}, v{vLIN}, {sr(SWS,4)}, s{sT0} offen {SC}
s_mov_b64 exec, -1""")
    a(f"""v_and_b32 v20, 31, v0
v_lshrrev_b32 v21, 5, v0
v_bfe_u32 v22, v0, 1, 3
v_xor_b32 v22, v22, v21
v_lshlrev_b32 v22, 4, v22
v_lshl_add_u32 v22, v20, 7, v22
s_and_b32 s{sT0}, s{sWv}, 1
s_lshl_b32 s{sT0}, s{sT0}, 12
v_add_u32 v{vXA}, s{sT0}, v22""")
    for ks in range(1, 4): a(f"v_xor_b32 v{vXA+ks}, {32*ks}, v{vXA}")
    a(f"""v_bfe_u32 v22, v0, 2, 2
v_lshl_add_u32 v23, v21, 3, v22
v_lshlrev_b32 v23, 7, v23
v_and_b32 v24, 1, v0
v_lshl_add_u32 v23, v24, 3, v23
v_bfe_u32 v24, v0, 1, 1
v_bfe_u32 v25, v0, 3, 1
v_bfe_u32 v26, v0, 4, 1
s_lshr_b32 s{sT0}, s{sWv}, 1
s_lshl_b32 s{sT0}, s{sT0}, 2
v_lshl_add_u32 v27, v26, 1, v24
v_add_u32 v27, s{sT0}, v27
v_lshlrev_b32 v28, 2, v25
v_xor_b32 v27, v27, v28
v_lshl_add_u32 v{vWA}, v27, 4, v23
v_add_u32 v{vWA+1}, 0x10000, v{vWA}""")
    a(f"""v_lshrrev_b32 v26, 4, v0
v_lshl_add_u32 v27, v26, 4, v22
v_lshlrev_b32 v27, 7, v27
v_and_b32 v28, 1, v0
v_lshl_add_u32 v27, v28, 3, v27
s_lshl_b32 s{sT0}, s{sWv}, 1
v_add_u32 v28, s{sT0}, v24
v_xor_b32 v28, v28, v25
v_lshl_add_u32 v{vUT}, v28, 4, v27
v_lshlrev_b32 v27, 14, v22
v_lshl_add_u32 v27, v26, 6, v27
v_and_b32 v28, 3, v0
v_lshl_add_u32 v{vUS}, v28, 4, v27
v_lshlrev_b32 v{vGO}, 2, v0
s_lshl_b32 s{sT0}, s{sHG}, 18
s_lshl_b32 s{sT1}, s{sWv}, 16
s_add_u32 s{sT0}, s{sT0}, s{sT1}
s_lshl_b32 s{sT1}, s{sRB}, 8
s_add_u32 s52, s{sT0}, s{sT1}
s_add_u32 s52, s52, {UT2}
s_add_u32 s53, s52, 8192
s_lshl_b32 s{sT0}, s{sHG}, 13
s_add_u32 s{sT0}, s{sT0}, s{sT1}
s_and_b32 s{sT1}, s{sWv}, 1
s_lshl_b32 s{sT1}, s{sT1}, 7
s_add_u32 s{sT0}, s{sT0}, s{sT1}
s_add_u32 s54, s{sT0}, {GP}
v_lshlrev_b32 v27, 8, v26
v_lshl_add_u32 v27, v0, 2, v27
v_add_u32 v{vFLR}, {FLB}, v27""")
    def wreads(u, b):
        s = SLOT[u]
        ad, off = (vWA, 8192*s) if s < 8 else (vWA+1, 8192*(s-8))
        for ks in range(4):
            for t in range(2):
                a(f"ds_read_b64_tr_b16 {vr(WF[b]+4*ks+2*t,2)}, v{ad} offset:{off+2048*ks+512*t}")
    def reads_k(i):
        s = SLOT[2*i]
        if i == 4:
            for ks in range(4): a(f"v_add_u32 v{vXA+ks}, 0x10000, v{vXA+ks}")
        if i == 7:
            for ks in range(4): a(f"v_add_u32 v{vXA+ks}, 0xffff0000, v{vXA+ks}")
        for ks in range(4):
            a(f"ds_read_b128 {vr(XQ+16*i+4*ks,4)}, v{vXA+ks} offset:{8192*(s&7)}")
        wreads(2*i+1, i & 1)
    def mf(acc, i, b, ks, swap=False):
        c = "0" if (i == 0 and ks == 0) else vr(acc,16)
        x, w = vr(XQ+16*i+4*ks,4), vr(WF[b]+4*ks,4)
        return f"v_mfma_f32_32x32x16_bf16 {vr(acc,16)}, {x if swap else w}, {w if swap else x}, {c}"
    a.vmwait("u1")
    stamp(a, 3)
    a(f"""v_readfirstlane_b32 s{sN}, v1
v_mov_b32 v20, {NW}
s_mul_i32 s{sN}, s{sN}, {LCG_A:#x}
s_add_u32 s{sN}, s{sN}, {LCG_C:#x}
v_mov_b32 v21, s{sN}
ds_write_b32 v20, v21""")
    sy.signal(1); sy.poll(vFLR); sy.check(1, vFLR)
    UX, UO = 100, 108
    for i in range(8):
        if i == 0:
            for Y in range(2):
                for tt in range(2):
                    sw = 4*Y+2*tt
                    if sw == 0: ad = vUT
                    else:
                        a(f"v_xor_b32 v76, {16*sw}, v{vUT}"); ad = 76
                    a(f"ds_read_b64_tr_b16 {vr(UX+4*Y+2*tt,2)}, v{ad} offset:{(8*Y+4*tt)*128}")
        reads_k(i)
        if i >= 1: dma_pair(2*D0+2*(i-1))
        if i < 7:
            a.vmwait(f"u{2*i+3}")
            sy.signal(i+2); sy.poll(vFLR)
        if i > 0:
            for ks in range(4): a(mf(ACCK, i-1, (i-1) & 1, ks))
        if i == 5:
            a(f"""v_lshrrev_b32 v76, 5, v0
v_bfe_u32 v77, v0, 2, 2
v_lshl_add_u32 v76, v76, 2, v77
v_lshlrev_b32 v76, 5, v76
v_bfe_u32 v77, v0, 4, 1
v_lshl_add_u32 v76, v77, 4, v76
v_bfe_u32 v77, v0, 1, 1
v_lshl_add_u32 v76, v77, 3, v76
s_and_b32 s{sT0}, s{sWv}, 2
s_lshl_b32 s{sT0}, s{sT0}, 9
s_add_u32 s{sT0}, s{sT0}, {PHI}
v_add_u32 v76, s{sT0}, v76""")
            for q in range(4): a(f"ds_read_b64_tr_b16 {vr(WP+2*q,2)}, v76 offset:{256*q}")
        if i < 7:
            sy.check(i+2, vFLR)
            if i in (0, 2, 4, 6): stamp(a, 4+i//2)
        if i == 0:
            a(f"s_mov_b32 vcc_lo, 0x33333333\ns_mov_b32 vcc_hi, 0x33333333")
            for j in range(4):
                a(f"v_cndmask_b32_dpp v{UO+j}, v{UX+4+j}, v{UX+j}, vcc quad_perm:[2,3,0,1] row_mask:0xf bank_mask:0xf")
            a("s_not_b64 vcc, vcc")
            for j in range(4):
                a(f"v_cndmask_b32_dpp v{UO+4+j}, v{UX+j}, v{UX+4+j}, vcc quad_perm:[2,3,0,1] row_mask:0xf bank_mask:0xf")
            a(f"buffer_store_dwordx4 {vr(UO,4)}, v{vUS}, {sr(SWS,4)}, s52 offen {SC}")
            a(f"buffer_store_dwordx4 {vr(UO+4,4)}, v{vUS}, {sr(SWS,4)}, s53 offen {SC}")
            a(f"v_mov_b32 v76, 0")
            for ks in range(4):
                for j in range(4):
                    a(f"v_dot2c_f32_bf16 v76, v{XQ+4*ks+j}, v{GW+4*ks+j}")
            a(f"""v_mov_b32 v77, v76
v_permlane32_swap_b32 v76, v77
v_add_f32 v76, v76, v77
v_mov_b32_dpp v77, v76 quad_perm:[1,1,1,1] row_mask:0xf bank_mask:0xf
v_mov_b32_dpp v78, v76 quad_perm:[2,2,2,2] row_mask:0xf bank_mask:0xf
v_mov_b32_dpp v79, v76 quad_perm:[3,3,3,3] row_mask:0xf bank_mask:0xf
s_mov_b64 exec, 0x11111111
buffer_store_dwordx4 v[76:79], v{vGO}, {sr(SWS,4)}, s54 offen {SC}
s_mov_b64 exec, -1""")
        if i == 6:
            LR = a.label('BR')
            a(f"""s_cmp_lg_u32 s{sWv}, 3
s_cbranch_scc1 {LR}
s_lshl_b32 s{sT0}, s{sCP}, 7
s_add_u32 s{sT0}, s{sT0}, {RDY}
v_mov_b32 v76, s{sN}
v_mov_b32 v77, 0
s_mov_b64 exec, 1""")
            a.grp = 'w3'
            a(f"buffer_store_dword v76, v77, {sr(SWS,4)}, s{sT0} offen {SC}")
            a.grp = None
            a(f"s_mov_b64 exec, -1\n{LR}:")
    vZW, vEW = 14, 15
    a(f"""v_bfe_u32 v76, v0, 2, 1
v_lshrrev_b32 v77, 5, v0
v_cmp_eq_u32 vcc, v76, v77
v_and_b32 v78, 1, v0
v_lshlrev_b32 v78, 4, v78
v_mov_b32 v79, 0x3f80
v_lshlrev_b32 v79, v78, v79
v_cndmask_b32 v79, 0, v79, vcc
v_bfe_u32 v78, v0, 3, 2
v_bfe_u32 v80, v0, 1, 1
v_lshl_add_u32 v80, v78, 1, v80""")
    for j in range(8):
        a(f"v_cmp_eq_u32 vcc, {j}, v80")
        a(f"v_cndmask_b32 v{(B1+j) if j < 4 else (B2+j-4)}, 0, v79, vcc")
    a(f"""v_lshlrev_b32 v80, 31, v76
v_lshrrev_b32 v81, 16, v80
v_or_b32 v80, v80, v81""")
    for j in range(8): a(f"v_xor_b32 v{WP+j}, v80, v{WP+j}")
    a(f"""v_lshlrev_b32 v76, 6, v76
v_lshl_add_u32 v76, v78, 4, v76
v_and_b32 v79, 3, v0
v_lshl_add_u32 v76, v79, 2, v76
v_lshl_add_u32 v76, v77, 7, v76
s_and_b32 s{sT0}, s{sWv}, 2
s_lshl_b32 s{sT0}, s{sT0}, 9
s_and_b32 s{sT1}, s{sWv}, 1
s_lshl_b32 s{sT1}, s{sT1}, 8
s_add_u32 s{sT0}, s{sT0}, s{sT1}
s_add_u32 s{sT0}, s{sT0}, {ZEX}
v_add_u32 v{vZW}, s{sT0}, v76
v_and_b32 v76, 7, v0
v_lshlrev_b32 v77, 2, v77
v_xor_b32 v76, v76, v77
v_lshlrev_b32 v76, 4, v76
v_and_b32 v77, 31, v0
v_lshl_add_u32 v76, v77, 7, v76
s_lshl_b32 s{sT0}, s{sWv}, 12
s_add_u32 s{sT0}, s{sT0}, {EXB}
v_add_u32 v{vEW}, s{sT0}, v76
s_waitcnt lgkmcnt(0)""")
    for ks in range(4): a(mf(ACCK, 7, 1, ks))
    stamp(a, 8)
    f = Asm()
    KB, PK = ACCK, [ACCK+8, ACCK]
    for j in range(8): f(f"v_cvt_pk_bf16_f32 v{KB+j}, v{ACCK+2*j}, v{ACCK+2*j+1}")
    for h in range(2): f(f"v_mfma_f32_32x32x16_bf16 {vr(P[h],16)}, {vr(WP+4*h,4)}, {vr(KB+4*h,4)}, 0")
    for h in range(2):
        softmax16(f, P[h], PK[h], T, sL, pk=False)
        f(f"v_mfma_f32_32x32x16_bf16 {vr(P[h],16)}, {vr(PK[h],4)}, {vr(B1,4)}, 0")
        f(f"v_mfma_f32_32x32x16_bf16 {vr(P[h],16)}, {vr(PK[h]+4,4)}, {vr(B2,4)}, {vr(P[h],16)}")
    for h in range(2):
        sum16(f, P[h], T, False)
        f(f"ds_write_b32 v{vZW}, v{T} offset:{512*h}")
        for j in range(8): f(f"v_cvt_pk_bf16_f32 v{P[h]+j}, v{P[h]+2*j}, v{P[h]+2*j+1}")
    for j in range(16): f(f"v_mov_b32 v{ACCK+j}, 0")
    bg = []
    def sig(j, wait):
        def g():
            a("s_waitcnt lgkmcnt(0)")
            if wait: a.vmwait(wait)
            sy.signal(j); sy.poll(vFLR)
        return g
    bg.append((0, sig(9, "u17")))
    def first():
        sy.check(9, vFLR); wreads(16, 0); wreads(17, 1); dma_pair(22)
    bg.append((22, first))
    G = 6
    for st in range(4):
        ua = 16+2*st
        if st < 3: bg.append((30 if st == 0 else 12, sig(10+st, f"u{ua+3}")))
        else: bg.append((12, lambda: a("s_waitcnt lgkmcnt(0)")))
        for ks in range(4): bg.append((G if ks else 0, lambda ks=ks, ua=ua: a(mf(ACCV, ua-16, 0, ks, True))))
        if st < 3:
            bg.append((G, lambda st=st, ua=ua: (sy.check(10+st, vFLR), wreads(ua+2, 0))))
        for ks in range(4): bg.append((G if (ks or st == 3) else 0, lambda ks=ks, ua=ua: a(mf(ACCV, ua-15, 1, ks, True))))
        if st < 3: bg.append((0, lambda ua=ua: wreads(ua+3, 1)))
    weave(a, f.L, bg)
    stamp(a, 9)
    VB, KV = [ACCK, ACCK+8], WF[0]
    for h in range(2):
        m = "0x0000ffff" if h == 0 else "0xffff0000"
        a(f"s_mov_b32 exec_lo, {m}\ns_mov_b32 exec_hi, {m}")
        for j in range(8): a(f"v_cvt_pk_bf16_f32 v{VB[h]+j}, v{ACCV+2*j}, v{ACCV+2*j+1}")
    a("s_mov_b64 exec, -1")
    for h in range(2):
        for q in range(2):
            c = "0" if (h == 0 and q == 0) else vr(KV,16)
            a(f"v_mfma_f32_32x32x16_bf16 {vr(KV,16)}, {vr(P[h]+4*q,4)}, {vr(VB[h]+4*q,4)}, {c}")
    vER, vZR, vKO = 36, 37, 38
    a(f"""v_lshrrev_b32 v40, 3, v0
v_and_b32 v41, 7, v0
v_xor_b32 v42, v40, v41
v_lshlrev_b32 v42, 4, v42
v_lshl_add_u32 v42, v40, 7, v42
s_and_b32 s{sT0}, s{sWv}, 2
s_lshl_b32 s{sT0}, s{sT0}, 12
s_and_b32 s{sT1}, s{sWv}, 1
s_lshl_b32 s{sT1}, s{sT1}, 11
s_add_u32 s{sT0}, s{sT0}, s{sT1}
s_add_u32 s{sT0}, s{sT0}, {EXB}
v_add_u32 v{vER}, s{sT0}, v42
s_lshl_b32 s{sT0}, s{sWv}, 9
s_add_u32 s{sT0}, s{sT0}, {ZEX}
v_lshlrev_b32 v41, 4, v41
v_add_u32 v{vZR}, s{sT0}, v41
v_lshrrev_b32 v40, 4, v0
v_and_b32 v41, 15, v0
v_lshlrev_b32 v41, 4, v41
v_lshl_add_u32 v{vKO}, v40, 13, v41
v_xor_b32 v40, 16, v{vEW}
v_xor_b32 v41, 32, v{vEW}
v_xor_b32 v42, 48, v{vEW}""")
    for q in range(4):
        a(f"ds_write_b128 v{vEW if q == 0 else 39+q}, {vr(KV+4*q,4)}")
    sy.signal(13); sy.poll(vFLR); sy.check(13, vFLR)
    E = ACCV
    for u in range(2):
        for s in range(2):
            a(f"ds_read_b128 {vr(E+8*u+4*s,4)}, v{vER} offset:{4096*s+1024*u}")
    Z = P[0]
    for p in range(4): a(f"ds_read_b128 {vr(Z+4*p,4)}, v{vZR} offset:{128*p}")
    for u in range(2):
        a(f"s_waitcnt lgkmcnt({6-2*u})")
        for j in range(2): a(f"v_pk_add_f32 {vr(E+8*u+2*j,2)}, {vr(E+8*u+2*j,2)}, {vr(E+8*u+4+2*j,2)}")
        a(f"buffer_store_dwordx4 {vr(E+8*u,4)}, v{vKO}, {sr(SWS,4)}, s{sKVP if u == 0 else 39} offen {SC}")
    a("s_waitcnt lgkmcnt(0)")
    for j in range(2):
        a(f"v_pk_add_f32 {vr(Z+2*j,2)}, {vr(Z+2*j,2)}, {vr(Z+4+2*j,2)}")
        a(f"v_pk_add_f32 {vr(Z+8+2*j,2)}, {vr(Z+8+2*j,2)}, {vr(Z+12+2*j,2)}")
    for j in range(2): a(f"v_pk_add_f32 {vr(Z+2*j,2)}, {vr(Z+2*j,2)}, {vr(Z+8+2*j,2)}")
    a(f"s_mov_b64 exec, 0xff\nbuffer_store_dwordx4 {vr(Z,4)}, v{vLIN}, {sr(SWS,4)}, s{sZP} offen {SC}\ns_mov_b64 exec, -1")
    stamp(a, 10)
    vWO, vFA, vFL = 16, 14, 1
    sWB = 55
    def g23(fn):
        L = a.label('BG')
        a(f"s_cmp_lt_u32 s{sWv}, 2\ns_cbranch_scc1 {L}")
        a.grp = 'g23'; fn(); a.grp = None
        a(f"{L}:")
    def g01(fn):
        L = a.label('BG')
        a(f"s_cmp_ge_u32 s{sWv}, 2\ns_cbranch_scc1 {L}")
        a.grp = 'g01'; fn(); a.grp = None
        a(f"{L}:")
    def dma_wo(j):
        for t in range(4):
            a(f"s_add_u32 m0, s{sM}, {8192*WOSLOT[j]+1024*t}\ns_add_u32 s{sT1}, s{sWB}, {32768*j+4096*t}")
            a(f"buffer_load_dwordx4 v{vWO}, {sr(SWO,4)}, s{sT1} offen lds")
        a.tag(f"wo{j}")
    def wo_setup():
        a(f"""v_lshrrev_b32 v40, 4, v0
v_lshlrev_b32 v41, 2, v40
v_and_b32 v42, 15, v0
v_xor_b32 v41, v41, v42
v_lshlrev_b32 v41, 4, v41
v_lshl_add_u32 v{vWO}, v40, 10, v41
s_and_b32 s{sT0}, s{sWv}, 1
s_lshl_b32 s{sM}, s{sT0}, 12
s_lshl_b32 s{sWB}, s{sT0}, 14
s_lshr_b32 s{sT0}, s{sHG}, 1
s_lshl_b32 s{sT0}, s{sT0}, 8
s_add_u32 s{sWB}, s{sWB}, s{sT0}""")
        for j in range(4): dma_wo(j)
    g23(wo_setup)
    FLOAD = f"buffer_load_dword v{vFL}, v{vFA}, {sr(SWS,4)}, s56 offen {SC}"
    def fl_setup():
        a(f"""v_and_b32 v40, 7, v0
v_lshlrev_b32 v40, 5, v40
v_add_u32 v40, s{sRB}, v40
s_lshl_b32 s{sT0}, s{sHG}, 5
v_add_u32 v41, s{sT0}, v0
s_mov_b64 vcc, 0xffffffff
v_cndmask_b32 v40, v40, v41, vcc
v_lshlrev_b32 v{vFA}, 7, v40
s_mov_b32 s56, {RDY}""")
        a(FLOAD)
    g01(fl_setup)
    sy.poll(vFLR, 1024); sy.check(3, vFLR, 1024)
    stamp(a, 11)
    wreads(24, 0); wreads(25, 1)
    WOREL = {0: (4,5), 1: (6,7), 2: (8,9), 3: (10,11,12,13)}
    for st in range(4):
        ua = 24+2*st
        a("s_waitcnt lgkmcnt(0)")
        if st == 3: g23(lambda: a.vmwait("wo1"))
        sy.signal(14+st); sy.poll(vFLR)
        for ks in range(4): a(mf(ACCK, ua-24, 0, ks))
        sy.check(14+st, vFLR)
        if st < 3: wreads(ua+2, 0)
        for ks in range(4): a(mf(ACCK, ua-23, 1, ks))
        if st < 3: wreads(ua+3, 1)
        g23(lambda: [dma_wo(j) for j in WOREL[st]])
    vOA = vWA
    a(f"""v_lshrrev_b32 v40, 5, v0
v_bfe_u32 v41, v0, 2, 2
v_lshl_add_u32 v40, v40, 2, v41
v_lshlrev_b32 v40, 8, v40
v_bfe_u32 v42, v0, 1, 1
v_lshl_add_u32 v40, v42, 3, v40
v_and_b32 v42, 1, v0
v_bfe_u32 v43, v0, 4, 1
v_lshl_add_u32 v42, v42, 1, v43
s_lshl_b32 s{sT0}, s{sWv}, 2
v_add_u32 v42, s{sT0}, v42
v_lshlrev_b32 v41, 2, v41
v_xor_b32 v42, v42, v41
v_lshl_add_u32 v{vOA}, v42, 4, v40
v_add_u32 v{vOA+1}, 0x10000, v{vOA}""")
    def woreads(j):
        s = WOSLOT[j]
        ad, off = (vOA, 8192*s) if s < 8 else (vOA+1, 8192*(s-8))
        for hh in range(2):
            for t in range(2):
                a(f"ds_read_b64_tr_b16 {vr(XQ+8*j+4*hh+2*t,2)}, v{ad} offset:{off+4096*hh+2048*t}")
    woreads(0); woreads(1)
    QB, PHQ = WF[0], ACCV
    for j in range(8): a(f"v_cvt_pk_bf16_f32 v{QB+j}, v{ACCK+2*j}, v{ACCK+2*j+1}")
    a("s_waitcnt lgkmcnt(0)")
    sy.signal(18)
    stamp(a, 12)
    R = P[0]; GPR = 36; vG = 124
    def qpost():
        for h in range(2):
            a(f"v_mfma_f32_32x32x16_bf16 {vr(P[h],16)}, {vr(WP+4*h,4)}, {vr(QB+4*h,4)}, 0")
        for h in range(2): softmax16(a, P[h], PHQ+8*h, T, sL)
    def path01():
        fpoll(a, 'B', FLOAD, vFL, sN, 57, first_issued=True)
        a(f"""v_lshrrev_b32 v40, 5, v0
v_and_b32 v41, 31, v0
v_lshlrev_b32 v41, 2, v41
v_lshl_add_u32 v40, v40, 15, v41
s_lshl_b32 s{sT0}, s{sRB}, 8
s_lshl_b32 s{sT1}, s{sWv}, 7
s_add_u32 s{sT0}, s{sT0}, s{sT1}
s_add_u32 s{sT0}, s{sT0}, {GP}""")
        for u in range(4):
            a(f"buffer_load_dword v{GPR+u}, v40, {sr(SWS,4)}, s{sT0} offen {SC}")
            if u < 3: a(f"s_add_u32 s{sT0}, s{sT0}, 8192")
        LZ, LD = a.label('BZ'), a.label('BD')
        a(f"s_cmp_lg_u32 s{sPC}, 0\ns_cbranch_scc1 {LZ}")
        a(f"s_lshl_b32 s58, s{sCP}, 13\ns_add_u32 s58, s58, {KVP}\ns_add_u32 s59, s58, 4096")
        gpoll(a, 'B', [f"buffer_load_dwordx4 {vr(R+4*t,4)}, v{vLIN}, {sr(SWS,4)}, s{58+(t>>2)} offen offset:{1024*(t&3)} {SC}" for t in range(8)],
              [R+4*t for t in range(8)], 40, 57)
        for t in range(4):
            for j in range(2): a(f"v_pk_add_f32 {vr(R+8*t+2*j,2)}, {vr(R+8*t+2*j,2)}, {vr(R+8*t+4+2*j,2)}")
        for t in (0, 16):
            for j in range(2): a(f"v_pk_add_f32 {vr(R+t+2*j,2)}, {vr(R+t+2*j,2)}, {vr(R+t+8+2*j,2)}")
        for j in range(2): a(f"v_pk_add_f32 {vr(R+2*j,2)}, {vr(R+2*j,2)}, {vr(R+16+2*j,2)}")
        def xred(ror):
            a(f"""v_permlane32_swap_b32 v{R}, v{R+2}
v_permlane32_swap_b32 v{R+1}, v{R+3}
v_add_f32 v{R}, v{R}, v{R+2}
v_add_f32 v{R+1}, v{R+1}, v{R+3}
v_mov_b32 v{R+2}, v{R}
v_mov_b32 v{R+3}, v{R+1}
v_permlane16_swap_b32 v{R}, v{R+2}
v_permlane16_swap_b32 v{R+1}, v{R+3}
v_add_f32 v{R}, v{R}, v{R+2}
v_add_f32 v{R+1}, v{R+1}, v{R+3}""")
            if ror:
                a(f"v_add_f32_dpp v{R}, v{R}, v{R} row_ror:8 row_mask:0xf bank_mask:0xf")
                a(f"v_add_f32_dpp v{R+1}, v{R+1}, v{R+1} row_ror:8 row_mask:0xf bank_mask:0xf")
            a(f"""v_cvt_pk_bf16_f32 v{R}, v{R}, v{R+1}
v_mov_b32 v{R+1}, v{R}
v_lshlrev_b32 v{R+4}, 3, v0
v_permlane32_swap_b32 v{R}, v{R+1}
v_mov_b32_dpp v{R+2}, v{R} quad_perm:[1,1,3,3] row_mask:0xf bank_mask:0xf
v_mov_b32_dpp v{R+3}, v{R+1} quad_perm:[1,1,3,3] row_mask:0xf bank_mask:0xf
s_mov_b64 exec, {'0x55' if ror else '0x5555'}
buffer_store_dwordx4 {vr(R,4)}, v{R+4}, {sr(SWS,4)}, s{sKF} offen {SC}
s_mov_b64 exec, -1""")
        xred(False)
        a(f"s_branch {LD}\n{LZ}:\ns_cmp_lg_u32 s{sPC}, 1\ns_cbranch_scc1 {LD}")
        a(f"s_lshr_b32 s58, s{sCP}, 3\ns_lshl_b32 s58, s58, 12\ns_add_u32 s58, s58, {ZP}")
        gpoll(a, 'B', [f"buffer_load_dwordx4 {vr(R+4*t,4)}, v{vLIN}, {sr(SWS,4)}, s58 offen offset:{1024*t} {SC}" for t in range(4)],
              [R+4*t for t in range(4)], 40, 57)
        for t in range(2):
            for j in range(2): a(f"v_pk_add_f32 {vr(R+8*t+2*j,2)}, {vr(R+8*t+2*j,2)}, {vr(R+8*t+4+2*j,2)}")
        for j in range(2): a(f"v_pk_add_f32 {vr(R+2*j,2)}, {vr(R+2*j,2)}, {vr(R+8+2*j,2)}")
        xred(True)
        a(f"{LD}:")
        stamp(a, 13)
    g01(path01)
    qpost()
    vGL = 125
    a(f"""v_and_b32 v{vGL}, 31, v0
v_lshlrev_b32 v{vGL}, 2, v{vGL}
s_and_b32 s{sT0}, s{sWv}, 1
s_lshl_b32 s{sT0}, s{sT0}, 7
s_add_u32 s{sT0}, s{sT0}, {GL}
v_add_u32 v{vGL}, s{sT0}, v{vGL}""")
    def gate01():
        x = GPR
        LG = a.label('BW')
        a(f"""s_waitcnt vmcnt(1)
s_cmp_lg_u32 s{sPC}, 2
s_cbranch_scc1 {LG}
s_waitcnt vmcnt(0)
{LG}:
v_add_f32 v{x}, v{x}, v{x+1}
v_add_f32 v{x+2}, v{x+2}, v{x+3}
v_add_f32 v{x}, v{x}, v{x+2}
v_mov_b32 v{x+1}, v{x}
v_permlane32_swap_b32 v{x}, v{x+1}
v_add_f32 v{x}, v{x}, v{x+1}
v_mul_f32 v{x}, s{sL}, v{x}
v_exp_f32 v{x}, v{x}
v_add_f32 v{x}, 1.0, v{x}
v_rcp_f32 v{vG}, v{x}
ds_write_b32 v{vGL}, v{vG}""")
        sy.signal(19)
    g01(gate01)
    def wo23():
        sy.poll(vFLR); sy.check(18, vFLR)
        dma_wo(14); dma_wo(15)
        a("s_waitcnt vmcnt(0)")
        sy.signal(19)
        sy.poll(vFLR); sy.check(19, vFLR, rows=3)
        a(f"ds_read_b32 v{vG}, v{vGL}")
    g23(wo23)
    KF = WF[0]
    a(f"""v_and_b32 v40, 31, v0
v_min_u32 v40, 16, v40
v_lshrrev_b32 v41, 5, v0
v_lshlrev_b32 v41, 5, v41
v_lshl_add_u32 v40, v40, 6, v41
s_lshl_b32 s58, s{sHG}, 13
s_and_b32 s{sT0}, s{sWv}, 2
s_lshl_b32 s{sT0}, s{sT0}, 11
s_add_u32 s58, s58, s{sT0}
s_add_u32 s58, s58, {KVF}
s_mov_b32 s59, {f2u(1e-6):#x}""")
    gpoll(a, 'B', [f"buffer_load_dwordx4 {vr(KF+4*t,4)}, v40, {sr(SWS,4)}, s58 offen offset:{2048*(t>>1)+16*(t&1)} {SC}" for t in range(4)],
          [KF+4*t for t in range(4)], 41, 57)
    stamp(a, 14)
    for h in range(2):
        a(f"v_mfma_f32_32x32x16_bf16 {vr(P[h],16)}, {vr(KF+8*h,4)}, {vr(PHQ+8*h,4)}, 0")
        a(f"v_mfma_f32_32x32x16_bf16 {vr(P[h],16)}, {vr(KF+8*h+4,4)}, {vr(PHQ+8*h+4,4)}, {vr(P[h],16)}")
    a("s_waitcnt lgkmcnt(0)")
    for h in range(2):
        d = P[h]+8
        a(f"v_add_f32 v{d}, s59, v{d}\nv_rcp_f32 v{d}, v{d}\nv_mul_f32 v{d}, v{d}, v{vG}")
        for j in range(4): a(f"v_pk_mul_f32 {vr(P[h]+2*j,2)}, {vr(P[h]+2*j,2)}, {vr(d,2)} op_sel_hi:[1,0]")
        for j in range(4): a(f"v_cvt_pk_bf16_f32 v{P[h]+j}, v{P[h]+2*j}, v{P[h]+2*j+1}")
        a(f"buffer_store_dwordx4 {vr(P[h],4)}, v{vLIN}, {sr(SWS,4)}, s{sOP} offen offset:{1024*h} {SC}")
    sy.poll(vFLR); sy.check(19, vFLR, rows=0xC)
    for j in range(2, 16): woreads(j)
    vOUT, vOBW = 14, 15
    a(f"""s_lshl_b32 s58, s{sRB}, 16
s_and_b32 s{sT0}, s{sHG}, 1
s_lshl_b32 s{sT0}, s{sT0}, 15
s_add_u32 s58, s58, s{sT0}
s_lshr_b32 s{sT1}, s{sHG}, 1
s_lshl_b32 s{sT1}, s{sT1}, 8
s_add_u32 s60, s58, s{sT1}
s_lshl_b32 s{sT1}, s{sWv}, 6
s_add_u32 s60, s60, s{sT1}
s_lshl_b32 s{sT1}, s{sWv}, 13
s_add_u32 s58, s58, s{sT1}
s_add_u32 s58, s58, {OO}
s_add_u32 s59, s58, 4096
s_add_u32 s{sT1}, s{sT1}, {OB}
v_add_u32 v{vOBW}, s{sT1}, v{vLIN}
v_and_b32 v40, 31, v0
v_lshrrev_b32 v41, 5, v0
v_lshlrev_b32 v41, 5, v41
v_lshl_add_u32 v{vOUT}, v40, 10, v41
s_lshl_b32 s{sT1}, s{sWv}, 12
s_add_u32 s{sT1}, s{sT1}, {ABASE}
v_add_u32 v16, s{sT1}, v{vLIN}
s_waitcnt lgkmcnt(0)""")
    sy.signal(20); sy.poll(vFLR)
    OR = P[0]
    gpoll(a, 'B', [f"buffer_load_dwordx4 {vr(OR+4*t,4)}, v{vLIN}, {sr(SWS,4)}, s{58+(t>>2)} offen offset:{1024*(t&3)} {SC}" for t in range(8)],
          [OR+4*t for t in range(8)], 40, 57)
    sy.check(20, vFLR)
    for t in range(8): a(f"ds_write_b128 v{vOBW}, {vr(OR+4*t,4)} offset:{1024*t}")
    a("s_waitcnt lgkmcnt(0)")
    stamp(a, 15)
    a("s_barrier")
    for q in range(4): a(f"ds_read_b128 {vr(ACCK+4*q,4)}, v16 offset:{1024*q}")
    NB, PF = 8, 6
    def brd(k): a(f"ds_read_b128 {vr(20+4*(k%NB),4)}, v{vLIN} offset:{OB+1024*k}")
    for k in range(PF): brd(k)
    for k in range(32):
        if k+PF < 32: brd(k+PF)
        a(f"s_waitcnt lgkmcnt({min(PF, 31-k)})")
        a(f"v_mfma_f32_32x32x16_bf16 {vr(ACCK,16)}, {vr(XQ+4*k,4)}, {vr(20+4*(k%NB),4)}, {vr(ACCK,16)}")
    for j in range(8): a(f"v_cvt_pk_bf16_f32 v{ACCV+j}, v{ACCK+2*j}, v{ACCK+2*j+1}")
    for q in range(2):
        a(f"buffer_store_dwordx4 {vr(ACCV+4*q,4)}, v{vOUT}, {sr(SOUT,4)}, s60 offen offset:{16*q}")
    LE = a.label('BE')
    a(f"""s_or_b32 s{sT0}, s2, s{sWv}
s_cmp_lg_u32 s{sT0}, 0
s_cbranch_scc1 {LE}
s_mov_b32 s{sT0}, {GEN}
v_mov_b32 v40, s{sN}
v_mov_b32 v41, 0
s_mov_b64 exec, 1
buffer_store_dword v40, v41, {sr(SWS,4)}, s{sT0} offen {SC}
s_mov_b64 exec, -1
{LE}:""")
    if STAMPS:
        a("s_waitcnt vmcnt(0)")
        stamp(a, 2)
        dump_stamps(a, 16, KD, sWv)
```

```python
UT2 = 0x000000
OO  = 0x200000
KVP = 0x600000
ZP  = 0x800000
GP  = 0x820000
KVF = 0x830000
AP  = 0x840000
KD  = 0xA40000
RDY = 0xB00000
APF = 0xB10000
GEN = 0xB20000
WS_BYTES = 0x10000000
LOG2E = 0x3fb8aa3b
PHI = 114688
FLB = 116736
FLA = FLB+1024
ZEX = 118784
NW  = 120832
GL  = NW+64
ABASE = 121344
LDS_TOTAL = 163840
```

```python
import sys
sys.path.insert(0,'work'); sys.path.insert(0,'gen')
from asmlib import *
from lay2 import *
from gen_common import wrap, KN
import km_b, km_a
def common(a):
    a(f"""s_and_b32 s27, s2, 7
s_lshr_b32 s28, s2, 3
s_lshr_b32 s24, s27, 1
s_lshl_b32 s24, s24, 3
s_lshr_b32 s25, s28, 2
s_add_u32 s24, s24, s25
s_and_b32 s25, s27, 1
s_lshl_b32 s25, s25, 2
s_and_b32 s28, s28, 3
s_add_u32 s25, s25, s28
s_lshl_b32 s50, s25, 5
s_add_u32 s50, s50, s24
s_lshl_b32 s27, s26, 8
s_add_u32 s27, s27, {FLB}
v_lshlrev_b32 v8, 2, v0
v_add_u32 v8, s27, v8
v_mov_b32 v9, 0
ds_write_b32 v8, v9""")
def build():
    p = Asm()
    p("s_cmp_ge_u32 s2, 256\ns_cbranch_scc1 K_END")
    stamp(p, 0)
    p("""v_lshrrev_b32 v1, 6, v0
v_and_b32 v0, 63, v0
v_readfirstlane_b32 s26, v1
s_cmp_ge_u32 s26, 4
s_cbranch_scc1 K_A""")
    b = Asm(); km_b.gen_b(b, common)
    a = Asm(); km_a.gen_a(a, common)
    allc = Asm()
    allc.L = p.L + b.L + ["s_endpgm", "K_A:"] + a.L + ["K_END:", "s_endpgm"]
    return dict(name=KN, grid=256, block=512, lds=LDS_TOTAL, body=allc.text(True))
open(sys.argv[1],'w').write(wrap([build()]))
```

```python
from asmlib import *
from lay3 import *
from km_b import srd, Sync, SPIN_G, f2u, LCG_A, LCG_C
from km_b3 import OPT, P_, SC, kvp_addr, spoll
from ka import cmul, exp_acc, lds_map, PAIR
import struct, math

def gen_a(a, common):
    M = lds_map(ABASE)
    assert M['END'] == LDS_TOTAL
    SWS = 12
    sRB, sHP, sWv, sT0, sT1, sF, sMH, sSTG, sCH, sPB = 24, 25, 26, 27, 28, 29, 30, 31, 33, 34
    sL, sLlo, sLn2 = 36, 37, 38
    sN, sSP, sCP, sC = 48, 49, 50, 51
    vFLW, vFLR, vJ, vP, vLIN, vFA, FLV = 56, 57, 58, 59, 60, 61, 88
    AB, AR = 512, 1024
    sy = Sync(a, vFLW, vJ, vP, sSP, 'A')
    def sigA(k): a(f"v_mov_b32 v{vJ}, {k}\nds_write_b32 v{vFLW}, v{vJ} offset:512")
    def sigAB(k): sy.signal(k)
    def bar(k):
        sigA(k); sy.poll(vFLR, AR); sy.check(k, vFLR, AR)
    a("""s_load_dwordx4 s[4:7], s[0:1], 8
s_load_dwordx4 s[8:11], s[0:1], 24
s_load_dwordx4 s[16:19], s[0:1], 40
s_load_dwordx2 s[12:13], s[0:1], 112""")
    common(a)
    a(f"v_mov_b32 v{vFLW}, v8\ns_sub_u32 s{sWv}, s{sWv}, 4")
    srd(a, SWS, WS_BYTES)
    L = 1.4426950408889634
    Lhi = struct.unpack('<f', struct.pack('<f', L))[0]
    a(f"""s_lshl_b32 s{sT0}, s{sCP}, 9
s_lshl_b32 s{sT1}, s{sWv}, 7
s_add_u32 s{sT0}, s{sT0}, s{sT1}
v_lshlrev_b32 v1, 1, v0
v_add_u32 v1, s{sT0}, v1
v_mov_b32 v8, 0
v_mov_b32 v9, 0
v_mov_b32 v10, 0
v_mov_b32 v11, 0
s_lshl_b32 s{sT1}, s{sWv}, 8
s_add_u32 s{sT1}, s{sT1}, {M['UZ']}
v_and_b32 v7, 15, v0
v_lshlrev_b32 v7, 4, v7
v_add_u32 v7, s{sT1}, v7
ds_write_b128 v7, v[8:11]
s_lshl_b32 s{sT1}, s{sCP}, 2
s_mov_b32 s{sT0}, {GEN}
s_waitcnt lgkmcnt(0)""")
    a("""global_load_ushort v2, v1, s[4:5]
global_load_ushort v3, v1, s[6:7]
global_load_ushort v4, v1, s[8:9]
global_load_ushort v5, v1, s[10:11]""")
    a.tag("par")
    vGEN = 62
    a(f"buffer_load_dword v{vGEN}, v8, {sr(SWS,4)}, s{sT0} offen {SC}")
    a(f"""s_load_dword s20, s[16:17], s{sT1}
s_load_dword s21, s[18:19], s{sT1}
s_barrier""")
    vUD = 6
    a(f"""s_lshr_b32 s{sCH}, s{sWv}, 1
s_and_b32 s{sMH}, s{sWv}, 1
s_mov_b32 s{sL}, {f2u(Lhi):#x}
s_mov_b32 s{sLlo}, {f2u(L-Lhi):#x}
s_mov_b32 s{sLn2}, {f2u(math.log(2)):#x}
s_mov_b32 s{sSP}, 0
s_mul_i32 s{sPB}, s{sCH}, {PAIR}
s_add_u32 s{sPB}, s{sPB}, {M['STG']}
s_mul_i32 s{sSTG}, s{sMH}, 8448
s_add_u32 s{sSTG}, s{sSTG}, s{sPB}
v_bfe_u32 v7, v0, 4, 1
v_xor_b32 v7, v7, v0
v_lshlrev_b32 v{vUD}, 4, v7
v_lshrrev_b32 v7, 4, v0
v_lshlrev_b32 v7, 7, v7
v_and_b32 v8, 31, v0
v_lshl_add_u32 v7, v8, 2, v7
v_add_u32 v{vFLR}, {FL}, v7
v_lshlrev_b32 v{vLIN}, 4, v0""")
    a(f"""v_and_b32 v7, 3, v0
s_lshl_b32 s{sT0}, s{sWv}, 2
v_add_u32 v7, s{sT0}, v7
s_lshr_b32 s{sT0}, s{sCP}, 5
v_lshlrev_b32 v8, 1, v7
v_sub_u32 v8, s{sT0}, v8
v_and_b32 v8, 7, v8
v_lshl_add_u32 v7, v7, 4, v8
s_and_b32 s{sT0}, s{sCP}, 16
s_lshr_b32 s{sT0}, s{sT0}, 1
v_add_u32 v7, s{sT0}, v7
v_and_b32 v8, 7, v0
s_lshl_b32 s{sT0}, s{sMH}, 3
v_add_u32 v8, s{sT0}, v8
v_lshlrev_b32 v9, 4, v8
v_add_u32 v9, s{sHP}, v9
s_lshl_b32 s{sT0}, s{sRB}, 4
v_add_u32 v8, s{sT0}, v8
s_cmp_eq_u32 s{sCH}, 0
s_cselect_b64 vcc, -1, 0
v_cndmask_b32 v8, v8, v9, vcc
s_mov_b32 vcc_lo, 0xff00ff00
s_mov_b32 vcc_hi, 0xff00ff00
v_cndmask_b32 v7, v7, v8, vcc
s_and_b32 s{sT0}, s{sHP}, 7
s_lshl_b32 s{sT0}, s{sT0}, 5
s_lshl_b32 s{sT1}, s{sCH}, 4
s_add_u32 s53, s{sT0}, s{sT1}
v_and_b32 v8, 15, v0
v_add_u32 v8, s53, v8
s_mov_b32 vcc_lo, 0xffff0000
s_mov_b32 vcc_hi, 0xffff0000
v_cndmask_b32 v7, v7, v8, vcc
v_lshlrev_b32 v{vFA}, 7, v7
s_mov_b32 s56, {RDY}""")
    UX, UO, vUT, vUS, vKO, CL = 64, 72, 80, 81, 82, 84
    a(f"""v_lshrrev_b32 v7, 4, v0
v_bfe_u32 v8, v0, 2, 2
v_lshl_add_u32 v9, v7, 4, v8
v_lshlrev_b32 v9, 7, v9
v_and_b32 v10, 1, v0
v_lshl_add_u32 v9, v10, 3, v9
s_lshr_b32 s{sT0}, s{sHP}, 3
s_lshl_b32 s{sT0}, s{sT0}, 1
s_add_u32 s{sT0}, s{sT0}, s{sMH}
s_lshl_b32 s{sT1}, s{sT0}, 1
v_bfe_u32 v10, v0, 1, 1
v_add_u32 v10, s{sT1}, v10
v_bfe_u32 v11, v0, 3, 1
v_xor_b32 v10, v10, v11
v_lshl_add_u32 v9, v10, 4, v9
s_lshl_b32 s{sT1}, s{sCH}, 13
s_add_u32 s{sT1}, s{sT1}, {S[2]}
v_add_u32 v{vUT}, s{sT1}, v9
v_lshlrev_b32 v9, 14, v8
v_lshl_add_u32 v9, v7, 6, v9
v_and_b32 v10, 3, v0
v_lshl_add_u32 v{vUS}, v10, 4, v9
s_lshl_b32 s{sT0}, s{sT0}, 16
s_lshl_b32 s{sT1}, s{sF}, 18
s_add_u32 s{sT0}, s{sT0}, s{sT1}
s_lshl_b32 s{sT1}, s{sRB}, 9
s_add_u32 s{sT0}, s{sT0}, s{sT1}
s_lshl_b32 s{sT1}, s{sCH}, 8
s_add_u32 s58, s{sT0}, s{sT1}
s_add_u32 s58, s58, {UT2}
s_add_u32 s59, s58, 8192""")
    kvp_addr(a, vKO, sWv, sHP, sRB, sT0, sT1, 7)
    a(f"""s_lshl_b32 s54, s{sRB}, 17
s_lshl_b32 s{sT0}, s{sWv}, 15
s_add_u32 s54, s54, s{sT0}
s_lshl_b32 s{sT0}, s{sHP}, 11
s_add_u32 s54, s54, s{sT0}
s_add_u32 s54, s54, {OO}
s_lshl_b32 s{sT0}, s{sCP}, 13
s_lshl_b32 s{sT1}, s{sWv}, 11
s_add_u32 s{sT0}, s{sT0}, s{sT1}
s_add_u32 s55, s{sT0}, {AP}
s_add_u32 s57, s{sT0}, {UT2}
v_mov_b32 v{CL}, -1
v_mov_b32 v{CL+1}, -1
v_mov_b32 v{CL+2}, -1
v_mov_b32 v{CL+3}, -1""")
    def clears():
        a(f"""s_cmp_eq_u32 s{sWv}, 0
s_cselect_b32 exec_hi, 0xff, 0
buffer_store_dwordx4 {vr(CL,4)}, v{vKO}, {sr(SWS,4)}, 0 offen {SC}
s_mov_b32 exec_hi, -1
buffer_store_dwordx4 {vr(CL,4)}, v{vLIN}, {sr(SWS,4)}, s54 offen {SC}
buffer_store_dwordx4 {vr(CL,4)}, v{vLIN}, {sr(SWS,4)}, s54 offen offset:1024 {SC}
buffer_store_dwordx4 {vr(CL,4)}, v{vLIN}, {sr(SWS,4)}, s55 offen {SC}
buffer_store_dwordx4 {vr(CL,4)}, v{vLIN}, {sr(SWS,4)}, s55 offen offset:1024 {SC}""")
    def u_dma():
        a(f"""s_lshl_b32 s{sT1}, s{sWv}, 11
s_add_u32 m0, s{sT1}, {M['U']}
buffer_load_dwordx4 v{vUD}, {sr(SWS,4)}, s57 offen {SC} lds
buffer_load_dwordx4 v{vUD}, {sr(SWS,4)}, s57 offen offset:1024 {SC} lds""")
    vSW, vSR0, vSR1 = 24, 25, 26
    a(f"""v_and_b32 v7, 7, v0
v_lshlrev_b32 v7, 4, v7
v_lshl_add_u32 v7, v0, 7, v7
v_add_u32 v{vSW}, s{sSTG}, v7""")
    a(f"""v_lshrrev_b32 v7, 5, v0
v_bfe_u32 v12, v0, 3, 1
v_lshl_add_u32 v7, v7, 2, v12
v_bfe_u32 v12, v0, 2, 1
v_bfe_u32 v13, v0, 4, 1
v_lshlrev_b32 v13, 1, v13
v_lshl_add_u32 v12, v12, 2, v13
v_bfe_u32 v13, v0, 1, 1
v_add_u32 v12, v12, v13
v_xor_b32 v12, v12, v7
v_lshlrev_b32 v12, 4, v12
v_lshl_add_u32 v12, v7, 7, v12
v_and_b32 v13, 1, v0
v_lshl_add_u32 v12, v13, 3, v12
v_add_u32 v{vSR0}, s{sSTG}, v12
v_xor_b32 v12, 32, v12
v_add_u32 v{vSR1}, s{sSTG}, v12
s_waitcnt lgkmcnt(0)
s_lshl_b32 s{sT0}, s{sCH}, 4
s_lshr_b32 s20, s20, s{sT0}
s_lshl_b32 s20, s20, 16
s_lshr_b32 s21, s21, s{sT0}
s_lshl_b32 s21, s21, 16
v_mov_b32 v7, s20""")
    vDT = 27
    exp_acc(a, vDT, 7, 12, sL, sLlo, sLn2)
    a(f"""v_cvt_pk_bf16_f32 v{vDT}, v{vDT}, v{vDT}
v_and_b32 v{vDT}, 0xffff0000, v{vDT}""")
    if 'clr0' in OPT: clears()
    a.vmwait("par")
    stamp(a,1)
    if 'clr0' not in OPT: clears()
    for r in (2,3,4,5): a(f"v_lshlrev_b32 v{r}, 16, v{r}")
    exp_acc(a, 2, 2, 12, sL, sLlo, sLn2)
    E1, E2, E4, E8, E256, EX, W0, T = 8, 10, 12, 14, 16, 18, 20, 22
    a(f"""v_cvt_pk_bf16_f32 v2, v2, v2
v_and_b32 v2, 0xffff0000, v2
v_mul_f32 v2, v2, v{vDT}
v_mul_f32 v3, v3, v{vDT}
v_mul_f32 v2, s{sL}, v2
v_mul_f32 v3, 0.15915494, v3
v_mul_f32 v4, v4, v{vDT}
v_mul_f32 v5, v5, v{vDT}
v_add_f32 v{W0}, v4, v4
v_add_f32 v{W0+1}, v5, v5""")
    def anchor(E, x):
        if x == 1:
            a(f"v_exp_f32 v{T}, -v2\nv_fract_f32 v{T+1}, v3")
        else:
            a(f"v_mul_f32 v{T}, {f2u(-float(x)):#x}, v2\nv_mul_f32 v{T+1}, {f2u(float(x)):#x}, v3")
            a(f"v_exp_f32 v{T}, v{T}\nv_fract_f32 v{T+1}, v{T+1}")
        a(f"v_cos_f32 v{E}, v{T+1}\nv_sin_f32 v{E+1}, v{T+1}")
        a(f"v_mul_f32 v{E}, v{E}, v{T}\nv_mul_f32 v{E+1}, v{E+1}, v{T}")
    anchor(E8, 8)
    G, PK = 32, 48
    def stage(gi, regs, negim):
        n = '-' if negim else ''
        for j in range(4):
            a(f"v_cvt_pk_bf16_f32 v{PK+j}, v{regs[2*j]}, v{regs[2*j+1]}")
        for j in range(4):
            a(f"v_cvt_pk_bf16_f32 v{PK+4+j}, {n}v{regs[2*j]+1}, {n}v{regs[2*j+1]+1}")
        for part in range(2):
            g = 4*part+gi
            if g == 0: ad = vSW
            else:
                a(f"v_xor_b32 v{28+part}, {16*g}, v{vSW}"); ad = 28+part
            a(f"ds_write_b128 v{ad}, {vr(PK+4*part,4)}")
    a(f"v_mov_b32 v{G}, 1.0\nv_mov_b32 v{G+1}, 0\nv_mov_b32 v{G+2}, v{E8}\nv_mov_b32 v{G+3}, v{E8+1}")
    for gi in range(4):
        for j in range(8):
            if gi == 0 and j < 2: continue
            prev = G+2*((j-1) % 8)
            cmul(a, G+2*j, prev, E8, T)
        stage(gi, [G+2*j for j in range(8)], False)
    LF, HF, D, PT = 128, 160, 192, 208
    def trreads(dst):
        for ks in range(8):
            a(f"ds_read_b64_tr_b16 {vr(dst+4*ks,2)}, v{vSR0} offset:{1024*ks}")
            a(f"ds_read_b64_tr_b16 {vr(dst+4*ks+2,2)}, v{vSR1} offset:{1024*ks+256}")
    trreads(LF)
    UP = P_('UP', 0)
    def ut_reads():
        sy.check(1, vFLR, 0)
        for Y in range(2):
            for tt in range(2):
                sw = 4*Y+2*tt
                if sw == 0: ad = vUT
                else:
                    a(f"v_xor_b32 v83, {16*sw}, v{vUT}"); ad = 83
                a(f"ds_read_b64_tr_b16 {vr(UX+4*Y+2*tt,2)}, v{ad} offset:{(8*Y+4*tt)*128}")
    def ut_stores():
        a("s_waitcnt lgkmcnt(2)")
        a(f"s_mov_b32 vcc_lo, 0x33333333\ns_mov_b32 vcc_hi, 0x33333333")
        for j in range(4):
            a(f"v_cndmask_b32_dpp v{UO+j}, v{UX+4+j}, v{UX+j}, vcc quad_perm:[2,3,0,1] row_mask:0xf bank_mask:0xf")
        a("s_not_b64 vcc, vcc")
        for j in range(4):
            a(f"v_cndmask_b32_dpp v{UO+4+j}, v{UX+j}, v{UX+4+j}, vcc quad_perm:[2,3,0,1] row_mask:0xf bank_mask:0xf")
        a(f"buffer_store_dwordx4 {vr(UO,4)}, v{vUS}, {sr(SWS,4)}, s58 offen {SC}")
        a(f"buffer_store_dwordx4 {vr(UO+4,4)}, v{vUS}, {sr(SWS,4)}, s59 offen {SC}")
        stamp(a, 3)
    def hstage(gi, regs):
        if gi == UP: ut_reads()
        elif gi == 0: a("s_waitcnt lgkmcnt(0)")
        stage(gi, regs, True)
        if gi == UP: ut_stores()
        if gi+1 == UP: sy.poll(vFLR, 0)
    if UP == 0: sy.poll(vFLR, 0)
    stamp(a,2)
    anchor(E1, 1); anchor(E256, 256)
    cmul(a, E2, E1, E1, T); cmul(a, E4, E2, E2, T)
    g = lambda j: G+2*j
    cmul(a, g(1), W0, E1, T)
    for j in range(2, 8): cmul(a, g(j), g(j-1), E1, T)
    hstage(0, [W0]+[g(j) for j in range(1,8)])
    cmul(a, g(0), W0, E256, T)
    for j in range(1, 5): cmul(a, g(j), g(j-1), E2, T)
    hstage(1, [g(0),g(1),g(2),g(2),g(2),g(3),g(4),g(4)])
    cmul(a, EX, E256, E256, T)
    cmul(a, g(0), W0, EX, T)
    cmul(a, g(1), g(0), E4, T); cmul(a, g(2), g(1), E4, T)
    cmul(a, g(3), g(0), E256, T)
    cmul(a, g(4), g(3), E4, T); cmul(a, g(5), g(4), E4, T)
    hstage(2, [g(0),g(1),g(2),g(2),g(3),g(4),g(5),g(5)])
    cmul(a, g(0), g(0), EX, T)
    cmul(a, g(1), g(0), E8, T)
    for j in range(1, 4):
        cmul(a, g(2*j), g(2*j-2), E256, T)
        cmul(a, g(2*j+1), g(2*j), E8, T)
    hstage(3, [g(j) for j in range(8)])
    trreads(HF)
    stamp(a,4)
    vEX = 28
    a(f"""s_mul_i32 s{sT0}, s{sMH}, 12544
s_add_u32 s{sT0}, s{sT0}, s{sPB}
s_add_u32 s{sT1}, s{sPB}, s{sPB}
s_add_u32 s{sT1}, s{sT1}, 12544
s_sub_u32 s{sT1}, s{sT1}, s{sT0}
v_add_u32 v{vEX}, s{sT0}, v{vLIN}
v_add_u32 v{vEX+1}, s{sT1}, v{vLIN}""")
    for ks in range(8):
        a(f"s_waitcnt lgkmcnt({14-2*ks})")
        c = "0" if ks == 0 else vr(D,16)
        a(f"v_mfma_f32_32x32x16_bf16 {vr(D,16)}, {vr(HF+4*ks,4)}, {vr(LF+4*ks,4)}, {c}")
    vTQ, vT2, vT3 = 30, 31, 7
    a(f"""s_mul_i32 s{sT0}, s{sMH}, 4160
s_add_u32 s{sT0}, s{sT0}, s{sPB}
s_add_u32 s{sT0}, s{sT0}, {4080}
v_and_b32 v8, 31, v0
v_lshlrev_b32 v8, 4, v8
v_sub_u32 v8, s{sT0}, v8
v_lshrrev_b32 v9, 5, v0
v_lshlrev_b32 v10, 3, v9
v_sub_u32 v{vTQ}, v8, v10
v_lshlrev_b32 v10, 9, v9
v_sub_u32 v{vT2}, v8, v10
v_lshlrev_b32 v10, 10, v9
v_sub_u32 v{vT3}, v8, v10
v_add_u32 v11, s{sT0}, v{vLIN}
v_mov_b32 v12, 0
v_mov_b32 v13, 0
v_mov_b32 v14, 0
v_mov_b32 v15, 0""")
    for j in range(4): a(f"ds_write_b128 v{vEX}, {vr(D+4*j,4)} offset:{1024*j}")
    bar(1)
    for j in range(4): a(f"ds_read_b128 {vr(PT+4*j,4)}, v{vEX+1} offset:{1024*j}")
    a(f"""s_mov_b64 exec, 7
ds_write_b128 v11, v[12:15] offset:4096
s_mov_b64 exec, 1
v_mov_b32 v12, s21
s_mov_b64 exec, -1""")
    def rdy():
        a(f"""s_waitcnt vmcnt(0)
v_readfirstlane_b32 s{sN}, v{vGEN}
s_lshl_b32 s{sT0}, s{sCP}, 7
s_lshl_b32 s{sT1}, s{sWv}, 2
s_add_u32 s{sT0}, s{sT0}, s{sT1}
s_add_u32 s{sT0}, s{sT0}, {RDY}
s_mul_i32 s{sN}, s{sN}, {LCG_A:#x}
s_add_u32 s{sN}, s{sN}, {LCG_C:#x}
v_mov_b32 v{UX}, s{sN}
v_mov_b32 v{UX+1}, 0
v_mov_b32 v{UX+2}, {NW}
s_mov_b64 exec, 1
buffer_store_dword v{UX}, v{UX+1}, {sr(SWS,4)}, s{sT0} offen {SC}
ds_write_b32 v{UX+2}, v{UX}
s_mov_b64 exec, -1""")
        sigAB(1)
        stamp(a, 6)
    RP = P_('RP', 1)
    if RP == 0: rdy(); a("s_waitcnt lgkmcnt(0)")
    else: a("s_waitcnt lgkmcnt(1)")
    a(f"""s_mov_b32 vcc_lo, 0xaaaaaaaa
s_mov_b32 vcc_hi, 0xaaaaaaaa""")
    a(f"v_add_f32 v{D}, v{D}, v12")
    for j in range(8): a(f"v_pk_add_f32 {vr(D+2*j,2)}, {vr(D+2*j,2)}, {vr(PT+2*j,2)}")
    stamp(a,5)
    r = lambda j: f"v{D+j}"
    P = 32
    L1, L2 = a.label('ATAP'), a.label('ATAP')
    a(f"s_cmp_eq_u32 s{sMH}, 0\ns_cbranch_scc1 {L1}")
    cv = lambda d, x, y: a(f"v_cvt_pk_bf16_f32 v{d}, {x}, {y}")
    cv(P, r(3), r(2)); cv(P+1, r(1), r(0)); a(f"ds_write_b64 v{vTQ}, {vr(P,2)} offset:{4096+8}")
    cv(P+2, r(6), r(5)); cv(P+3, r(4), r(4)); a(f"ds_write_b64 v{vTQ}, {vr(P+2,2)} offset:{4096+8-512}")
    cv(P+4, r(10), r(10)); cv(P+5, r(9), r(9)); cv(P+6, r(9), r(8)); cv(P+7, r(8), r(8))
    a(f"ds_write_b128 v{vT2}, {vr(P+4,4)} offset:{4096-1024}")
    for k in range(2):
        v0_, v1_ = r(12+2*k), r(13+2*k); Q = P+8+4*k
        a(f"v_cndmask_b32 v8, {v0_}, {v1_}, vcc")
        cv(Q, v1_, v1_); cv(Q+1, v1_, "v8"); cv(Q+2, v0_, v0_); cv(Q+3, v0_, v0_)
        a(f"ds_write_b128 v{vT3}, {vr(Q,4)} offset:{4096-2048-512*k}")
    a(f"s_branch {L2}\n{L1}:")
    cv(P+2, r(5), r(4)); cv(P+3, r(4), r(4)); a(f"ds_write_b64 v{vTQ}, {vr(P+2,2)} offset:{4096+8-512}")
    cv(P, r(2), r(1)); cv(P+1, r(0), r(3))
    a(f"ds_write_b32 v{vTQ}, v{P} offset:{4108-4}")
    a(f"ds_write_b16 v{vTQ}, v{P+1} offset:{4108}")
    a(f"ds_write_b16_d16_hi v{vTQ}, v{P+1} offset:{4108-6}")
    cv(P+4, r(10), r(9)); cv(P+5, r(9), r(9)); cv(P+6, r(8), r(8)); cv(P+7, r(8), r(8))
    a(f"ds_write_b128 v{vT2}, {vr(P+4,4)} offset:{4096-1024}")
    for k in range(2):
        v0_, v1_ = r(12+2*k), r(13+2*k); Q = P+8+4*k
        a(f"v_cndmask_b32 v8, {v0_}, {v1_}, vcc")
        cv(Q, v1_, v1_); cv(Q+1, "v8", v0_); cv(Q+2, v0_, v0_); cv(Q+3, v0_, v0_)
        a(f"ds_write_b128 v{vT3}, {vr(Q,4)} offset:{4096-2048-512*k}")
    a(f"{L2}:")
    sigA(2)
    if RP == 1: rdy()
    sy.poll(vFLR, AR)
    vTA = 8
    a(f"""v_and_b32 v12, 1, v0
v_mul_u32_u24 v13, {4160+2}, v12
v_and_b32 v12, 15, v0
v_lshlrev_b32 v12, 1, v12
v_sub_u32 v13, v13, v12
v_lshrrev_b32 v12, 4, v0
v_lshl_add_u32 v13, v12, 4, v13
s_lshl_b32 s{sT0}, s{sMH}, 6
s_sub_u32 s{sT0}, s{sPB}, s{sT0}
s_add_u32 s{sT0}, s{sT0}, {4080+12+4096-32-128*7}
v_add_u32 v{vTA}, s{sT0}, v13""")
    for gq in range(1, 4): a(f"v_add_u32 v{vTA+gq}, {(-1024*gq) & 0xffffffff:#x}, v{vTA}")
    vB0, vB1 = 12, 13
    a(f"""v_and_b32 v14, 15, v0
v_lshrrev_b32 v15, 4, v0
v_lshl_add_u32 v14, v14, 1, v15
s_lshl_b32 s{sT0}, s{sMH}, 2
s_sub_u32 s{sT0}, 6, s{sT0}
v_add_u32 v14, s{sT0}, v14
v_bfe_u32 v15, v14, 3, 1
v_xor_b32 v15, s{sCH}, v15
v_lshlrev_b32 v15, 4, v15
v_lshl_add_u32 v14, v14, 5, v15
v_add_u32 v{vB0}, {M['UZ']}, v14
v_xor_b32 v14, 16, v14
v_add_u32 v{vB1}, {M['UZ']}, v14""")
    sy.check(2, vFLR, AR)
    TF, ACC, BF = 128, 96, 64
    order = [m for s in (3,2,1,0) for m in range(s, 32, 4)]
    def treads(ms):
        for mu in ms:
            o = (7-(mu & 7))*32
            a(f"ds_read2_b32 {vr(TF+4*mu,2)}, v{vTA+(mu>>3)} offset0:{o} offset1:{o+1}")
            a(f"ds_read2_b32 {vr(TF+4*mu+2,2)}, v{vTA+(mu>>3)} offset0:{o+2} offset1:{o+3}")
    FLOAD = f"s_mov_b32 exec_hi, 0\nbuffer_load_dwordx4 {vr(FLV,4)}, v{vFA}, {sr(SWS,4)}, s56 offen {SC}\ns_mov_b32 exec_hi, -1"
    def fcheck(mask, pref):
        R, C, D_ = a.label(pref+'R'), a.label(pref+'C'), a.label(pref+'D')
        a(f"s_mov_b32 s{sC}, 0\ns_branch {C}\n{R}:\ns_sleep {P_('SLF', 3)}")
        a.L += FLOAD.split('\n')
        a(f"""s_waitcnt vmcnt(0)
{C}:
v_cmp_ne_u32 vcc, s{sN}, v{FLV}
v_cmp_ne_u32 s[40:41], s{sN}, v{FLV+1}
v_cmp_ne_u32 s[42:43], s{sN}, v{FLV+2}
v_cmp_ne_u32 s[44:45], s{sN}, v{FLV+3}
s_or_b32 s40, s40, vcc_lo
s_or_b32 s42, s42, s44
s_or_b32 s40, s40, s42
s_and_b32 s40, s40, {mask:#x}
s_cbranch_scc0 {D_}
s_add_u32 s{sC}, s{sC}, 1
s_cmp_lt_u32 s{sC}, {SPIN_G}
s_cbranch_scc1 {R}
{D_}:""")
    T1, T2 = P_('T1', 6), P_('T2', 18)
    treads(order[:T1])
    a.L += FLOAD.split('\n')
    treads(order[T1:T2])
    a("s_waitcnt vmcnt(0)")
    stamp(a,7)
    fcheck(0xff, 'AU')
    u_dma()
    stamp(a,8)
    treads(order[T2:])
    vOW, vOR = 14, 15
    a(f"""v_and_b32 v16, 15, v0
v_lshrrev_b32 v17, 4, v0
v_lshlrev_b32 v18, 2, v17
v_xor_b32 v16, v16, v18
v_lshl_add_u32 v16, v17, 4, v16
v_lshlrev_b32 v16, 4, v16
s_lshl_b32 s{sT0}, s{sWv}, 13
s_add_u32 s{sT0}, s{sT0}, {M['STG']}
v_add_u32 v{vOW}, s{sT0}, v16
v_lshrrev_b32 v16, 2, v0
v_and_b32 v17, 3, v0
v_lshlrev_b32 v18, 2, v17
v_xor_b32 v16, v16, v18
v_lshl_add_u32 v16, v17, 4, v16
v_lshlrev_b32 v16, 4, v16
s_lshl_b32 s{sT0}, s{sWv}, 11
s_add_u32 s{sT0}, s{sT0}, {M['STG']}
v_add_u32 v{vOR}, s{sT0}, v16""")
    fcheck(0xffffffff, 'AV')
    sigAB(2)
    a("s_waitcnt vmcnt(0) lgkmcnt(0)")
    bar(3)
    stamp(a,9)
    NB = 8
    def bread(e):
        a(f"ds_read_b128 {vr(BF+4*(e%NB),4)}, v{vB0+(e&1)} offset:{256*e}")
    PF = 4
    for e in range(PF): bread(e)
    started = set()
    for e in range(32):
        if e+PF < 32: bread(e+PF)
        a(f"s_waitcnt lgkmcnt({min(PF, 31-e)})")
        for seg in range(7, -1, -1):
            mu = 4*seg-e+3
            if mu < 0: continue
            c = vr(ACC+4*seg,4) if seg in started else "0"
            started.add(seg)
            a(f"v_mfma_f32_16x16x32_bf16 {vr(ACC+4*seg,4)}, {vr(TF+4*mu,4)}, {vr(BF+4*(e%NB),4)}, {c}")
        if e % 4 == 3:
            seg = e//4
            if seg >= 1: a(f"ds_write_b128 v{vOW}, {vr(ACC+4*(seg-1),4)} offset:{1024*(seg-1)}")
    stamp(a,10)
    a(f"ds_write_b128 v{vOW}, {vr(ACC+28,4)} offset:{1024*7}")
    bar(4)
    R = 128
    for s in range(2):
        for w in range(4):
            a(f"ds_read_b128 {vr(R+16*s+4*w,4)}, v{vOR} offset:{8192*w+1024*s}")
    for s in range(2):
        a(f"s_waitcnt lgkmcnt({4-4*s})")
        b = R+16*s
        for j in range(2):
            a(f"v_pk_add_f32 {vr(b+2*j,2)}, {vr(b+2*j,2)}, {vr(b+4+2*j,2)}")
            a(f"v_pk_add_f32 {vr(b+8+2*j,2)}, {vr(b+8+2*j,2)}, {vr(b+12+2*j,2)}")
        for j in range(4):
            a(f"v_cvt_pk_bf16_f32 v{b+4+j}, v{b+j}, v{b+8+j}")
        a(f"buffer_store_dwordx4 {vr(b+4,4)}, v{vLIN}, {sr(SWS,4)}, s55 offen offset:{1024*s} {SC}")
    sigA(5)
    stamp(a,11)
    APR, GA = 24, 32
    vRow, vGA, vGR, x = 17, 18, 19, 20
    a(f"""v_lshrrev_b32 v16, 5, v0
v_and_b32 v{vRow}, 31, v0
v_lshlrev_b32 v{vRow}, 2, v{vRow}
s_lshr_b32 s{sT0}, s{sHP}, 3
s_lshl_b32 s{sT0}, s{sT0}, 8
s_lshl_b32 s{sT1}, s{sMH}, 7
s_add_u32 s{sT0}, s{sT0}, s{sT1}
s_add_u32 s{sT1}, s{sT0}, {GL}
v_add_u32 v{vGR}, s{sT1}, v{vRow}
v_lshl_add_u32 v{vRow}, v16, 16, v{vRow}
s_lshl_b32 s{sT1}, s{sRB}, 9
s_add_u32 s52, s{sT0}, s{sT1}
s_lshl_b32 s53, s53, 13
s_add_u32 s52, s52, s53
s_add_u32 s40, s52, {AP}""")
    for u in range(1, 8): a(f"s_add_u32 s{40+u}, s{40+u-1}, 8192")
    a(f"""s_lshl_b32 s{sT1}, s{sWv}, 12
s_add_u32 s{sT1}, s{sT1}, {ABASE}
v_add_u32 v{vGA}, s{sT1}, v{vLIN}""")
    sy.poll(vFLR, 0); sy.check(3, vFLR, 0)
    a(f"ds_read_b32 v{x}, v{vGR}")
    sy.poll(vFLR, AR); sy.check(5, vFLR, AR)
    a(f"v_sub_f32 v{x}, 1.0, v{x}")
    if P_('SLAF', 8): a(f"s_sleep {P_('SLAF', 8)}")
    apl = [f"buffer_load_dword v{APR+u}, v{vRow}, {sr(SWS,4)}, s{40+u} offen {SC}" for u in range(8)]
    for l in apl: a.L.append(l)
    spoll(a, 'AP', apl, [(APR+2*q, 2) for q in range(4)], 21, sC, 0, P_('SLA', 3), per=2)
    stamp(a,12)
    for q in range(4):
        for u in (2*q, 2*q+1):
            a(f"""v_lshlrev_b32 v{GA+2*u}, 16, v{APR+u}
v_and_b32 v{GA+2*u+1}, 0xffff0000, v{APR+u}
v_mul_f32 v{GA+2*u}, v{GA+2*u}, v{x}
v_mul_f32 v{GA+2*u+1}, v{GA+2*u+1}, v{x}""")
        a(f"ds_write_b128 v{vGA}, {vr(GA+4*q,4)} offset:{1024*q}")
    sigAB(3)
    a("s_waitcnt lgkmcnt(0)")
    stamp(a,13)
    if STAMPS:
        a(f"s_add_u32 s{sWv}, s{sWv}, 4")
        dump_stamps(a, 14, KD, sWv)
```

```python
from asmlib import *
from lay2 import *
import struct, pads
def f2u(x): return struct.unpack('<I', struct.pack('<f', x))[0]
SPIN_L = 1<<17
SPIN_G = 1<<12
LCG_A, LCG_C = 0x41C64E6D, 0x3039
def stampx(a, k):
    if 'fine' not in OPT or k == 15: stamp(a, k)
def srd(a, d, nbytes):
    a(f"s_mov_b32 s{d+2}, {nbytes}")
    a(f"s_mov_b32 s{d+3}, 0x00020000")
def softmax16(a, P, dst, t, sL, pk=True):
    a(f"v_max3_f32 v{t}, v{P}, v{P+1}, v{P+2}")
    a(f"v_max3_f32 v{t+1}, v{P+3}, v{P+4}, v{P+5}")
    a(f"v_max3_f32 v{t}, v{t}, v{P+6}, v{P+7}")
    a(f"v_max3_f32 v{t+1}, v{t+1}, v{P+8}, v{P+9}")
    a(f"v_max3_f32 v{t}, v{t}, v{P+10}, v{P+11}")
    a(f"v_max3_f32 v{t+1}, v{t+1}, v{P+12}, v{P+13}")
    a(f"v_max3_f32 v{t}, v{t}, v{P+14}, v{P+15}")
    a(f"v_max_f32 v{t}, v{t}, v{t+1}")
    a(f"v_mul_f32 v{t}, s{sL}, v{t}")
    if pk:
        for j in range(8):
            a(f"v_pk_fma_f32 {vr(P+2*j,2)}, {vr(P+2*j,2)}, {sr(sL,2)}, {vr(t,2)} op_sel_hi:[1,1,0] neg_lo:[0,0,1] neg_hi:[0,0,1]")
    else:
        for j in range(16): a(f"v_fma_f32 v{P+j}, v{P+j}, s{sL}, -v{t}")
    for j in range(16):
        a(f"v_exp_f32 v{P+j}, v{P+j}")
    sum16(a, P, t, pk)
    a(f"v_rcp_f32 v{t}, v{t}")
    if pk:
        for j in range(8):
            a(f"v_pk_mul_f32 {vr(P+2*j,2)}, {vr(P+2*j,2)}, {vr(t,2)} op_sel_hi:[1,0]")
    else:
        for j in range(16): a(f"v_mul_f32 v{P+j}, v{P+j}, v{t}")
    for j in range(8):
        a(f"v_cvt_pk_bf16_f32 v{dst+j}, v{P+2*j}, v{P+2*j+1}")
def sum16(a, P, t, pk):
    if pk:
        a(f"v_pk_add_f32 {vr(t,2)}, {vr(P,2)}, {vr(P+2,2)}")
        a(f"v_pk_add_f32 {vr(t+2,2)}, {vr(P+4,2)}, {vr(P+6,2)}")
        a(f"v_pk_add_f32 {vr(t,2)}, {vr(t,2)}, {vr(P+8,2)}")
        a(f"v_pk_add_f32 {vr(t+2,2)}, {vr(t+2,2)}, {vr(P+10,2)}")
        a(f"v_pk_add_f32 {vr(t,2)}, {vr(t,2)}, {vr(P+12,2)}")
        a(f"v_pk_add_f32 {vr(t+2,2)}, {vr(t+2,2)}, {vr(P+14,2)}")
        a(f"v_pk_add_f32 {vr(t,2)}, {vr(t,2)}, {vr(t+2,2)}")
        a(f"v_add_f32 v{t}, v{t}, v{t+1}")
    else:
        for j in range(4): a(f"v_add_f32 v{t+j}, v{P+j}, v{P+4+j}")
        for q in (8, 12):
            for j in range(4): a(f"v_add_f32 v{t+j}, v{t+j}, v{P+q+j}")
        a(f"v_add_f32 v{t}, v{t}, v{t+1}\nv_add_f32 v{t+2}, v{t+2}, v{t+3}\nv_add_f32 v{t}, v{t}, v{t+2}")

class Sync:
    def __init__(s, a, vW, vJ, vP, sS, pref):
        s.a, s.vW, s.vJ, s.vP, s.sS, s.pref = a, vW, vJ, vP, sS, pref
    def signal(s, j):
        s.a(f"v_mov_b32 v{s.vJ}, {j}\nds_write_b32 v{s.vW}, v{s.vJ}")
    def poll(s, vR, off=0):
        s.a(f"ds_read_b32 v{s.vP}, v{vR} offset:{off}")
    def check(s, j, vR, off=0, rows=0xF, n=0):
        a = s.a
        L, D = a.label(s.pref+'S'), a.label(s.pref+'D')
        if n:
            assert rows == 0xF
            a(f"s_waitcnt lgkmcnt({n})\nv_cmp_gt_u32 vcc, {j}, v{s.vP}\ns_cbranch_vccz {D}\nds_read_b32 v{s.vP}, v{vR} offset:{off}")
        a(f"{L}:\ns_waitcnt lgkmcnt(0)\nv_cmp_gt_u32 vcc, {j}, v{s.vP}")
        if rows != 0xF:
            lo = (0xFFFF if rows & 1 else 0) | (0xFFFF0000 if rows & 2 else 0)
            hi = (0xFFFF if rows & 4 else 0) | (0xFFFF0000 if rows & 8 else 0)
            a(f"s_and_b32 vcc_lo, vcc_lo, {lo:#x}\ns_and_b32 vcc_hi, vcc_hi, {hi:#x}\ns_cmp_eq_u64 vcc, 0\ns_cbranch_scc1 {D}")
        else:
            a(f"s_cbranch_vccz {D}")
        a(f"ds_read_b32 v{s.vP}, v{vR} offset:{off}\ns_add_u32 s{s.sS}, s{s.sS}, 1\ns_cmp_lt_u32 s{s.sS}, {SPIN_L}\ns_cbranch_scc1 {L}\n{D}:")

def weave(a, fg, bg):
    i = 0
    for gap, op in bg:
        n = min(gap, len(fg)-i)
        for k in range(n): a(fg[i+k])
        i += n
        op()
    for k in range(i, len(fg)): a(fg[k])

def gpoll(a, pref, loads, regs, vM, sCnt):
    L, D = a.label(pref+'P'), a.label(pref+'Q')
    a(f"s_mov_b32 s{sCnt}, 0\n{L}:")
    for l in loads: a(l)
    a(f"s_add_u32 s{sCnt}, s{sCnt}, 1")
    n = len(loads)
    for i in range(n):
        a(f"s_waitcnt vmcnt({n-1-i})")
        r = regs[i]
        if i == 0: a(f"v_max_u32 v{vM}, v{r}, v{r+1}")
        else: a(f"v_max3_u32 v{vM}, v{vM}, v{r}, v{r+1}")
        a(f"v_max3_u32 v{vM}, v{vM}, v{r+2}, v{r+3}")
    a(f"v_cmp_eq_u32 vcc, -1, v{vM}\ns_cbranch_vccz {D}\ns_cmp_lt_u32 s{sCnt}, {SPIN_G}\ns_cbranch_scc1 {L}\n{D}:")

def fpoll(a, pref, load, vF, sN, sCnt, first_issued=False):
    L, D, C = a.label(pref+'F'), a.label(pref+'G'), a.label(pref+'H')
    a(f"s_mov_b32 s{sCnt}, 0")
    if first_issued: a(f"s_branch {C}")
    a(f"{L}:")
    a(load)
    a(f"{C}:\ns_add_u32 s{sCnt}, s{sCnt}, 1\ns_waitcnt vmcnt(0)\nv_cmp_ne_u32 vcc, s{sN}, v{vF}\ns_cbranch_vccz {D}\ns_cmp_lt_u32 s{sCnt}, {SPIN_G}\ns_cbranch_scc1 {L}\n{D}:")

SLOT = {}
for u in range(24): SLOT[u] = u % 14
for i, s in enumerate((10,11,12,13,0,1,2,3)): SLOT[24+i] = s
WOSLOT = [6,7,8,9,4,5,10,11,12,13,0,1,2,3,6,7]
EXB = 8192*4
OB = 0
D0 = 4
SC = "sc1"
import os
OPT = set(os.environ.get("OPT","").split(","))

def w_dma_addr(a, vW, sHG, sWv, t0, t1, tv):
    a(f"""v_lshrrev_b32 v{tv}, 3, v0
v_and_b32 v{tv+1}, 7, v0
v_bfe_u32 v{tv+2}, v0, 4, 1
v_lshlrev_b32 v{tv+2}, 2, v{tv+2}
v_xor_b32 v{tv+1}, v{tv+1}, v{tv+2}
v_lshlrev_b32 v{tv+1}, 4, v{tv+1}
s_mul_i32 s{t0}, s{sWv}, {16*3072}
s_lshl_b32 s{t1}, s{sHG}, 7
s_add_u32 s{t0}, s{t0}, s{t1}
v_mul_u32_u24 v{tv}, 0xc00, v{tv}
v_add3_u32 v{vW}, v{tv}, v{tv+1}, s{t0}""")

def gen_b(a, common):
    SX, SW, SWS, SPH, SG, SWO, SOUT = 4, 8, 12, 16, 20, 40, 44
    sRB, sHG, sWv, sT0, sT1, sXo, sWo, sM, sL = 24, 25, 26, 27, 28, 29, 30, 31, 32
    sN, sSP, sCP, sPC = 48, 49, 50, 51
    sKVP, sZP, sOP, sKF = 34, 35, 36, 37
    vXA, vWA, vFLW, vFLR, T, vXD0, vXD1, vWD, vLIN, vJ, vP = 2, 6, 8, 9, 10, 14, 15, 16, 17, 18, 19
    WF = [20, 36]; ACCK, ACCV, P, WP, B1, B2, XQ = 52, 68, [84, 100], 116, 124, 2, 128
    sy = Sync(a, vFLW, vJ, vP, sSP, 'B')
    a("s_setprio 3")
    a("""s_load_dwordx2 s[4:5], s[0:1], 0
s_load_dwordx2 s[8:9], s[0:1], 64
s_load_dwordx2 s[12:13], s[0:1], 112
s_load_dwordx2 s[16:17], s[0:1], 72
s_load_dwordx2 s[20:21], s[0:1], 88
s_load_dwordx2 s[40:41], s[0:1], 80
s_load_dwordx2 s[44:45], s[0:1], 96""")
    common(a)
    srd(a, SX, 2097152); srd(a, SW, 1572864); srd(a, SWS, WS_BYTES); srd(a, SPH, 16384); srd(a, SG, 1024)
    srd(a, SWO, 524288); srd(a, SOUT, 2097152)
    a(f"s_mov_b32 s{sL}, {LOG2E}\ns_mov_b32 s{sL+1}, {LOG2E}\ns_mov_b32 s{sSP}, 0")
    a(f"""v_lshrrev_b32 v20, 3, v0
v_and_b32 v21, 7, v0
v_lshrrev_b32 v22, 4, v0
v_xor_b32 v23, v21, v22
v_lshlrev_b32 v23, 4, v23
v_lshl_add_u32 v23, v20, 10, v23
s_lshl_b32 s{sT0}, s{sRB}, 16
s_lshl_b32 s{sT1}, s{sWv}, 14
s_add_u32 s{sT0}, s{sT0}, s{sT1}
v_add_u32 v{vXD0}, s{sT0}, v23
v_xor_b32 v{vXD1}, 64, v{vXD0}
v_add_u32 v{vXD1}, 0x1c00, v{vXD1}""")
    w_dma_addr(a, vWD, sHG, sWv, sT0, sT1, 20)
    vWD1 = 126
    a(f"v_add_u32 v{vWD1}, {24576}, v{vWD}\nv_add_u32 v{vWD}, 1024, v{vWD}")
    a(f"v_lshlrev_b32 v{vLIN}, 4, v0\ns_lshl_b32 s{sM}, s{sWv}, 11")
    a("s_waitcnt lgkmcnt(0)")
    stamp(a, 1)
    def chunk_off(i):
        a(f"s_add_u32 s{sT0}, s{sHG}, {i}\ns_and_b32 s{sT0}, s{sT0}, 7\ns_lshl_b32 s{sXo}, s{sT0}, 7\ns_mul_i32 s{sWo}, s{sT0}, 196608")
    def dma_ops(p, pre=False):
        ops = []
        def two(u, v0, v1, srdn, so):
            def f0():
                a(f"s_add_u32 m0, s{sM}, {8192*SLOT[u]}")
                a(f"buffer_load_dwordx4 v{v0}, {sr(srdn,4)}, s{so} offen lds")
            def f1():
                a(f"buffer_load_dwordx4 v{v1}, {sr(srdn,4)}, s{so} offen offset:1024 lds")
                a.tag(f"u{u}")
            ops.extend([f0, f1])
        if p < 8:
            two(2*p, vXD0, vXD1, SX, sXo if pre else 96+p-4)
            two(2*p+1, vWD, vWD1, SW, sWo if pre else 16+p)
        else:
            for u in (2*p, 2*p+1): two(u, vWD, vWD1, SW, 16+u-16)
        return ops
    def dma_pair(u):
        chunk_off(u//2)
        for f in dma_ops(u//2, True): f()
    a(f"v_mov_b32 v1, 0\ns_mov_b32 s{sT1}, {GEN}")
    a(f"buffer_load_dword v1, v1, {sr(SWS,4)}, s{sT1} offen {SC}")
    dma_pair(0)
    GW = P[0]
    a(f"""s_and_b32 s{sT0}, s{sWv}, 1
s_lshl_b32 s{sT0}, s{sT0}, 10
s_add_u32 m0, s{sT0}, {PHI}
s_lshl_b32 s{sT1}, s{sHG}, 11
s_add_u32 s{sT1}, s{sT1}, s{sT0}
buffer_load_dwordx4 v{vLIN}, {sr(SPH,4)}, s{sT1} offen lds
v_lshrrev_b32 v20, 5, v0
v_lshlrev_b32 v20, 4, v20
s_lshl_b32 s{sT1}, s{sHG}, 7""")
    for ks in range(4):
        a(f"buffer_load_dwordx4 {vr(GW+4*ks,4)}, v20, {sr(SG,4)}, s{sT1} offen offset:{32*ks}")
    a.tag("gw")
    for i in range(1, D0): dma_pair(2*i)
    a("s_barrier")
    for i in range(8):
        a(f"s_add_u32 s{sT0}, s{sHG}, {i}\ns_and_b32 s{sT0}, s{sT0}, 7\ns_mul_i32 s{16+i}, s{sT0}, 196608")
        if i >= 4: a(f"s_lshl_b32 s{96+i-4}, s{sT0}, 7")
    vUT, vUS, vGO, vKO, CL = 68, 69, 70, 71, 72
    a(f"""s_and_b32 s{sT0}, s{sWv}, 1
s_lshr_b32 s{sT1}, s{sWv}, 1
s_lshl_b32 s{sT1}, s{sT1}, 1
s_add_u32 s{sT1}, s{sT1}, s{sT0}
s_lshl_b32 s38, s{sHG}, 2
s_add_u32 s38, s38, s{sT1}
s_lshl_b32 s{sKVP}, s38, 16
s_lshl_b32 s{sT1}, s{sRB}, 8
s_add_u32 s{sKVP}, s{sKVP}, s{sT1}
s_add_u32 s{sKVP}, s{sKVP}, {KVP}
s_lshl_b32 s{sZP}, s38, 12
s_lshl_b32 s{sT1}, s{sRB}, 7
s_add_u32 s{sZP}, s{sZP}, s{sT1}
s_add_u32 s{sZP}, s{sZP}, {ZP}
s_lshl_b32 s{sOP}, s{sRB}, 16
s_lshl_b32 s{sT0}, s{sT0}, 15
s_add_u32 s{sOP}, s{sOP}, s{sT0}
s_lshl_b32 s{sT0}, s{sHG}, 12
s_add_u32 s{sOP}, s{sOP}, s{sT0}
s_and_b32 s{sT0}, s{sWv}, 2
s_lshl_b32 s{sT0}, s{sT0}, 10
s_add_u32 s{sOP}, s{sOP}, s{sT0}
s_add_u32 s{sOP}, s{sOP}, {OO}
s_lshr_b32 s{sT0}, s{sCP}, 3
s_lshl_b32 s{sKF}, s{sT0}, 11
s_add_u32 s{sKF}, s{sKF}, {KVF}
s_and_b32 s{sT0}, s{sRB}, 7
s_lshl_b32 s{sT0}, s{sT0}, 7
s_cmp_eq_u32 s{sWv}, 0
s_cselect_b32 s{sT0}, s{sT0}, 1024
s_add_u32 s{sKF}, s{sKF}, s{sT0}
s_add_u32 s39, s{sKVP}, 32768
v_lshrrev_b32 v20, 4, v0
v_and_b32 v21, 15, v0
v_lshlrev_b32 v21, 4, v21
v_lshl_add_u32 v{vKO}, v20, 13, v21
v_mov_b32 v{CL}, -1
v_mov_b32 v{CL+1}, -1
v_mov_b32 v{CL+2}, -1
v_mov_b32 v{CL+3}, -1
""")
    if 'noclr' not in OPT: a(f"""buffer_store_dwordx4 {vr(CL,4)}, v{vKO}, {sr(SWS,4)}, s{sKVP} offen {SC}
buffer_store_dwordx4 {vr(CL,4)}, v{vKO}, {sr(SWS,4)}, s39 offen {SC}
buffer_store_dwordx4 {vr(CL,4)}, v{vLIN}, {sr(SWS,4)}, s{sOP} offen {SC}
buffer_store_dwordx4 {vr(CL,4)}, v{vLIN}, {sr(SWS,4)}, s{sOP} offen offset:1024 {SC}""")
    a(f"""s_mov_b64 exec, 0xff
buffer_store_dwordx4 {vr(CL,4)}, v{vLIN}, {sr(SWS,4)}, s{sZP} offen {SC}""")
    a(f"""s_and_b32 s{sT0}, s{sRB}, 7
s_cmp_eq_u32 s{sT0}, 0
s_cselect_b32 s{sPC}, 1, 2
s_cmp_eq_u32 s{sWv}, 1
s_cselect_b32 s{sPC}, s{sPC}, 2
s_cmp_eq_u32 s{sWv}, 0
s_cselect_b32 s{sPC}, 0, s{sPC}
s_cselect_b32 exec_lo, 0xff, 0xf
s_cmp_eq_u32 s{sPC}, 2
s_cselect_b32 s{sT0}, s{sZP}, s{sKF}
buffer_store_dwordx4 {vr(CL,4)}, v{vLIN}, {sr(SWS,4)}, s{sT0} offen {SC}
s_mov_b64 exec, -1""")
    a(f"""v_and_b32 v20, 31, v0
v_lshrrev_b32 v21, 5, v0
v_bfe_u32 v22, v0, 1, 3
v_xor_b32 v22, v22, v21
v_lshlrev_b32 v22, 4, v22
v_lshl_add_u32 v22, v20, 7, v22
s_and_b32 s{sT0}, s{sWv}, 1
s_lshl_b32 s{sT0}, s{sT0}, 12
v_add_u32 v{vXA}, s{sT0}, v22""")
    for ks in range(1, 4): a(f"v_xor_b32 v{vXA+ks}, {32*ks}, v{vXA}")
    a(f"""v_bfe_u32 v22, v0, 2, 2
v_lshl_add_u32 v23, v21, 3, v22
v_lshlrev_b32 v23, 7, v23
v_and_b32 v24, 1, v0
v_lshl_add_u32 v23, v24, 3, v23
v_bfe_u32 v24, v0, 1, 1
v_bfe_u32 v25, v0, 3, 1
v_bfe_u32 v26, v0, 4, 1
s_lshr_b32 s{sT0}, s{sWv}, 1
s_lshl_b32 s{sT0}, s{sT0}, 2
v_lshl_add_u32 v27, v26, 1, v24
v_add_u32 v27, s{sT0}, v27
v_lshlrev_b32 v28, 2, v25
v_xor_b32 v27, v27, v28
v_lshl_add_u32 v{vWA}, v27, 4, v23
v_add_u32 v{vWA+1}, 0x10000, v{vWA}""")
    a(f"""v_lshrrev_b32 v26, 4, v0
v_lshl_add_u32 v27, v26, 4, v22
v_lshlrev_b32 v27, 7, v27
v_and_b32 v28, 1, v0
v_lshl_add_u32 v27, v28, 3, v27
s_lshl_b32 s{sT0}, s{sWv}, 1
v_add_u32 v28, s{sT0}, v24
v_xor_b32 v28, v28, v25
v_lshl_add_u32 v{vUT}, v28, 4, v27
v_lshlrev_b32 v27, 14, v22
v_lshl_add_u32 v27, v26, 6, v27
v_and_b32 v28, 3, v0
v_lshl_add_u32 v{vUS}, v28, 4, v27
v_lshlrev_b32 v{vGO}, 2, v0
s_lshl_b32 s{sT0}, s{sHG}, 18
s_lshl_b32 s{sT1}, s{sWv}, 16
s_add_u32 s{sT0}, s{sT0}, s{sT1}
s_lshl_b32 s{sT1}, s{sRB}, 8
s_add_u32 s52, s{sT0}, s{sT1}
s_add_u32 s52, s52, {UT2}
s_add_u32 s53, s52, 8192
s_lshl_b32 s{sT0}, s{sHG}, 13
s_add_u32 s{sT0}, s{sT0}, s{sT1}
s_and_b32 s{sT1}, s{sWv}, 1
s_lshl_b32 s{sT1}, s{sT1}, 7
s_add_u32 s{sT0}, s{sT0}, s{sT1}
s_add_u32 s54, s{sT0}, {GP}
v_lshlrev_b32 v27, 8, v26
v_lshl_add_u32 v27, v0, 2, v27
v_add_u32 v{vFLR}, {FLB}, v27""")
    def wread_l(u, b):
        s = SLOT[u]
        ad, off = (vWA, 8192*s) if s < 8 else (vWA+1, 8192*(s-8))
        return [f"ds_read_b64_tr_b16 {vr(WF[b]+4*ks+2*t,2)}, v{ad} offset:{off+2048*ks+512*t}" for ks in range(4) for t in range(2)]
    def wreads(u, b):
        for l in wread_l(u, b): a(l)
    def reads_k(i):
        s = SLOT[2*i]
        if i == 4:
            for ks in range(4): a(f"v_add_u32 v{vXA+ks}, 0x10000, v{vXA+ks}")
        if i == 7:
            for ks in range(4): a(f"v_add_u32 v{vXA+ks}, 0xffff0000, v{vXA+ks}")
        w = wread_l(2*i+1, i & 1)
        r = []
        for ks in range(4):
            r += [f"ds_read_b128 {vr(XQ+16*i+4*ks,4)}, v{vXA+ks} offset:{8192*(s&7)}", w[2*ks], w[2*ks+1]]
        return r
    def mf(acc, i, b, ks, swap=False):
        c = "0" if (i == 0 and ks == 0) else vr(acc,16)
        x, w = vr(XQ+16*i+4*ks,4), vr(WF[b]+4*ks,4)
        return f"v_mfma_f32_32x32x16_bf16 {vr(acc,16)}, {x if swap else w}, {w if swap else x}, {c}"
    if 'wb' in OPT:
        pads.warm(a, 'B1', 4, 'WR_B1', sWv)
    a.vmwait("u1")
    stamp(a, 3)
    a(f"""v_readfirstlane_b32 s{sN}, v1
v_mov_b32 v20, {NW}
s_mul_i32 s{sN}, s{sN}, {LCG_A:#x}
s_add_u32 s{sN}, s{sN}, {LCG_C:#x}
v_mov_b32 v21, s{sN}
ds_write_b32 v20, v21""")
    sy.signal(1); sy.poll(vFLR); sy.check(1, vFLR)
    UX, UO = 100, 108
    for i in range(8):
        fine = ('fine' in OPT and i in (3, 4))
        FI = int(os.environ.get('FI', '3'))
        fine = ('fine' in OPT and i in (FI, FI+1))
        fb = 4 if i == FI else 11
        if fine and i == FI: stamp(a, fb)
        if i < 7:
            a.vmwait(f"u{2*i+3}")
            if fine: stamp(a, fb+1)
            sy.signal(i+2); sy.poll(vFLR)
        if i == 0:
            for Y in range(2):
                for tt in range(2):
                    sw = 4*Y+2*tt
                    if sw == 0: ad = vUT
                    else:
                        a(f"v_xor_b32 v76, {16*sw}, v{vUT}"); ad = 76
                    a(f"ds_read_b64_tr_b16 {vr(UX+4*Y+2*tt,2)}, v{ad} offset:{(8*Y+4*tt)*128}")
        rd = reads_k(i)
        dm = dma_ops(D0+i)
        if D0+i == 8: a(f"v_add_u32 v{vWD}, 1024, v{vWD}\nv_add_u32 v{vWD1}, 1024, v{vWD1}")
        if i > 0: a(f"s_waitcnt lgkmcnt({2 if i < 7 else 0})")
        if fine: stamp(a, fb+2)
        if i == 7:
            for l in rd: a(l)
        for ks in range(4):
            if i > 0: a(mf(ACCK, i-1, (i-1) & 1, ks))
            if i < 7:
                for l in rd[3*ks:3*ks+3]: a(l)
            dm[ks]()
            if fine and i == FI: stamp(a, 7+ks)
        if i == 5:
            a(f"""v_lshrrev_b32 v76, 5, v0
v_bfe_u32 v77, v0, 2, 2
v_lshl_add_u32 v76, v76, 2, v77
v_lshlrev_b32 v76, 5, v76
v_bfe_u32 v77, v0, 4, 1
v_lshl_add_u32 v76, v77, 4, v76
v_bfe_u32 v77, v0, 1, 1
v_lshl_add_u32 v76, v77, 3, v76
s_and_b32 s{sT0}, s{sWv}, 2
s_lshl_b32 s{sT0}, s{sT0}, 9
s_add_u32 s{sT0}, s{sT0}, {PHI}
v_add_u32 v76, s{sT0}, v76""")
            for q in range(4): a(f"ds_read_b64_tr_b16 {vr(WP+2*q,2)}, v76 offset:{256*q}")
        if i < 7:
            sy.check(i+2, vFLR, n=(12 if i not in (0, 5) else 15))
            if i in (0, 2, 4, 6) and 'fine' not in OPT: stamp(a, 4+i//2)
            if fine: stamp(a, 11 if i == FI else 14)
        if i == 0:
            a("s_waitcnt lgkmcnt(0)")
            a(f"s_mov_b32 vcc_lo, 0x33333333\ns_mov_b32 vcc_hi, 0x33333333")
            for j in range(4):
                a(f"v_cndmask_b32_dpp v{UO+j}, v{UX+4+j}, v{UX+j}, vcc quad_perm:[2,3,0,1] row_mask:0xf bank_mask:0xf")
            a("s_not_b64 vcc, vcc")
            for j in range(4):
                a(f"v_cndmask_b32_dpp v{UO+4+j}, v{UX+j}, v{UX+4+j}, vcc quad_perm:[2,3,0,1] row_mask:0xf bank_mask:0xf")
            if 'nout' not in OPT:
                a(f"buffer_store_dwordx4 {vr(UO,4)}, v{vUS}, {sr(SWS,4)}, s52 offen {SC}")
                a(f"buffer_store_dwordx4 {vr(UO+4,4)}, v{vUS}, {sr(SWS,4)}, s53 offen {SC}")
            a(f"v_mov_b32 v76, 0")
            for ks in range(4):
                for j in range(4):
                    a(f"v_dot2c_f32_bf16 v76, v{XQ+4*ks+j}, v{GW+4*ks+j}")
            a(f"""v_mov_b32 v77, v76
v_permlane32_swap_b32 v76, v77
v_add_f32 v76, v76, v77
v_mov_b32_dpp v77, v76 quad_perm:[1,1,1,1] row_mask:0xf bank_mask:0xf
v_mov_b32_dpp v78, v76 quad_perm:[2,2,2,2] row_mask:0xf bank_mask:0xf
v_mov_b32_dpp v79, v76 quad_perm:[3,3,3,3] row_mask:0xf bank_mask:0xf
s_mov_b64 exec, 0x11111111
buffer_store_dwordx4 v[76:79], v{vGO}, {sr(SWS,4)}, s54 offen {SC}
s_mov_b64 exec, -1""")
        if i == 4:
            LR = a.label('BR')
            a(f"""s_cmp_lg_u32 s{sWv}, 3
s_cbranch_scc1 {LR}
s_lshl_b32 s{sT0}, s{sCP}, 7
s_add_u32 s{sT0}, s{sT0}, {RDY}
v_mov_b32 v76, s{sN}
v_mov_b32 v77, 0
s_mov_b64 exec, 1""")
            a.grp = 'w3'
            a(f"buffer_store_dword v76, v77, {sr(SWS,4)}, s{sT0} offen {SC}")
            a.grp = None
            a(f"s_mov_b64 exec, -1\n{LR}:")
    vZW, vEW = 14, 15
    a(f"""v_bfe_u32 v76, v0, 2, 1
v_lshrrev_b32 v77, 5, v0
v_cmp_eq_u32 vcc, v76, v77
v_and_b32 v78, 1, v0
v_lshlrev_b32 v78, 4, v78
v_mov_b32 v79, 0x3f80
v_lshlrev_b32 v79, v78, v79
v_cndmask_b32 v79, 0, v79, vcc
v_bfe_u32 v78, v0, 3, 2
v_bfe_u32 v80, v0, 1, 1
v_lshl_add_u32 v80, v78, 1, v80""")
    for j in range(8):
        a(f"v_cmp_eq_u32 vcc, {j}, v80")
        a(f"v_cndmask_b32 v{(B1+j) if j < 4 else (B2+j-4)}, 0, v79, vcc")
    a(f"""v_lshlrev_b32 v80, 31, v76
v_lshrrev_b32 v81, 16, v80
v_or_b32 v80, v80, v81""")
    for j in range(8): a(f"v_xor_b32 v{WP+j}, v80, v{WP+j}")
    a(f"""v_lshlrev_b32 v76, 6, v76
v_lshl_add_u32 v76, v78, 4, v76
v_and_b32 v79, 3, v0
v_lshl_add_u32 v76, v79, 2, v76
v_lshl_add_u32 v76, v77, 7, v76
s_and_b32 s{sT0}, s{sWv}, 2
s_lshl_b32 s{sT0}, s{sT0}, 9
s_and_b32 s{sT1}, s{sWv}, 1
s_lshl_b32 s{sT1}, s{sT1}, 8
s_add_u32 s{sT0}, s{sT0}, s{sT1}
s_add_u32 s{sT0}, s{sT0}, {ZEX}
v_add_u32 v{vZW}, s{sT0}, v76
v_and_b32 v76, 7, v0
v_lshlrev_b32 v77, 2, v77
v_xor_b32 v76, v76, v77
v_lshlrev_b32 v76, 4, v76
v_and_b32 v77, 31, v0
v_lshl_add_u32 v76, v77, 7, v76
s_lshl_b32 s{sT0}, s{sWv}, 12
s_add_u32 s{sT0}, s{sT0}, {EXB}
v_add_u32 v{vEW}, s{sT0}, v76
s_waitcnt lgkmcnt(0)""")
    for ks in range(4): a(mf(ACCK, 7, 1, ks))
    stampx(a, 8)
    f = Asm()
    KB, PK = ACCK, [ACCK+8, ACCK]
    for j in range(8): f(f"v_cvt_pk_bf16_f32 v{KB+j}, v{ACCK+2*j}, v{ACCK+2*j+1}")
    for h in range(2): f(f"v_mfma_f32_32x32x16_bf16 {vr(P[h],16)}, {vr(WP+4*h,4)}, {vr(KB+4*h,4)}, 0")
    for h in range(2):
        softmax16(f, P[h], PK[h], T, sL, pk=False)
        f(f"v_mfma_f32_32x32x16_bf16 {vr(P[h],16)}, {vr(PK[h],4)}, {vr(B1,4)}, 0")
        f(f"v_mfma_f32_32x32x16_bf16 {vr(P[h],16)}, {vr(PK[h]+4,4)}, {vr(B2,4)}, {vr(P[h],16)}")
    for h in range(2):
        sum16(f, P[h], T, False)
        f(f"ds_write_b32 v{vZW}, v{T} offset:{512*h}")
        for j in range(8): f(f"v_cvt_pk_bf16_f32 v{P[h]+j}, v{P[h]+2*j}, v{P[h]+2*j+1}")
    for j in range(16): f(f"v_mov_b32 v{ACCK+j}, 0")
    bg = []
    def sig(j, wait):
        def g():
            a("s_waitcnt lgkmcnt(0)")
            if wait: a.vmwait(wait)
            sy.signal(j); sy.poll(vFLR)
        return g
    bg.append((0, sig(9, "u17")))
    def first():
        sy.check(9, vFLR); wreads(16, 0); wreads(17, 1)
    bg.append((22, first))
    G = 6
    for st in range(4):
        ua = 16+2*st
        if st < 3: bg.append((30 if st == 0 else 12, sig(10+st, f"u{ua+3}")))
        else: bg.append((12, lambda: a("s_waitcnt lgkmcnt(0)")))
        for ks in range(4): bg.append((G if ks else 0, lambda ks=ks, ua=ua: a(mf(ACCV, ua-16, 0, ks, True))))
        if st < 3:
            bg.append((G, lambda st=st, ua=ua: (sy.check(10+st, vFLR), wreads(ua+2, 0))))
        for ks in range(4): bg.append((G if (ks or st == 3) else 0, lambda ks=ks, ua=ua: a(mf(ACCV, ua-15, 1, ks, True))))
        if st < 3: bg.append((0, lambda ua=ua: wreads(ua+3, 1)))
    weave(a, f.L, bg)
    stampx(a, 9)
    VB, KV = [ACCK, ACCK+8], WF[0]
    for h in range(2):
        m = "0x0000ffff" if h == 0 else "0xffff0000"
        a(f"s_mov_b32 exec_lo, {m}\ns_mov_b32 exec_hi, {m}")
        for j in range(8): a(f"v_cvt_pk_bf16_f32 v{VB[h]+j}, v{ACCV+2*j}, v{ACCV+2*j+1}")
    a("s_mov_b64 exec, -1")
    for h in range(2):
        for q in range(2):
            c = "0" if (h == 0 and q == 0) else vr(KV,16)
            a(f"v_mfma_f32_32x32x16_bf16 {vr(KV,16)}, {vr(P[h]+4*q,4)}, {vr(VB[h]+4*q,4)}, {c}")
    vER, vZR, vKO = 36, 37, 38
    a(f"""v_lshrrev_b32 v40, 3, v0
v_and_b32 v41, 7, v0
v_xor_b32 v42, v40, v41
v_lshlrev_b32 v42, 4, v42
v_lshl_add_u32 v42, v40, 7, v42
s_and_b32 s{sT0}, s{sWv}, 2
s_lshl_b32 s{sT0}, s{sT0}, 12
s_and_b32 s{sT1}, s{sWv}, 1
s_lshl_b32 s{sT1}, s{sT1}, 11
s_add_u32 s{sT0}, s{sT0}, s{sT1}
s_add_u32 s{sT0}, s{sT0}, {EXB}
v_add_u32 v{vER}, s{sT0}, v42
s_lshl_b32 s{sT0}, s{sWv}, 9
s_add_u32 s{sT0}, s{sT0}, {ZEX}
v_lshlrev_b32 v41, 4, v41
v_add_u32 v{vZR}, s{sT0}, v41
v_lshrrev_b32 v40, 4, v0
v_and_b32 v41, 15, v0
v_lshlrev_b32 v41, 4, v41
v_lshl_add_u32 v{vKO}, v40, 13, v41
v_xor_b32 v40, 16, v{vEW}
v_xor_b32 v41, 32, v{vEW}
v_xor_b32 v42, 48, v{vEW}""")
    for q in range(4):
        a(f"ds_write_b128 v{vEW if q == 0 else 39+q}, {vr(KV+4*q,4)}")
    sy.signal(13); sy.poll(vFLR); sy.check(13, vFLR)
    E = ACCV
    for u in range(2):
        for s in range(2):
            a(f"ds_read_b128 {vr(E+8*u+4*s,4)}, v{vER} offset:{4096*s+1024*u}")
    Z = P[0]
    for p in range(4): a(f"ds_read_b128 {vr(Z+4*p,4)}, v{vZR} offset:{128*p}")
    for u in range(2):
        a(f"s_waitcnt lgkmcnt({6-2*u})")
        for j in range(2): a(f"v_pk_add_f32 {vr(E+8*u+2*j,2)}, {vr(E+8*u+2*j,2)}, {vr(E+8*u+4+2*j,2)}")
        a(f"buffer_store_dwordx4 {vr(E+8*u,4)}, v{vKO}, {sr(SWS,4)}, s{sKVP if u == 0 else 39} offen {SC}")
    a("s_waitcnt lgkmcnt(0)")
    for j in range(2):
        a(f"v_pk_add_f32 {vr(Z+2*j,2)}, {vr(Z+2*j,2)}, {vr(Z+4+2*j,2)}")
        a(f"v_pk_add_f32 {vr(Z+8+2*j,2)}, {vr(Z+8+2*j,2)}, {vr(Z+12+2*j,2)}")
    for j in range(2): a(f"v_pk_add_f32 {vr(Z+2*j,2)}, {vr(Z+2*j,2)}, {vr(Z+8+2*j,2)}")
    a(f"s_mov_b64 exec, 0xff\nbuffer_store_dwordx4 {vr(Z,4)}, v{vLIN}, {sr(SWS,4)}, s{sZP} offen {SC}\ns_mov_b64 exec, -1")
    stampx(a, 10)
    vWO, vFA, vFL = 16, 14, 1
    sWB = 55
    def g23(fn):
        L = a.label('BG')
        a(f"s_cmp_lt_u32 s{sWv}, 2\ns_cbranch_scc1 {L}")
        a.grp = 'g23'; fn(); a.grp = None
        a(f"{L}:")
    def g01(fn):
        L = a.label('BG')
        a(f"s_cmp_ge_u32 s{sWv}, 2\ns_cbranch_scc1 {L}")
        a.grp = 'g01'; fn(); a.grp = None
        a(f"{L}:")
    def dma_wo(j):
        for t in range(4):
            a(f"s_add_u32 m0, s{sM}, {8192*WOSLOT[j]+1024*t}\ns_add_u32 s{sT1}, s{sWB}, {32768*j+4096*t}")
            a(f"buffer_load_dwordx4 v{vWO}, {sr(SWO,4)}, s{sT1} offen lds")
        a.tag(f"wo{j}")
    def wo_setup():
        a(f"""v_lshrrev_b32 v40, 4, v0
v_lshlrev_b32 v41, 2, v40
v_and_b32 v42, 15, v0
v_xor_b32 v41, v41, v42
v_lshlrev_b32 v41, 4, v41
v_lshl_add_u32 v{vWO}, v40, 10, v41
s_and_b32 s{sT0}, s{sWv}, 1
s_lshl_b32 s{sM}, s{sT0}, 12
s_lshl_b32 s{sWB}, s{sT0}, 14
s_lshr_b32 s{sT0}, s{sHG}, 1
s_lshl_b32 s{sT0}, s{sT0}, 8
s_add_u32 s{sWB}, s{sWB}, s{sT0}""")
        for j in range(4): dma_wo(j)
    g23(wo_setup)
    FLOAD = f"buffer_load_dword v{vFL}, v{vFA}, {sr(SWS,4)}, s56 offen {SC}"
    def fl_setup():
        a(f"""v_and_b32 v40, 7, v0
v_lshlrev_b32 v40, 5, v40
v_add_u32 v40, s{sRB}, v40
s_lshl_b32 s{sT0}, s{sHG}, 5
v_add_u32 v41, s{sT0}, v0
s_mov_b64 vcc, 0xffffffff
v_cndmask_b32 v40, v40, v41, vcc
v_lshlrev_b32 v{vFA}, 7, v40
s_mov_b32 s56, {RDY}""")
        a(FLOAD)
    g01(fl_setup)
    sy.poll(vFLR, 1024); sy.check(3, vFLR, 1024)
    stampx(a, 11)
    wreads(24, 0); wreads(25, 1)
    WOREL = {0: (4,5), 1: (6,7), 2: (8,9), 3: (10,11,12,13)}
    for st in range(4):
        ua = 24+2*st
        a("s_waitcnt lgkmcnt(0)")
        if st == 3: g23(lambda: a.vmwait("wo1"))
        sy.signal(14+st); sy.poll(vFLR)
        for ks in range(4): a(mf(ACCK, ua-24, 0, ks))
        sy.check(14+st, vFLR)
        if st < 3: wreads(ua+2, 0)
        for ks in range(4): a(mf(ACCK, ua-23, 1, ks))
        if st < 3: wreads(ua+3, 1)
        g23(lambda: [dma_wo(j) for j in WOREL[st]])
    vOA = vWA
    a(f"""v_lshrrev_b32 v40, 5, v0
v_bfe_u32 v41, v0, 2, 2
v_lshl_add_u32 v40, v40, 2, v41
v_lshlrev_b32 v40, 8, v40
v_bfe_u32 v42, v0, 1, 1
v_lshl_add_u32 v40, v42, 3, v40
v_and_b32 v42, 1, v0
v_bfe_u32 v43, v0, 4, 1
v_lshl_add_u32 v42, v42, 1, v43
s_lshl_b32 s{sT0}, s{sWv}, 2
v_add_u32 v42, s{sT0}, v42
v_lshlrev_b32 v41, 2, v41
v_xor_b32 v42, v42, v41
v_lshl_add_u32 v{vOA}, v42, 4, v40
v_add_u32 v{vOA+1}, 0x10000, v{vOA}""")
    def woreads(j):
        s = WOSLOT[j]
        ad, off = (vOA, 8192*s) if s < 8 else (vOA+1, 8192*(s-8))
        for hh in range(2):
            for t in range(2):
                a(f"ds_read_b64_tr_b16 {vr(XQ+8*j+4*hh+2*t,2)}, v{ad} offset:{off+4096*hh+2048*t}")
    woreads(0); woreads(1)
    QB, PHQ = WF[0], ACCV
    for j in range(8): a(f"v_cvt_pk_bf16_f32 v{QB+j}, v{ACCK+2*j}, v{ACCK+2*j+1}")
    a("s_waitcnt lgkmcnt(0)")
    sy.signal(18)
    stampx(a, 12)
    R = P[0]; GPR = 36; vG = 124
    def qpost():
        for h in range(2):
            a(f"v_mfma_f32_32x32x16_bf16 {vr(P[h],16)}, {vr(WP+4*h,4)}, {vr(QB+4*h,4)}, 0")
        for h in range(2): softmax16(a, P[h], PHQ+8*h, T, sL)
    def path01():
        fpoll(a, 'B', FLOAD, vFL, sN, 57, first_issued=True)
        a(f"""v_lshrrev_b32 v40, 5, v0
v_and_b32 v41, 31, v0
v_lshlrev_b32 v41, 2, v41
v_lshl_add_u32 v40, v40, 15, v41
s_lshl_b32 s{sT0}, s{sRB}, 8
s_lshl_b32 s{sT1}, s{sWv}, 7
s_add_u32 s{sT0}, s{sT0}, s{sT1}
s_add_u32 s{sT0}, s{sT0}, {GP}""")
        for u in range(4):
            a(f"buffer_load_dword v{GPR+u}, v40, {sr(SWS,4)}, s{sT0} offen {SC}")
            if u < 3: a(f"s_add_u32 s{sT0}, s{sT0}, 8192")
        LZ, LD = a.label('BZ'), a.label('BD')
        a(f"s_cmp_lg_u32 s{sPC}, 0\ns_cbranch_scc1 {LZ}")
        a(f"s_lshl_b32 s58, s{sCP}, 13\ns_add_u32 s58, s58, {KVP}\ns_add_u32 s59, s58, 4096")
        gpoll(a, 'B', [f"buffer_load_dwordx4 {vr(R+4*t,4)}, v{vLIN}, {sr(SWS,4)}, s{58+(t>>2)} offen offset:{1024*(t&3)} {SC}" for t in range(8)],
              [R+4*t for t in range(8)], 40, 57)
        for t in range(4):
            for j in range(2): a(f"v_pk_add_f32 {vr(R+8*t+2*j,2)}, {vr(R+8*t+2*j,2)}, {vr(R+8*t+4+2*j,2)}")
        for t in (0, 16):
            for j in range(2): a(f"v_pk_add_f32 {vr(R+t+2*j,2)}, {vr(R+t+2*j,2)}, {vr(R+t+8+2*j,2)}")
        for j in range(2): a(f"v_pk_add_f32 {vr(R+2*j,2)}, {vr(R+2*j,2)}, {vr(R+16+2*j,2)}")
        def xred(ror):
            a(f"""v_permlane32_swap_b32 v{R}, v{R+2}
v_permlane32_swap_b32 v{R+1}, v{R+3}
v_add_f32 v{R}, v{R}, v{R+2}
v_add_f32 v{R+1}, v{R+1}, v{R+3}
v_mov_b32 v{R+2}, v{R}
v_mov_b32 v{R+3}, v{R+1}
v_permlane16_swap_b32 v{R}, v{R+2}
v_permlane16_swap_b32 v{R+1}, v{R+3}
v_add_f32 v{R}, v{R}, v{R+2}
v_add_f32 v{R+1}, v{R+1}, v{R+3}""")
            if ror:
                a(f"v_add_f32_dpp v{R}, v{R}, v{R} row_ror:8 row_mask:0xf bank_mask:0xf")
                a(f"v_add_f32_dpp v{R+1}, v{R+1}, v{R+1} row_ror:8 row_mask:0xf bank_mask:0xf")
            a(f"""v_cvt_pk_bf16_f32 v{R}, v{R}, v{R+1}
v_mov_b32 v{R+1}, v{R}
v_lshlrev_b32 v{R+4}, 3, v0
v_permlane32_swap_b32 v{R}, v{R+1}
v_mov_b32_dpp v{R+2}, v{R} quad_perm:[1,1,3,3] row_mask:0xf bank_mask:0xf
v_mov_b32_dpp v{R+3}, v{R+1} quad_perm:[1,1,3,3] row_mask:0xf bank_mask:0xf
s_mov_b64 exec, {'0x55' if ror else '0x5555'}
buffer_store_dwordx4 {vr(R,4)}, v{R+4}, {sr(SWS,4)}, s{sKF} offen {SC}
s_mov_b64 exec, -1""")
        xred(False)
        a(f"s_branch {LD}\n{LZ}:\ns_cmp_lg_u32 s{sPC}, 1\ns_cbranch_scc1 {LD}")
        a(f"s_lshr_b32 s58, s{sCP}, 3\ns_lshl_b32 s58, s58, 12\ns_add_u32 s58, s58, {ZP}")
        gpoll(a, 'B', [f"buffer_load_dwordx4 {vr(R+4*t,4)}, v{vLIN}, {sr(SWS,4)}, s58 offen offset:{1024*t} {SC}" for t in range(4)],
              [R+4*t for t in range(4)], 40, 57)
        for t in range(2):
            for j in range(2): a(f"v_pk_add_f32 {vr(R+8*t+2*j,2)}, {vr(R+8*t+2*j,2)}, {vr(R+8*t+4+2*j,2)}")
        for j in range(2): a(f"v_pk_add_f32 {vr(R+2*j,2)}, {vr(R+2*j,2)}, {vr(R+8+2*j,2)}")
        xred(True)
        a(f"{LD}:")
        stampx(a, 13)
    g01(path01)
    qpost()
    vGL = 125
    a(f"""v_and_b32 v{vGL}, 31, v0
v_lshlrev_b32 v{vGL}, 2, v{vGL}
s_and_b32 s{sT0}, s{sWv}, 1
s_lshl_b32 s{sT0}, s{sT0}, 7
s_add_u32 s{sT0}, s{sT0}, {GL}
v_add_u32 v{vGL}, s{sT0}, v{vGL}""")
    def gate01():
        x = GPR
        LG = a.label('BW')
        a(f"""s_waitcnt vmcnt(1)
s_cmp_lg_u32 s{sPC}, 2
s_cbranch_scc1 {LG}
s_waitcnt vmcnt(0)
{LG}:
v_add_f32 v{x}, v{x}, v{x+1}
v_add_f32 v{x+2}, v{x+2}, v{x+3}
v_add_f32 v{x}, v{x}, v{x+2}
v_mov_b32 v{x+1}, v{x}
v_permlane32_swap_b32 v{x}, v{x+1}
v_add_f32 v{x}, v{x}, v{x+1}
v_mul_f32 v{x}, s{sL}, v{x}
v_exp_f32 v{x}, v{x}
v_add_f32 v{x}, 1.0, v{x}
v_rcp_f32 v{vG}, v{x}
ds_write_b32 v{vGL}, v{vG}""")
        sy.signal(19)
    g01(gate01)
    def wo23():
        sy.poll(vFLR); sy.check(18, vFLR)
        dma_wo(14); dma_wo(15)
        a("s_waitcnt vmcnt(0)")
        sy.signal(19)
        sy.poll(vFLR); sy.check(19, vFLR, rows=3)
        a(f"ds_read_b32 v{vG}, v{vGL}")
    g23(wo23)
    KF = WF[0]
    a(f"""v_and_b32 v40, 31, v0
v_min_u32 v40, 16, v40
v_lshrrev_b32 v41, 5, v0
v_lshlrev_b32 v41, 5, v41
v_lshl_add_u32 v40, v40, 6, v41
s_lshl_b32 s58, s{sHG}, 13
s_and_b32 s{sT0}, s{sWv}, 2
s_lshl_b32 s{sT0}, s{sT0}, 11
s_add_u32 s58, s58, s{sT0}
s_add_u32 s58, s58, {KVF}
s_mov_b32 s59, {f2u(1e-6):#x}""")
    gpoll(a, 'B', [f"buffer_load_dwordx4 {vr(KF+4*t,4)}, v40, {sr(SWS,4)}, s58 offen offset:{2048*(t>>1)+16*(t&1)} {SC}" for t in range(4)],
          [KF+4*t for t in range(4)], 41, 57)
    stampx(a, 14)
    for h in range(2):
        a(f"v_mfma_f32_32x32x16_bf16 {vr(P[h],16)}, {vr(KF+8*h,4)}, {vr(PHQ+8*h,4)}, 0")
        a(f"v_mfma_f32_32x32x16_bf16 {vr(P[h],16)}, {vr(KF+8*h+4,4)}, {vr(PHQ+8*h+4,4)}, {vr(P[h],16)}")
    a("s_waitcnt lgkmcnt(0)")
    for h in range(2):
        d = P[h]+8
        a(f"v_add_f32 v{d}, s59, v{d}\nv_rcp_f32 v{d}, v{d}\nv_mul_f32 v{d}, v{d}, v{vG}")
        for j in range(4): a(f"v_pk_mul_f32 {vr(P[h]+2*j,2)}, {vr(P[h]+2*j,2)}, {vr(d,2)} op_sel_hi:[1,0]")
        for j in range(4): a(f"v_cvt_pk_bf16_f32 v{P[h]+j}, v{P[h]+2*j}, v{P[h]+2*j+1}")
        a(f"buffer_store_dwordx4 {vr(P[h],4)}, v{vLIN}, {sr(SWS,4)}, s{sOP} offen offset:{1024*h} {SC}")
    sy.poll(vFLR); sy.check(19, vFLR, rows=0xC)
    for j in range(2, 16): woreads(j)
    vOUT, vOBW = 14, 15
    a(f"""s_lshl_b32 s58, s{sRB}, 16
s_and_b32 s{sT0}, s{sHG}, 1
s_lshl_b32 s{sT0}, s{sT0}, 15
s_add_u32 s58, s58, s{sT0}
s_lshr_b32 s{sT1}, s{sHG}, 1
s_lshl_b32 s{sT1}, s{sT1}, 8
s_add_u32 s60, s58, s{sT1}
s_lshl_b32 s{sT1}, s{sWv}, 6
s_add_u32 s60, s60, s{sT1}
s_lshl_b32 s{sT1}, s{sWv}, 13
s_add_u32 s58, s58, s{sT1}
s_add_u32 s58, s58, {OO}
s_add_u32 s59, s58, 4096
s_add_u32 s{sT1}, s{sT1}, {OB}
v_add_u32 v{vOBW}, s{sT1}, v{vLIN}
v_and_b32 v40, 31, v0
v_lshrrev_b32 v41, 5, v0
v_lshlrev_b32 v41, 5, v41
v_lshl_add_u32 v{vOUT}, v40, 10, v41
s_lshl_b32 s{sT1}, s{sWv}, 12
s_add_u32 s{sT1}, s{sT1}, {ABASE}
v_add_u32 v16, s{sT1}, v{vLIN}
s_waitcnt lgkmcnt(0)""")
    sy.signal(20); sy.poll(vFLR)
    OR = P[0]
    gpoll(a, 'B', [f"buffer_load_dwordx4 {vr(OR+4*t,4)}, v{vLIN}, {sr(SWS,4)}, s{58+(t>>2)} offen offset:{1024*(t&3)} {SC}" for t in range(8)],
          [OR+4*t for t in range(8)], 40, 57)
    sy.check(20, vFLR)
    for t in range(8): a(f"ds_write_b128 v{vOBW}, {vr(OR+4*t,4)} offset:{1024*t}")
    a("s_waitcnt lgkmcnt(0)")
    stampx(a, 15)
    a("s_barrier")
    for q in range(4): a(f"ds_read_b128 {vr(ACCK+4*q,4)}, v16 offset:{1024*q}")
    NB, PF = 8, 6
    def brd(k): a(f"ds_read_b128 {vr(20+4*(k%NB),4)}, v{vLIN} offset:{OB+1024*k}")
    for k in range(PF): brd(k)
    for k in range(32):
        if k+PF < 32: brd(k+PF)
        a(f"s_waitcnt lgkmcnt({min(PF, 31-k)})")
        a(f"v_mfma_f32_32x32x16_bf16 {vr(ACCK,16)}, {vr(XQ+4*k,4)}, {vr(20+4*(k%NB),4)}, {vr(ACCK,16)}")
    for j in range(8): a(f"v_cvt_pk_bf16_f32 v{ACCV+j}, v{ACCK+2*j}, v{ACCK+2*j+1}")
    for q in range(2):
        a(f"buffer_store_dwordx4 {vr(ACCV+4*q,4)}, v{vOUT}, {sr(SOUT,4)}, s60 offen offset:{16*q}")
    if 'wb' in OPT: a("; WE B1")
    LE = a.label('BE')
    a(f"""s_or_b32 s{sT0}, s2, s{sWv}
s_cmp_lg_u32 s{sT0}, 0
s_cbranch_scc1 {LE}
s_mov_b32 s{sT0}, {GEN}
v_mov_b32 v40, s{sN}
v_mov_b32 v41, 0
s_mov_b64 exec, 1
buffer_store_dword v40, v41, {sr(SWS,4)}, s{sT0} offen {SC}
s_mov_b64 exec, -1
{LE}:""")
    if STAMPS:
        a("s_waitcnt vmcnt(0)")
        stamp(a, 2)
        dump_stamps(a, 16, KD, sWv)
```

```python
from asmlib import *
from lay3 import *
from km_b import srd, softmax16, sum16, Sync, weave, f2u, SPIN_G, LCG_A, LCG_C
from ka import lds_map
import os
OPT = set(os.environ.get("OPT","").split(","))
def P_(name, d): return int(os.environ.get(name, d))
SC = "sc1"

def sentinel_check(a, regs, vM, waits):
    first = True
    for (r, n), w in zip(regs, waits):
        if w is not None: a(f"s_waitcnt vmcnt({w})")
        if n == 4:
            if first: a(f"v_max_u32 v{vM}, v{r}, v{r+1}")
            else: a(f"v_max3_u32 v{vM}, v{vM}, v{r}, v{r+1}")
            a(f"v_max3_u32 v{vM}, v{vM}, v{r+2}, v{r+3}")
        else:
            if first: a(f"v_max_u32 v{vM}, v{r}, v{r+1}")
            else: a(f"v_max3_u32 v{vM}, v{vM}, v{r}, v{r+1}")
        first = False
    a(f"v_cmp_eq_u32 vcc, -1, v{vM}")

def spoll(a, pref, loads, regs, vM, sCnt, behind, sleep, per=1):
    R, L, D = a.label(pref+'R'), a.label(pref+'L'), a.label(pref+'D')
    n = len(regs)
    a(f"s_mov_b32 s{sCnt}, 0")
    if behind:
        sentinel_check(a, regs, vM, [behind+per*(n-1-i) for i in range(n)])
        a(f"s_cbranch_vccz {D}")
    else:
        a(f"s_branch {L}")
    a(f"{R}:")
    if sleep: a(f"s_sleep {sleep}")
    for l in loads: a.L.append(l)
    a(f"{L}:\ns_add_u32 s{sCnt}, s{sCnt}, 1")
    sentinel_check(a, regs, vM, [per*(n-1-i) for i in range(n)])
    a(f"s_cbranch_vccz {D}\ns_cmp_lt_u32 s{sCnt}, {SPIN_G}\ns_cbranch_scc1 {R}\n{D}:")

def kvp_addr(a, vKO, sWv, sHP, sRB, t0, t1, tv):
    a(f"""s_lshl_b32 s{t0}, s{sHP}, 15
s_lshl_b32 s{t1}, s{sWv}, 13
s_add_u32 s{t0}, s{t0}, s{t1}
s_lshl_b32 s{t1}, s{sRB}, 9
s_add_u32 s{t0}, s{t0}, s{t1}
s_add_u32 s{t0}, s{t0}, {KVP}
v_lshlrev_b32 v{tv}, 4, v0
v_add_u32 v{vKO}, s{t0}, v{tv}
s_lshl_b32 s{t0}, s{sHP}, 11
s_lshl_b32 s{t1}, s{sRB}, 7
s_add_u32 s{t0}, s{t0}, s{t1}
s_add_u32 s{t0}, s{t0}, {ZP}
v_and_b32 v{tv}, 0x70, v{tv}
v_add_u32 v{tv}, s{t0}, v{tv}
s_mov_b32 vcc_lo, 0
s_mov_b32 vcc_hi, -1
v_cndmask_b32 v{vKO}, v{vKO}, v{tv}, vcc""")

def gen_b(a, common):
    UZ = lds_map(ABASE)['UZ']
    SX, SW, SWS, SPH, SG, SWO, SOUT = 4, 8, 12, 16, 20, 40, 44
    sRB, sHP, sWv, sT0, sT1, sF, sXo, sM, sL = 24, 25, 26, 27, 28, 29, 30, 31, 32
    sOP, sEH, sEPS, sWO = 34, 35, 36, 37
    sN, sSP, sCP, sPC = 48, 49, 50, 51
    vG, vXA, vWA, vFLW, vFLR, T, vZW, vGA, vWD, vLIN, vJ, vP = 1, 2, 6, 8, 9, 10, 14, 15, 16, 17, 18, 19
    WF = [20, 36]; ACCK, ACCV, P, WP, B1, B2, XQ = 52, 68, [84, 100], 116, 124, 2, 128
    GACC, vXD, B2T = 68, 72, 76
    sy = Sync(a, vFLW, vJ, vP, sSP, 'B')
    AB = 512
    a("s_setprio 3")
    a("""s_load_dwordx2 s[4:5], s[0:1], 0
s_load_dwordx2 s[8:9], s[0:1], 64
s_load_dwordx2 s[16:17], s[0:1], 72
s_load_dwordx2 s[20:21], s[0:1], 88
s_load_dwordx2 s[12:13], s[0:1], 112
s_load_dwordx2 s[40:41], s[0:1], 80
s_load_dwordx2 s[44:45], s[0:1], 96""")
    common(a)
    srd(a, SX, 2097152); srd(a, SW, 1572864); srd(a, SWS, WS_BYTES); srd(a, SPH, 16384); srd(a, SG, 1024)
    srd(a, SWO, 524288); srd(a, SOUT, 2097152)
    a(f"s_mov_b32 s{sL}, {LOG2E}\ns_mov_b32 s{sL+1}, {LOG2E}\ns_mov_b32 s{sSP}, 0")
    a(f"""v_lshrrev_b32 v20, 3, v0
v_and_b32 v21, 7, v0
v_lshrrev_b32 v22, 4, v0
v_xor_b32 v23, v21, v22
v_lshlrev_b32 v23, 4, v23
v_lshl_add_u32 v23, v20, 10, v23
s_lshl_b32 s{sT0}, s{sRB}, 17
s_lshl_b32 s{sT1}, s{sWv}, 15
s_add_u32 s{sT0}, s{sT0}, s{sT1}
v_add_u32 v{vXD}, s{sT0}, v23
v_xor_b32 v{vXD+1}, 64, v{vXD}
v_add_u32 v{vXD+1}, 0x1c00, v{vXD+1}
v_add_u32 v{vXD+2}, 0x3800, v{vXD}
v_add_u32 v{vXD+3}, 0x3800, v{vXD+1}
v_lshrrev_b32 v20, 2, v0
v_and_b32 v21, 3, v0
v_lshlrev_b32 v21, 4, v21
s_mul_i32 s{sT0}, s{sWv}, {16*3072}
s_lshl_b32 s{sT1}, s{sHP}, 6
s_add_u32 s{sT0}, s{sT0}, s{sT1}
s_add_u32 s{sT0}, s{sT0}, 1024
v_mul_u32_u24 v20, 0xc00, v20
v_add3_u32 v{vWD}, v20, v21, s{sT0}
v_lshlrev_b32 v{vLIN}, 4, v0
s_lshl_b32 s{sM}, s{sWv}, 12
s_lshl_b32 s{sT0}, s{sF}, 7
v_add_u32 v20, s{sT0}, v{vLIN}
v_and_b32 v20, 0x3ff, v20
s_lshl_b32 s{sXo}, s{sF}, 7
s_lshl_b32 s{sT1}, s{sHP}, 10
s_waitcnt lgkmcnt(0)""")
    stamp(a, 1)
    a("s_barrier")
    L1, L2 = a.label('BP'), a.label('BP')
    a(f"s_cmp_eq_u32 s{sWv}, 0\ns_cbranch_scc0 {L1}\ns_mov_b32 m0, {PHI}")
    a.L.append(f"buffer_load_dwordx4 v{vLIN}, {sr(SPH,4)}, s{sT1} offen lds")
    a(f"{L1}:\ns_cmp_eq_u32 s{sWv}, 1\ns_cbranch_scc0 {L2}\ns_mov_b32 m0, {GATE}")
    a.L.append(f"buffer_load_dwordx4 v20, {sr(SG,4)}, 0 offen lds")
    a(f"{L2}:")
    def dX(i):
        so = sXo if i < 5 else 96+i-5
        def f(t):
            def g():
                if t == 0:
                    if 0 < i < 5: a(f"s_add_u32 s{sXo}, s{sXo}, 128\ns_and_b32 s{sXo}, s{sXo}, 0x3ff")
                    a(f"s_add_u32 m0, s{sM}, {S[XS[i]]}")
                a(f"buffer_load_dwordx4 v{vXD+t}, {sr(SX,4)}, s{so} offen offset:{1024*t} lds")
                if t == 3: a.tag(f"X{i}")
            return g
        return [f(t) for t in range(4)]
    def dW(sec, i):
        def g():
            if i == 0 and sec == 'v': a(f"v_add_u32 v{vWD}, 1024, v{vWD}")
            if i == 0 and sec == 'q': a(f"v_add_u32 v{vWD}, {(-2048) & 0xffffffff:#x}, v{vWD}")
            a(f"s_add_u32 m0, s{sM}, {S[WSL[sec][i>>2]]+1024*(i&3)}")
            a(f"buffer_load_dwordx4 v{vWD}, {sr(SW,4)}, s{16+i} offen lds")
            a.tag(f"{sec}{i}")
        return g
    vWO = [16, 15]
    def dO(j):
        def f(t):
            def g():
                if t == 0: a(f"s_add_u32 m0, s{sM}, {S[WOS[j]]+2048*(j&1)}\ns_mov_b32 s{sWO}, {65536*j}")
                a(f"buffer_load_dwordx4 v{vWO[t]}, {sr(SWO,4)}, s{sWO} offen offset:{1024*t} lds")
                if t == 1: a.tag(f"o{j}")
            return g
        return [f(0), f(1)]
    for g in dX(0): g()
    for i in range(8):
        a(f"s_add_u32 s{sT0}, s{sF}, {i}\ns_and_b32 s{sT0}, s{sT0}, 7\ns_mul_i32 s{16+i}, s{sT0}, 196608")
        if i >= 5: a(f"s_lshl_b32 s{96+i-5}, s{sT0}, 7")
        if i < 5: dW('k', i)()
    a(f"""v_and_b32 v20, 31, v0
v_lshrrev_b32 v21, 5, v0
v_bfe_u32 v22, v0, 1, 3
v_xor_b32 v22, v22, v21
v_lshlrev_b32 v22, 4, v22
v_lshl_add_u32 v22, v20, 7, v22
s_add_u32 s{sT0}, s{sM}, {S[2]}
v_add_u32 v{vXA}, s{sT0}, v22""")
    for ks in range(1, 4): a(f"v_xor_b32 v{vXA+ks}, {32*ks}, v{vXA}")
    a(f"""v_bfe_u32 v22, v0, 2, 2
v_bfe_u32 v23, v0, 4, 1
v_and_b32 v24, 3, v0
v_lshlrev_b32 v24, 3, v24
v_lshl_add_u32 v24, v23, 5, v24
v_lshl_add_u32 v24, v22, 6, v24
v_lshl_add_u32 v{vWA}, v21, 9, v24
v_add_u32 v{vWA+1}, 0x10000, v{vWA}
v_and_b32 v24, 1, v0
v_cmp_eq_u32 vcc, v24, v23
v_lshlrev_b32 v25, 4, v21
v_add_u32 v25, {GATE}, v25
v_mov_b32 v26, {UZ}
v_cndmask_b32 v{vGA}, v26, v25, vcc
v_lshrrev_b32 v25, 4, v0
v_lshlrev_b32 v25, 7, v25
v_lshl_add_u32 v25, v20, 2, v25
v_add_u32 v{vFLR}, {FL}, v25""")
    a(f"""v_bfe_u32 v26, v0, 2, 1
v_cmp_eq_u32 vcc, v26, v21
v_lshlrev_b32 v27, 4, v24
v_mov_b32 v28, 0x3f80
v_lshlrev_b32 v28, v27, v28
v_cndmask_b32 v28, 0, v28, vcc
v_bfe_u32 v27, v0, 3, 2
v_bfe_u32 v29, v0, 1, 1
v_lshl_add_u32 v30, v27, 1, v29""")
    for j in range(8):
        a(f"v_cmp_eq_u32 vcc, {j}, v30")
        a(f"v_cndmask_b32 v{(B1+j) if j < 4 else (B2T+j-4)}, 0, v28, vcc")
    a(f"""v_lshlrev_b32 v80, 31, v26
v_lshrrev_b32 v81, 16, v80
v_or_b32 v80, v80, v81
v_lshlrev_b32 v26, 6, v26
v_lshl_add_u32 v26, v27, 4, v26
v_and_b32 v28, 3, v0
v_lshl_add_u32 v26, v28, 2, v26
v_lshl_add_u32 v26, v21, 7, v26
s_add_u32 s{sT0}, s{sM}, {ZR}
v_add_u32 v{vZW}, s{sT0}, v26
v_lshl_add_u32 v26, v21, 2, v22
v_lshlrev_b32 v26, 5, v26
v_lshl_add_u32 v26, v23, 4, v26
v_lshl_add_u32 v26, v29, 3, v26
v_add_u32 v81, {PHI}, v26
s_lshl_b32 s{sT0}, s{sWv}, 7
s_add_u32 s{sT0}, s{sT0}, {GL}
v_lshlrev_b32 v82, 2, v20
v_add_u32 v82, s{sT0}, v82
s_lshl_b32 s{sOP}, s{sRB}, 17
s_lshl_b32 s{sT0}, s{sWv}, 15
s_add_u32 s{sOP}, s{sOP}, s{sT0}
s_lshl_b32 s{sT0}, s{sHP}, 11
s_add_u32 s{sOP}, s{sOP}, s{sT0}
s_add_u32 s{sOP}, s{sOP}, {OO}
s_cmp_eq_u32 s{sWv}, 0
s_cselect_b32 s{sEH}, 0xff, 0
s_mov_b32 s{sEPS}, {f2u(1e-6):#x}
s_lshl_b32 s52, s{sHP}, 15
s_lshl_b32 s{sT0}, s{sWv}, 13
s_add_u32 s52, s52, s{sT0}
s_add_u32 s52, s52, {KVP}
s_add_u32 s53, s52, 4096
s_lshl_b32 s54, s{sHP}, 11
s_lshl_b32 s{sT0}, s{sWv}, 9
s_add_u32 s54, s54, s{sT0}
s_add_u32 s54, s54, {ZP}
s_lshl_b32 s56, s{sRB}, 17
s_lshr_b32 s{sT0}, s{sHP}, 3
s_lshl_b32 s{sT0}, s{sT0}, 16
s_add_u32 s56, s56, s{sT0}
s_and_b32 s{sT0}, s{sHP}, 7
s_lshl_b32 s{sT0}, s{sT0}, 7
s_add_u32 s60, s56, s{sT0}
s_and_b32 s{sT0}, s{sWv}, 1
s_lshl_b32 s{sT0}, s{sT0}, 15
s_add_u32 s60, s60, s{sT0}
s_lshr_b32 s{sT0}, s{sWv}, 1
s_lshl_b32 s{sT0}, s{sT0}, 6
s_add_u32 s60, s60, s{sT0}
s_lshl_b32 s{sT0}, s{sWv}, 14
s_add_u32 s56, s56, s{sT0}
s_add_u32 s56, s56, {OO}
s_add_u32 s57, s56, 4096
s_add_u32 s58, s56, 8192
s_add_u32 s59, s56, 12288""")
    vGLW = 82
    a.vmwait("X0")
    sy.signal(1)
    stamp(a, 2)
    for i in range(5, 8): dW('k', i)()
    for i in range(1, 5):
        for g in dX(i): g()
    a.vmwait("k7")
    sy.signal(2); sy.poll(vFLR)
    stamp(a, 3)
    sy.check(2, vFLR)
    def wrd(sec, i, b):
        base = S[WSL[sec][i>>2]] + 1024*(i&3)
        r = []
        for ks in range(4):
            for t in range(2):
                off = base+4096*ks+256*t
                ad = vWA + (off >> 16)
                r.append(f"ds_read_b64_tr_b16 {vr(WF[b]+4*ks+2*t,2)}, v{ad} offset:{off & 0xffff}")
        return r
    def wreads(sec, i, b):
        for l in wrd(sec, i, b): a(l)
    GF = lambda i: P[i & 1] if i < 7 else WF[0]
    def grd(i): return [f"ds_read_b128 {vr(GF(i)+4*ks,4)}, v{vGA} offset:{128*i+32*ks}" for ks in range(4)]
    def mf(acc, i, b, ks, swap=False):
        c = "0" if (i == 0 and ks == 0) else vr(acc,16)
        x, w = vr(XQ+16*i+4*ks,4), vr(WF[b]+4*ks,4)
        return f"v_mfma_f32_32x32x16_bf16 {vr(acc,16)}, {x if swap else w}, {w if swap else x}, {c}"
    def gm(i, ks):
        c = "0" if (i == 0 and ks == 0) else vr(GACC,4)
        return f"v_mfma_f32_16x16x32_bf16 {vr(GACC,4)}, {vr(GF(i)+4*ks,4)}, {vr(XQ+16*i+4*ks,4)}, {c}"
    wreads('k', 0, 0)
    for l in grd(0): a(l)
    KD_ = {1: dX(5), 2: dX(6), 3: dX(7), 4: [dW('v',0)], 5: [dW('v',1), dW('v',2)], 6: [dW('v',3), dW('v',4)], 7: [dW('v',5), dW('v',6)]}
    for i in range(8):
        if i > 0: a.vmwait(f"X{i}")
        if i in (1, 4, 7): stamp(a, {1: 4, 4: 5, 7: 6}[i])
        if i == 1:
            for ks in range(4): a(f"v_add_u32 v{vXA+ks}, 0x4000, v{vXA+ks}")
        xo = 0 if i == 0 else S[XS[i]]-S[3]
        for ks in range(4): a(f"ds_read_b128 {vr(XQ+16*i+4*ks,4)}, v{vXA+ks} offset:{xo}")
        pre = []
        if i < 6: pre = wrd('k', i+1, (i+1) & 1) + grd(i+1)
        if i == 6: pre = wrd('k', 7, 1)
        n = 0
        for ks in range(4):
            a(f"s_waitcnt lgkmcnt({3-ks+n})")
            a(mf(ACCK, i, i & 1, ks))
            k = 3 if i < 6 else 2
            for l in pre[k*ks:k*ks+k]: a(l); n += 1
        dm = KD_.get(i, [])
        if i == 6:
            for l in grd(7): a(l)
        if i == 0:
            for q in range(4): a(f"ds_read_b64_tr_b16 {vr(WP+2*q,2)}, v81 offset:{256*q}")
        if i == 2:
            for j in range(8): a(f"v_xor_b32 v{WP+j}, v80, v{WP+j}")
        if i < 7:
            for ks in range(4):
                a(gm(i, ks))
                if ks < len(dm): dm[ks]()
        else:
            for g in dm: g()
            for j in range(4): a(f"v_mov_b32 v{B2+j}, v{B2T+j}")
    f = Asm()
    KB, PK = ACCK, [ACCK+8, ACCK]
    for j in range(8): f(f"v_cvt_pk_bf16_f32 v{KB+j}, v{ACCK+2*j}, v{ACCK+2*j+1}")
    for h in range(2): f(f"v_mfma_f32_32x32x16_bf16 {vr(P[h],16)}, {vr(WP+4*h,4)}, {vr(KB+4*h,4)}, 0")
    for h in range(2):
        softmax16(f, P[h], PK[h], T, sL, pk=False)
        f(f"v_mfma_f32_32x32x16_bf16 {vr(P[h],16)}, {vr(PK[h],4)}, {vr(B1,4)}, 0")
        f(f"v_mfma_f32_32x32x16_bf16 {vr(P[h],16)}, {vr(PK[h]+4,4)}, {vr(B2,4)}, {vr(P[h],16)}")
    for h in range(2):
        sum16(f, P[h], T, False)
        if h == 0: f(f"v_mov_b32 v{vGA}, v{T}")
        else: f(f"v_permlane32_swap_b32 v{vGA}, v{T}\nv_add_f32 v{T}, v{T}, v{vGA}\nds_write_b32 v{vZW}, v{T}")
        for j in range(8): f(f"v_cvt_pk_bf16_f32 v{P[h]+j}, v{P[h]+2*j}, v{P[h]+2*j+1}")
    for j in range(16): f(f"v_mov_b32 v{ACCK+j}, 0")
    vEW, vER, vKO = 2, 124, 126
    f(f"""v_bfe_u32 v{T}, v0, 1, 3
v_lshrrev_b32 v{T+1}, 5, v0
v_lshlrev_b32 v{T+1}, 2, v{T+1}
v_xor_b32 v{T}, v{T}, v{T+1}
v_lshlrev_b32 v{T}, 4, v{T}
v_and_b32 v{T+1}, 31, v0
v_lshl_add_u32 v{T}, v{T+1}, 7, v{T}
s_add_u32 s{sT0}, s{sM}, {EXB}
v_add_u32 v{vEW}, s{sT0}, v{T}
v_xor_b32 v{vEW+1}, 16, v{vEW}
v_xor_b32 v{vEW+2}, 32, v{vEW}
v_xor_b32 v{vEW+3}, 48, v{vEW}
v_and_b32 v{T}, 3, v0
v_lshlrev_b32 v{T+1}, 1, v{T}
v_bfe_u32 v{T+2}, v0, 3, 2
s_and_b32 s{sT0}, s{sWv}, 1
s_lshl_b32 s{sT0}, s{sT0}, 2
v_add_u32 v{T+2}, s{sT0}, v{T+2}
v_xor_b32 v{T+1}, v{T+1}, v{T+2}
v_lshlrev_b32 v{T+1}, 4, v{T+1}
v_lshrrev_b32 v{T+2}, 2, v0
v_lshl_add_u32 v{T+1}, v{T+2}, 7, v{T+1}
s_lshl_b32 s{sT0}, s{sWv}, 10
s_add_u32 s{sT0}, s{sT0}, {EXB}
v_add_u32 v{T+1}, s{sT0}, v{T+1}
v_and_b32 v{T+2}, 1, v{T+2}
v_lshlrev_b32 v{T+2}, 7, v{T+2}
v_lshl_add_u32 v{T+2}, v{T}, 5, v{T+2}
v_add_u32 v{T+2}, {ZR}, v{T+2}
s_mov_b32 vcc_lo, 0
s_mov_b32 vcc_hi, -1
v_cndmask_b32 v{vER}, v{T+1}, v{T+2}, vcc
v_xor_b32 v{vER+1}, 16, v{vER}""")
    fg = []
    i = 0
    while i < len(f.L):
        if f.L[i].startswith("s_mov_b32 vcc_lo"):
            fg.append("\n".join(f.L[i:i+3])); i += 3
        else:
            fg.append(f.L[i]); i += 1
    g2 = Asm(); kvp_addr(g2, vKO, sWv, sHP, sRB, sT0, sT1, T)
    fg += g2.L[:-3] + ["\n".join(g2.L[-3:])]
    print("kpost fg", len(fg))
    bg = []
    for ks in range(4): bg.append(((10 if ks == 0 else 4), lambda ks=ks: a(gm(7, ks))))
    bg.append((2, dW('v', 7)))
    def gatefin():
        a(f"""s_mov_b32 vcc_lo, 0xffff0000
s_mov_b32 vcc_hi, 0xffff0000
v_cndmask_b32 v{vG}, v{GACC}, v{GACC+1}, vcc
v_mul_f32 v{vG}, s{sL}, v{vG}
v_exp_f32 v{vG}, v{vG}
v_add_f32 v{vG}, 1.0, v{vG}
v_rcp_f32 v{vG}, v{vG}
ds_write_b32 v{vGLW}, v{vG}""")
    bg.append((4, gatefin))
    def sig(j, wait, q):
        def g():
            a.vmwait(wait)
            sy.signal(j); sy.poll(vFLR)
            for x in q: dW('q', x)()
        return g
    G = P_('KG', 5)
    bg.append((P_('KS3', 6), sig(3, "v1", [0])))
    def first():
        sy.check(3, vFLR); wreads('v', 0, 0); wreads('v', 1, 1)
        sy.poll(vFLR, AB)
    bg.append((P_('KC3', 14), first))
    for st in range(4):
        i0 = 2*st
        bg.append((P_('KW', 12) if st == 0 else G, lambda st=st: a(f"s_waitcnt lgkmcnt({9 if st == 0 else 8})")))
        for ks in range(4): bg.append((G if ks else 0, lambda ks=ks, i0=i0: a(mf(ACCV, i0, 0, ks, True))))
        if st == 0: bg.append((1, lambda: sy.check(1, vFLR, AB)))
        if st < 3:
            bg.append((G-1, sig(4+st, f"v{i0+3}", [1+2*st, 2+2*st])))
            bg.append((0, lambda: a("s_waitcnt lgkmcnt(2)")))
        else:
            bg.append((G, lambda: (dW('q', 7)(), a("s_waitcnt lgkmcnt(0)"))))
        for ks in range(3): bg.append((G if ks else 0, lambda ks=ks, i0=i0: a(mf(ACCV, i0+1, 1, ks, True))))
        if st < 3: bg.append((G, lambda st=st, i0=i0: (sy.check(4+st, vFLR), wreads('v', i0+2, 0))))
        bg.append((0 if st < 3 else G, lambda i0=i0: a(mf(ACCV, i0+1, 1, 3, True))))
        if st < 3: bg.append((0, lambda i0=i0: wreads('v', i0+3, 1)))
    print("kpost bg gap total", sum(g for g, _ in bg))
    weave(a, fg, bg)
    stamp(a, 7)
    VB, KV = [ACCK, ACCK+8], WF[0]
    for h in range(2):
        m = "0x0000ffff" if h == 0 else "0xffff0000"
        a(f"s_mov_b32 exec_lo, {m}\ns_mov_b32 exec_hi, {m}")
        for j in range(8): a(f"v_cvt_pk_bf16_f32 v{VB[h]+j}, v{ACCV+2*j}, v{ACCV+2*j+1}")
        if h == 0:
            a("s_mov_b64 exec, -1")
            for q in range(2):
                c = "0" if q == 0 else vr(KV,16)
                a(f"v_mfma_f32_32x32x16_bf16 {vr(KV,16)}, {vr(P[0]+4*q,4)}, {vr(VB[0]+4*q,4)}, {c}")
    a("s_mov_b64 exec, -1")
    for q in range(2):
        a(f"v_mfma_f32_32x32x16_bf16 {vr(KV,16)}, {vr(P[1]+4*q,4)}, {vr(VB[1]+4*q,4)}, {vr(KV,16)}")
    a(f"""v_lshrrev_b32 v{T}, 3, v0
v_and_b32 v{T+1}, 7, v0
v_bfe_u32 v{T+2}, v0, 4, 1
v_lshlrev_b32 v{T+2}, 2, v{T+2}
v_xor_b32 v{T+1}, v{T+1}, v{T+2}
v_lshlrev_b32 v{T+1}, 4, v{T+1}
v_lshl_add_u32 v{T}, v{T}, 10, v{T+1}
s_lshl_b32 s{sT0}, s{sWv}, 14
s_and_b32 s{sT1}, s{sHP}, 7
s_lshl_b32 s{sT1}, s{sT1}, 7
s_add_u32 s{sT0}, s{sT0}, s{sT1}
v_add_u32 v{vWO[0]}, s{sT0}, v{T}
v_add_u32 v{vWO[1]}, 0x1c00, v{vWO[0]}""")
    for q in range(4): a(f"ds_write_b128 v{vEW+q}, {vr(KV+4*q,4)}")
    sy.signal(7); sy.poll(vFLR); sy.check(7, vFLR)
    E = ACCK
    a(f"s_mov_b32 exec_hi, s{sEH}")
    for s in range(4):
        for g in range(2): a(f"ds_read_b128 {vr(E+8*s+4*g,4)}, v{vER+g} offset:{4096*s}")
    a("s_waitcnt lgkmcnt(4)")
    for j in range(4): a(f"v_pk_add_f32 {vr(E+2*j,2)}, {vr(E+2*j,2)}, {vr(E+8+2*j,2)}")
    a("s_waitcnt lgkmcnt(0)")
    for j in range(4): a(f"v_pk_add_f32 {vr(E+16+2*j,2)}, {vr(E+16+2*j,2)}, {vr(E+24+2*j,2)}")
    for j in range(4):
        a(f"v_pk_add_f32 {vr(E+2*j,2)}, {vr(E+2*j,2)}, {vr(E+16+2*j,2)}")
    for j in range(4): a(f"v_cvt_pk_bf16_f32 v{E+8+j}, v{E+2*j}, v{E+2*j+1}")
    a(f"buffer_store_dwordx4 {vr(E+8,4)}, v{vKO}, {sr(SWS,4)}, 0 offen {SC}")
    a("s_mov_b32 exec_hi, -1")
    stamp(a, 8)
    a.vmwait("q3")
    sy.signal(8); sy.poll(vFLR)
    od = [g for j in range(4) for g in dO(j)]
    for g in od[:2]: g()
    ID, vKW, vZW2, vKR, vZL = 2, 124, 125, 126, 14
    h = Asm()
    h(f"""v_bfe_u32 v{T}, v0, 3, 1
v_bfe_u32 v{T+1}, v0, 4, 1
v_cmp_eq_u32 vcc, v{T}, v{T+1}
v_and_b32 v{T}, 1, v0
v_lshlrev_b32 v{T}, 4, v{T}
v_mov_b32 v{T+2}, 0x3f80
v_lshlrev_b32 v{T+2}, v{T}, v{T+2}
v_cndmask_b32 v{T+2}, 0, v{T+2}, vcc
v_bfe_u32 v{T}, v0, 1, 2""")
    for j in range(4): h(f"v_cmp_eq_u32 vcc, {j}, v{T}\nv_cndmask_b32 v{ID+j}, 0, v{T+2}, vcc")
    for l in h.L: a(l)
    sy.check(8, vFLR)
    wreads('q', 0, 0); wreads('q', 1, 1)
    h = Asm()
    h(f"""v_lshrrev_b32 v{T}, 5, v0
s_and_b32 s{sT0}, s{sWv}, 1
s_lshl_b32 s{sT0}, s{sT0}, 1
v_add_u32 v{T}, s{sT0}, v{T}
v_and_b32 v{T+1}, 3, v0
v_xor_b32 v{T+2}, v{T+1}, v{T}
v_lshlrev_b32 v{T+2}, 4, v{T+2}
v_lshl_add_u32 v{T+2}, v{T}, 8, v{T+2}
v_bfe_u32 v{T+3}, v0, 2, 2
v_lshl_add_u32 v{T+2}, v{T+3}, 6, v{T+2}
v_bfe_u32 v{T+3}, v0, 4, 1
v_lshl_add_u32 v{T+2}, v{T+3}, 3, v{T+2}
s_lshr_b32 s{sT0}, s{sWv}, 1
s_lshl_b32 s{sT0}, s{sT0}, 11
s_add_u32 s{sT0}, s{sT0}, {KF}
v_add_u32 v{vKW}, s{sT0}, v{T+2}
v_xor_b32 v{T+1}, s{sWv}, v{T+1}
v_lshlrev_b32 v{T+1}, 4, v{T+1}
v_bfe_u32 v{T+2}, v0, 3, 2
v_lshl_add_u32 v{T+1}, v{T+2}, 6, v{T+1}
v_bfe_u32 v{T+2}, v0, 2, 1
v_lshl_add_u32 v{T+1}, v{T+2}, 11, v{T+1}
s_lshl_b32 s{sT0}, s{sWv}, 8
s_add_u32 s{sT0}, s{sT0}, {KF+1024}
v_add_u32 v{vZW2}, s{sT0}, v{T+1}
v_lshrrev_b32 v{T}, 5, v0
v_lshlrev_b32 v{T}, 1, v{T}
v_bfe_u32 v{T+1}, v0, 2, 2
v_xor_b32 v{T}, v{T}, v{T+1}
v_lshlrev_b32 v{T}, 4, v{T}
v_and_b32 v{T+1}, 31, v0
v_lshl_add_u32 v{T}, v{T+1}, 6, v{T}
v_add_u32 v{vKR}, {KF}, v{T}
v_xor_b32 v{vKR+1}, 16, v{vKR}
v_and_b32 v{vZL}, 0x1ff, v{vLIN}""")
    fill = h.L
    fi = 0
    oi = 2
    for i in range(8):
        b = i & 1
        a(f"s_waitcnt lgkmcnt({ {6: 9, 7: 1}.get(i, 8) })")
        for ks in range(4):
            a(mf(ACCK, i, b, ks))
            for l in fill[fi:fi+2]: a(l)
            fi += 2
            if ks == 1 and oi < len(od) and i >= 1: od[oi](); oi += 1
        if i == 1: wreads('q', 3, 1); a.vmwait("q7"); sy.signal(9); sy.poll(vFLR)
        elif i == 0: wreads('q', 2, 0)
        elif i == 2:
            sy.check(9, vFLR); wreads('q', 4, 0)
        elif i < 6: wreads('q', i+2, b)
        if i == 5: sy.poll(vFLR, AB)
    assert fi >= len(fill) and oi == len(od)
    stamp(a, 9)
    vOA = vWA
    a(f"""v_lshrrev_b32 v{T}, 5, v0
v_bfe_u32 v{T+1}, v0, 2, 2
v_lshl_add_u32 v{T}, v{T}, 2, v{T+1}
v_lshlrev_b32 v{T}, 7, v{T}
v_bfe_u32 v{T+2}, v0, 1, 1
v_lshl_add_u32 v{T}, v{T+2}, 3, v{T}
v_and_b32 v{T+2}, 1, v0
v_bfe_u32 v{T+3}, v0, 4, 1
v_lshl_add_u32 v{T+2}, v{T+2}, 1, v{T+3}
s_lshr_b32 s{sT0}, s{sWv}, 1
s_lshl_b32 s{sT0}, s{sT0}, 2
v_add_u32 v{T+2}, s{sT0}, v{T+2}
v_bfe_u32 v{T+3}, v0, 3, 1
v_lshlrev_b32 v{T+3}, 2, v{T+3}
v_xor_b32 v{T+2}, v{T+2}, v{T+3}
v_lshl_add_u32 v{vOA}, v{T+2}, 4, v{T}
v_add_u32 v{vOA+1}, 0x10000, v{vOA}""")
    sy.check(2, vFLR, AB)
    QB, PHQ, G1, SA = WF[0], ACCV, 28, 64
    for j in range(8): a(f"v_cvt_pk_bf16_f32 v{QB+j}, v{ACCK+2*j}, v{ACCK+2*j+1}")
    for hh in range(2): a(f"v_mfma_f32_32x32x16_bf16 {vr(P[hh],16)}, {vr(WP+4*hh,4)}, {vr(QB+4*hh,4)}, 0")
    g1l = [f"buffer_load_dwordx4 {vr(G1+4*t,4)}, v{vLIN}, {sr(SWS,4)}, s{52+(t>>2)} offen offset:{1024*(t&3)} {SC}" for t in range(8)]
    g1l.append(f"buffer_load_dwordx4 {vr(G1+32,4)}, v{vZL}, {sr(SWS,4)}, s54 offen {SC}")
    for l in g1l: a(l)
    f = Asm()
    for hh in range(2): softmax16(f, P[hh], PHQ+8*hh, T, sL, pk=('qnp' not in OPT))
    od = [g for j in range(4, 8) for g in dO(j)]
    weave(a, f.L, [(P_('QG', 12), g) for g in od])
    stamp(a, 10)
    spoll(a, 'BG', g1l, [(G1+4*t, 4) for t in range(9)], T, sPC, 8, P_('SL1', 3))
    stamp(a, 11)
    for t in range(8):
        a(f"v_mfma_f32_16x16x32_bf16 {vr(SA,4)}, {vr(ID,4)}, {vr(G1+4*t,4)}, {'0' if t == 0 else vr(SA,4)}")
        if t == 0: a(f"ds_write_b128 v{vZW2}, {vr(G1+32,4)}")
    a(f"""v_cvt_pk_bf16_f32 v{SA}, v{SA}, v{SA+1}
v_cvt_pk_bf16_f32 v{SA+1}, v{SA+2}, v{SA+3}
ds_write_b64 v{vKW}, {vr(SA,2)}""")
    sy.signal(10); sy.poll(vFLR); sy.check(10, vFLR)
    KR = 28
    for hh in range(2):
        for q in range(2): a(f"ds_read_b128 {vr(KR+8*hh+4*q,4)}, v{vKR+q} offset:{2048*hh}")
    for hh in range(2):
        a(f"s_waitcnt lgkmcnt({3-2*hh})")
        a(f"v_mfma_f32_32x32x16_bf16 {vr(P[hh],16)}, {vr(KR+8*hh,4)}, {vr(PHQ+8*hh,4)}, 0")
        a(f"s_waitcnt lgkmcnt({2-2*hh})")
        a(f"v_mfma_f32_32x32x16_bf16 {vr(P[hh],16)}, {vr(KR+8*hh+4,4)}, {vr(PHQ+8*hh+4,4)}, {vr(P[hh],16)}")
    for hh in range(2):
        d = P[hh]+8
        a(f"""v_pk_add_f32 {vr(d,2)}, {vr(d,2)}, {vr(d+2,2)}
v_pk_add_f32 {vr(d+4,2)}, {vr(d+4,2)}, {vr(d+6,2)}
v_pk_add_f32 {vr(d,2)}, {vr(d,2)}, {vr(d+4,2)}
v_add_f32 v{d}, v{d}, v{d+1}""")
    d0, d1 = P[0]+8, P[1]+8
    a(f"""v_permlane32_swap_b32 v{d0}, v{d1}
v_add_f32 v{d0}, v{d0}, v{d1}
v_add_f32 v{d0}, s{sEPS}, v{d0}
v_rcp_f32 v{d0}, v{d0}
v_mul_f32 v{d0}, v{d0}, v{vG}
v_mov_b32 v{d1}, v{d0}
v_permlane32_swap_b32 v{d0}, v{d1}""")
    for hh in range(2):
        d = P[hh]+8
        for j in range(4): a(f"v_pk_mul_f32 {vr(P[hh]+2*j,2)}, {vr(P[hh]+2*j,2)}, {vr(d,2)} op_sel_hi:[1,0]")
        for j in range(4): a(f"v_cvt_pk_bf16_f32 v{P[hh]+j}, v{P[hh]+2*j}, v{P[hh]+2*j+1}")
        a.L.append(f"buffer_store_dwordx4 {vr(P[hh],4)}, v{vLIN}, {sr(SWS,4)}, s{sOP} offen offset:{1024*hh} {SC}")
    stamp(a, 12)
    a("s_waitcnt vmcnt(2)")
    sy.signal(11); sy.poll(vFLR)
    def woreads(j):
        for w in range(4):
            for t in range(2):
                off = S[WOS[j]]+4096*w+2048*(j&1)+1024*t
                a(f"ds_read_b64_tr_b16 {vr(XQ+16*j+4*w+2*t,2)}, v{vOA+(off>>16)} offset:{off & 0xffff}")
    for j in range(4): woreads(j)
    sy.check(11, vFLR)
    for j in range(4, 8): woreads(j)
    vOUT, vOBW, vOBR, vGR = 14, 15, 16, 2
    a(f"""s_lshl_b32 s{sT0}, s{sWv}, 14
s_add_u32 s{sT0}, s{sT0}, {OB}
v_add_u32 v{vOBW}, s{sT0}, v{vLIN}
s_and_b32 s{sT0}, s{sWv}, 1
s_lshl_b32 s{sT0}, s{sT0}, 15
s_add_u32 s{sT0}, s{sT0}, {OB}
v_add_u32 v{vOBR}, s{sT0}, v{vLIN}
s_add_u32 s{sT0}, s{sM}, {ABASE}
v_add_u32 v{vGR}, s{sT0}, v{vLIN}
v_and_b32 v{T}, 31, v0
v_lshrrev_b32 v{T+1}, 5, v0
v_lshlrev_b32 v{T+1}, 5, v{T+1}
v_lshl_add_u32 v{vOUT}, v{T}, 10, v{T+1}
v_mov_b32 v{T}, {NW}
ds_read_b32 v3, v{T}
s_waitcnt lgkmcnt(0)""")
    sy.signal(12); sy.poll(vFLR)
    if P_('SL2F', 0): a(f"s_sleep {P_('SL2F', 0)}")
    H2 = 20
    h2l = [f"buffer_load_dwordx4 {vr(H2+4*t,4)}, v{vLIN}, {sr(SWS,4)}, s{56+(t>>2)} offen offset:{1024*(t&3)} {SC}" for t in range(16)]
    for l in h2l: a.L.append(l)
    stamp(a, 13)
    spoll(a, 'BH', h2l, [(H2+4*t, 4) for t in range(16)], T, sPC, 0, P_('SL2', 3))
    stamp(a, 14)
    sy.check(12, vFLR)
    for t in range(16): a(f"ds_write_b128 v{vOBW}, {vr(H2+4*t,4)} offset:{1024*t}")
    sy.signal(13); sy.poll(vFLR); sy.check(13, vFLR)
    NB, PF = 8, 6
    def brd(k): a(f"ds_read_b128 {vr(20+4*(k%NB),4)}, v{vOBR} offset:{1024*k}")
    for k in range(PF): brd(k)
    for k in range(32):
        if k+PF < 32: brd(k+PF)
        if k == 26: sy.poll(vFLR, AB)
        a(f"s_waitcnt lgkmcnt({min(PF, 31-k) + (1 if k >= 26 else 0)})")
        a(f"v_mfma_f32_32x32x16_bf16 {vr(ACCK,16)}, {vr(XQ+4*k,4)}, {vr(20+4*(k%NB),4)}, {'0' if k == 0 else vr(ACCK,16)}")
    sy.check(3, vFLR, AB)
    for q in range(4): a(f"ds_read_b128 {vr(ACCV+4*q,4)}, v{vGR} offset:{1024*q}")
    for q in range(2):
        a(f"s_waitcnt lgkmcnt({2-2*q})")
        for j in range(4): a(f"v_pk_add_f32 {vr(ACCK+8*q+2*j,2)}, {vr(ACCK+8*q+2*j,2)}, {vr(ACCV+8*q+2*j,2)}")
        for j in range(4): a(f"v_cvt_pk_bf16_f32 v{P[0]+4*q+j}, v{ACCK+8*q+2*j}, v{ACCK+8*q+2*j+1}")
        a(f"buffer_store_dwordx4 {vr(P[0]+4*q,4)}, v{vOUT}, {sr(SOUT,4)}, s60 offen offset:{16*q}")
    LE = a.label('BE')
    a(f"""s_or_b32 s{sT0}, s2, s{sWv}
s_cmp_lg_u32 s{sT0}, 0
s_cbranch_scc1 {LE}
s_mov_b32 s{sT0}, {GEN}
v_mov_b32 v41, 0
s_mov_b64 exec, 1
buffer_store_dword v3, v41, {sr(SWS,4)}, s{sT0} offen {SC}
s_mov_b64 exec, -1
{LE}:""")
    if STAMPS:
        a("s_waitcnt vmcnt(0)")
        stamp(a, 15)
        dump_stamps(a, 16, KD, sWv)
```

```python
UT2 = 0x000000
OO  = 0x200000
KVP = 0x600000
ZP  = 0x680000
AP  = 0x840000
KD  = 0xA40000
RDY = 0xB00000
GEN = 0xB20000
WS_BYTES = 0x10000000
LOG2E = 0x3fb8aa3b
S = [16384*i for i in range(7)]
PHI = 114688
GATE = PHI+1024
FL = 116736
GL = 118272
NW = 118784
ABASE = 121344
LDS_TOTAL = 163840
XS = [2,3,4,5,6,3,4,5]
WSL = {'k': [0,1], 'v': [6,3], 'q': [4,2]}
WOS = [5,5,6,6,3,3,1,1]
EXB = S[0]; ZR = S[1]; KF = S[0]; OB = S[2]
```

```python
import sys
sys.path.insert(0,'work'); sys.path.insert(0,'gen')
from asmlib import *
from lay3 import *
from gen_common import wrap, KN
import km_b3, km_a3
def common(a):
    a(f"""s_and_b32 s27, s2, 7
s_lshr_b32 s28, s2, 3
s_lshr_b32 s24, s27, 1
s_lshl_b32 s24, s24, 2
s_lshr_b32 s25, s28, 3
s_add_u32 s24, s24, s25
s_and_b32 s25, s27, 1
s_lshl_b32 s25, s25, 3
s_and_b32 s28, s28, 7
s_add_u32 s25, s25, s28
s_lshl_b32 s50, s24, 4
s_add_u32 s50, s50, s25
s_lshl_b32 s29, s24, 1
s_add_u32 s29, s29, s25
s_and_b32 s29, s29, 7
s_lshl_b32 s27, s26, 7
s_add_u32 s27, s27, {FL}
v_and_b32 v8, 31, v0
v_lshlrev_b32 v8, 2, v8
v_add_u32 v8, s27, v8
v_mov_b32 v9, 0
ds_write_b32 v8, v9
ds_write_b32 v8, v9 offset:512""")
def build():
    p = Asm()
    p("s_cmp_ge_u32 s2, 256\ns_cbranch_scc1 K_END")
    stamp(p, 0)
    p("""v_lshrrev_b32 v1, 6, v0
v_and_b32 v0, 63, v0
v_readfirstlane_b32 s26, v1
s_cmp_ge_u32 s26, 4
s_cbranch_scc1 K_A""")
    b = Asm(); km_b3.gen_b(b, common)
    a = Asm(); km_a3.gen_a(a, common)
    allc = Asm()
    allc.L = p.L + b.L + ["s_endpgm", "K_A:"] + a.L + ["K_END:", "s_endpgm"]
    L = fix_hazards(allc.L, True)
    return dict(name=KN, grid=256, block=512, lds=LDS_TOTAL, body="\n".join(L))
open(sys.argv[1],'w').write(wrap([build()]))
```

```python
import re
TRANS = ('v_exp_f32','v_log_f32','v_rcp_f32','v_rsq_f32','v_sqrt_f32','v_sin_f32','v_cos_f32','v_rcp_iflag_f32')
def expand(tok):
    tok = tok.strip()
    tok = tok.lstrip('-').strip('|')
    if tok.startswith('abs(') or tok.startswith('neg('): tok = tok[4:-1]
    m = re.fullmatch(r'([vas])\[(\d+):(\d+)\]', tok)
    if m: return [f"{m.group(1)}{i}" for i in range(int(m.group(2)), int(m.group(3))+1)]
    m = re.fullmatch(r'([vas])(\d+)', tok)
    if m: return [tok]
    if tok in ('vcc','exec'): return [tok+'_lo', tok+'_hi']
    if tok in ('vcc_lo','vcc_hi','exec_lo','exec_hi','m0'): return [tok]
    return []
class Ins:
    def __init__(self, text):
        self.text = text
        t = text.split(';')[0].strip()
        self.label = None; self.kind = None; self.dst=set(); self.src=set(); self.mn=''
        self.target=None; self.ws=1
        if t.endswith(':'):
            self.label = t[:-1]; self.kind='label'; self.ws=0; return
        if t=='' or t.startswith('.'):
            self.kind='dir'; self.ws=0; return
        parts = t.split(None,1); mn = parts[0]; self.mn = mn
        rest = parts[1] if len(parts)>1 else ''
        ops=[]; cur=''; dep=0
        for ch in rest:
            if ch in '[(': dep+=1
            if ch in '])': dep-=1
            if ch==',' and dep==0: ops.append(cur.strip()); cur=''
            else: cur+=ch
        if cur.strip(): ops.append(cur.strip())
        mods=''
        if ops:
            last = ops[-1].split(None,1)
            ops[-1]=last[0]
            mods = last[1] if len(last)>1 else ''
        self.ops=ops; self.mods=mods
        E=lambda l:set(x for o in l for x in expand(o))
        if mn.startswith('v_mfma'):
            self.kind='mfma'; self.passes = 8 if '32x32x16' in mn else 4
            self.D=expand(ops[0]); self.A=set(expand(ops[1])); self.B=set(expand(ops[2])); self.C=expand(ops[3])
            self.dst=set(self.D); self.src=self.A|self.B|set(self.C)
        elif mn.startswith('v_'):
            self.kind='valu'
            self.dst=E(ops[:1]); self.src=E(ops[1:])
            b=mn.replace('_e32','').replace('_e64','').replace('_dpp','').replace('_sdwa','')
            self.base=b
            if b.startswith(('v_fmac','v_dot2c','v_writelane','v_mac')): self.src|=self.dst
            if b.startswith('v_permlane') and 'swap' in b: self.dst=E(ops); self.src=E(ops)
            if b.startswith('v_cmpx'): self.dst|={'exec_lo','exec_hi'}
            self.trans = b in TRANS
            self.dpp = ('_dpp' in mn) or ('quad_perm' in mods) or ('row_' in mods)
            if self.dpp: self.src|=self.dst
            self.dot = b.startswith('v_dot')
            if b=='v_nop': self.dst=set(); self.src=set()
        elif mn.startswith('ds_'):
            self.kind='ds'
            if mn.startswith(('ds_read','ds_bpermute','ds_permute','ds_swizzle')) or '_rtn' in mn:
                self.dst=E(ops[:1]); self.src=E(ops[1:])
            else: self.src=E(ops)
        elif mn.startswith(('buffer_','global_')):
            self.kind='vmem'
            self.lds = (' lds' in ' '+mods) or ('_lds_' in mn)
            self.store = ('store' in mn) or ('atomic' in mn)
            if 'load' in mn and not self.lds:
                self.dst=E(ops[:1]); self.src=E(ops[1:])
                if 'd16' in mn: self.src|=self.dst
            else: self.src=E(ops)
            if 'atomic' in mn and 'sc0' in mods: self.dst=E(ops[:1])
            self.wide = self.store and ('x3' in mn or 'x4' in mn)
            self.data = E(ops[:1]) if mn.startswith('buffer_') else E(ops[1:2])
            if self.lds: self.src|={'m0'}
        elif mn.startswith('s_'):
            if mn=='s_nop': self.kind='nop'; self.ws=int(ops[0],0)+1
            elif mn in('s_branch',) or mn.startswith('s_cbranch'):
                self.kind='branch'; self.target=ops[0]
            elif mn=='s_endpgm': self.kind='end'
            elif mn.startswith(('s_load','s_memtime','s_memrealtime','s_buffer_load','s_atomic')):
                self.kind='smem'; self.dst=E(ops[:1]); self.src=E(ops[1:])
            elif mn.startswith(('s_waitcnt','s_barrier','s_sleep','s_setprio')): self.kind='misc'
            elif mn.startswith(('s_cmp','s_bitcmp')): self.kind='salu'; self.src=E(ops)
            else:
                self.kind='salu'; self.dst=E(ops[:1]); self.src=E(ops[1:])
                if 'saveexec' in mn: self.dst|={'exec_lo','exec_hi'}
        else:
            raise ValueError("unknown instr "+text)
def isv(r): return r[0] in 'va' and r[1].isdigit()
def iss(r): return not isv(r)
def required(p, c):
    n=0
    if p.kind=='valu':
        pv={r for r in p.dst if isv(r)}; ps={r for r in p.dst if iss(r)}
        if c.kind=='mfma' and pv & c.src: n=max(n,2)
        if c.kind=='mfma' and ('exec_lo' in ps): n=max(n,4)
        if c.kind=='valu':
            if p.trans and not c.trans and pv & (c.src): n=max(n,1)
            if c.base.startswith(('v_readfirstlane','v_readlane')) and pv & c.src: n=max(n,1)
            if c.dpp and pv & c.src: n=max(n,2)
            if c.base.startswith('v_permlane') and pv & c.src: n=max(n,2)
            if ps & c.src: n=max(n, 4 if c.base.startswith(('v_readlane','v_writelane')) else 2)
            if 'exec_lo' in ps and (c.dpp): n=max(n,5)
            if 'exec_lo' in ps and c.base.startswith(('v_readfirstlane','v_readlane','v_writelane','v_permlane')): n=max(n,4)
            if p.dot and pv & (c.src|c.dst):
                if not (c.base==p.base and not (pv & set(x for o in c.ops[1:3] for x in expand(o)))): n=max(n,3)
            if ('op_sel' in p.mods and not p.base.startswith('v_pk')) and pv & (c.src|c.dst): n=max(n,1)
            if '_sdwa' in p.mn and pv & (c.src|c.dst): n=max(n,1)
        if c.kind in('vmem',) and ps & c.src: n=max(n,5)
        if p.dot and c.kind in ('ds','vmem','mfma') and pv & c.src: n=max(n,3)
    if p.kind=='mfma':
        D=set(p.D); P=p.passes
        if c.kind=='mfma':
            if D & (c.A|c.B): n=max(n, P+4)
            if D & set(c.C):
                if not (c.C==p.D and c.passes==P): n=max(n, P+2)
            elif D & set(c.D): n=max(n,P+4)
        elif c.kind in('valu','ds','vmem'):
            if D & (c.src|c.dst): n=max(n,P+4)
        if c.kind=='valu' and set(p.C) & c.dst: n=max(n,P-1)
        if c.kind in ('ds','vmem') and set(p.C) & c.dst: n=max(n,P-1)
    if p.kind=='vmem' and p.wide:
        if c.kind=='valu' and p.data & c.dst: n=max(n,2)
        elif c.kind in ('ds','vmem','mfma') and p.data & c.dst: n=max(n,1)
    if p.kind=='salu' and 'm0' in p.dst:
        if c.kind=='vmem' and c.lds: n=max(n,1)
        if c.kind=='valu' and c.base.startswith(('v_writelane','v_readlane')) and 'm0' in c.src: n=max(n,1)
    return n
def fix_hazards(lines, verbose=False):
    ins=[Ins(l) for l in lines]
    MAXD=14
    inserted=0
    i=0
    def build():
        lab={}
        for k,x in enumerate(ins):
            if x.kind=='label': lab[x.label]=k
        br={}
        for k,x in enumerate(ins):
            if x.kind=='branch': br.setdefault(lab[x.target],[]).append(k)
        return br
    br=build()
    def need(i):
        c=ins[i]; worst=0
        seen={}
        stack=[(i,0)]
        while stack:
            k,d=stack.pop()
            preds=[]
            j=k-1
            if j>=0:
                x=ins[j]
                if not (x.kind=='end' or (x.kind=='branch' and x.mn=='s_branch')): preds.append(j)
            if ins[k].kind=='label': preds+=br.get(k,[])
            for j in preds:
                x=ins[j]
                if x.kind not in('label','dir'):
                    r=required(x,c)
                    if r-d>worst: worst=r-d
                nd=d+x.ws
                if nd<MAXD and seen.get(j,99)>nd:
                    seen[j]=nd; stack.append((j,nd))
        return worst
    for rep in range(3):
        i=0; ch=False
        while i<len(ins):
            c=ins[i]
            if c.kind in('valu','mfma','ds','vmem'):
                w=need(i)
                if w>0:
                    ins.insert(i, Ins(f"s_nop {w-1}")); inserted+=w; ch=True
                    br=build(); i+=1
            i+=1
        if not ch: break
    if verbose: print("hazard nops inserted (wait states):",inserted)
    return [x.text for x in ins]

class Asm:
    def __init__(self):
        self.L=[]; self.vm=[]; self.uid=0; self.grp=None; self.lg=[]; self.tail=[]
    def __call__(self, s):
        for l in s.split('\n'):
            l=l.strip()
            if not l: continue
            self.L.append(l)
            if l.startswith(('buffer_','global_')): self.vm.append([None,self.grp])
            if l.startswith('ds_'): self.lg.append(None)
            if l.startswith('s_waitcnt') and 'lgkmcnt(0)' in l: self.lg.append('#')
    def ltag(self, name):
        i=max(k for k,x in enumerate(self.lg) if x!='#')
        assert self.lg[i] is None
        self.lg[i]=name
    def lcount(self, name):
        i=max(k for k,x in enumerate(self.lg) if x==name)
        if '#' in self.lg[i+1:]: return None
        return len(self.lg)-1-i
    def lwait(self, name):
        n=self.lcount(name)
        if n is None: return
        self(f"s_waitcnt lgkmcnt({min(n,15)})")
    def tag(self, name):
        self.vm[-1][0]=name
    def vmcount(self, name):
        idx=max(i for i,n in enumerate(self.vm) if n[0]==name)
        tg=self.vm[idx][1]
        assert tg is None or tg==self.grp, (name,tg,self.grp)
        n=sum(1 for x in self.vm[idx+1:] if x[1] is None or (self.grp is not None and x[1]==self.grp))
        return n
    def vmwait(self, name, extra=''):
        n=self.vmcount(name)
        assert n<=63,(name,n)
        self(f"s_waitcnt vmcnt({n}){extra}")
    def label(self, base='L'):
        self.uid+=1; return f"{base}_{self.uid}"
    def text(self, verbose=False):
        return "\n".join(fix_hazards(self.L, verbose))
def vr(a,n=1):
    return f"v{a}" if n==1 else f"v[{a}:{a+n-1}]"
def sr(a,n=1):
    return f"s{a}" if n==1 else f"s[{a}:{a+n-1}]"

import os
STAMPS = bool(int(os.environ.get('STAMPS','0')))
CYC = bool(int(os.environ.get('CYC','0')))
def stamp(a, k):
    if STAMPS: a(f"{'s_memtime' if CYC else 's_memrealtime'} s[{64+2*k}:{65+2*k}]")
def dump_stamps(a, n, base, wave_sgpr, srd=12):
    if not STAMPS: return
    a("s_waitcnt lgkmcnt(0)")
    a("s_mov_b64 exec, 1")
    a(f"s_lshl_b32 s62, s2, 3\ns_add_u32 s62, s62, s{wave_sgpr}\ns_lshl_b32 s62, s62, 6\ns_add_u32 s62, s62, {base}")
    a("v_mov_b32 v1, 0")
    for k in range(n):
        a(f"v_mov_b32 v2, s{64+2*k}")
        a(f"buffer_store_dword v2, v1, s[{srd}:{srd+3}], s62 offen offset:{4*k}")
```

```python
import os
from pads import sizes
ENTRY = 0x300
def apply(lines, stride=1024, first=1024, groups=4, verbose=True, sI=100):
    roles = [l.split()[2] for l in lines if l.startswith('; @TOUCH')]
    nslot = 4*groups
    def layout(npads):
        asg = {r: [k for k in range(npads) if k % len(roles) == i] for i, r in enumerate(roles)}
        out = []
        for l in lines:
            if l.startswith('; @TOUCH'):
                _, _, r, sw = l.split()
                out += [f"s_lshr_b32 s{sI}, s2, 3", f"s_and_b32 s{sI}, s{sI}, {groups-1}", f"s_lshl_b32 s{sI}, s{sI}, 2",
                        f"s_and_b32 s{sI+1}, {sw}, 3", f"s_add_u32 s{sI}, s{sI}, s{sI+1}", "s_mov_b64 exec, 0"]
                P = asg[r]
                chains = [P[s::nslot] for s in range(nslot)]
                for s in range(nslot):
                    if chains[s]: out += [f"s_cmp_eq_u32 s{sI}, {s}", f"s_cbranch_scc1 TP_{chains[s][0]}"]
                out += [f"TR_{r}:", "s_mov_b64 exec, -1"]
            else: out.append(l)
        nxt = {}
        for r in roles:
            P = asg[r]
            for s in range(nslot):
                c = P[s::nslot]
                for i, k in enumerate(c): nxt[k] = f"TP_{c[i+1]}" if i+1 < len(c) else f"TR_{r}"
        tmp = [("s_cbranch_scc1 K_END" if 'TP_' in l else l) for l in out]
        sz = sizes(tmp)
        res = []; off = ENTRY; k = 0; on = True; tgt = ((ENTRY+first)//stride)*stride
        for l, z in zip(out, sz):
            if l.startswith('; @NOPAD'): on = False
            if l.startswith('; @PAD'): on = True
            if z and off >= tgt:
                if on and (off % 64) <= 52:
                    res += [f"TP_{k}:", f"s_cbranch_execz {nxt.get(k, 'K_END')}"]; off += 4; k += 1
                    tgt = (off//stride+1)*stride
                elif not on: tgt = (off//stride+1)*stride
            res.append(l); off += z
        return res, k, off
    n = 0
    for it in range(5):
        res, k, end = layout(n)
        if k == n: break
        n = k
    assert k == n
    if verbose: print("touch pads", n, "code end", end-ENTRY)
    return res
```

```python
import sys, os
sys.path.insert(0,'gen')
import touch
src, dst = sys.argv[1], sys.argv[2]
mode = sys.argv[3]
s=open(src).read()
lab="gated_mix__ssm_conv_s4d__linear_kernel_hedgehog__prompt_kernel:\n"
i=s.index(lab)+len(lab); j=s.index('.section .rodata')
head, L, tail = s[:i], s[i:j].rstrip('\n').split('\n'), s[j:]
head = head.replace(".p2align 8\n", ".p2align 12\n.p2align 8\n")
if mode in 'mt':
    ia=L.index('K_A:'); ib=next(k for k in range(ia,len(L)) if L[k].startswith('s_barrier'))
    pro=L[ia+1:ib+1]
    br=L.index('s_cbranch_scc1 K_A')
    tb=[k for k in range(len(L)) if L[k].endswith(' lds')][int(os.environ.get('TB',10))]
    T = mode=='t'
    L = L[:br]+['s_cbranch_scc0 K_B']+pro+(['; @TOUCH A s26'] if T else [])+['s_branch K_A','K_B:']+L[br+1:tb+1]+(['; @TOUCH B s26'] if T else [])+L[tb+1:ia+1]+L[ib+1:]
    if T: L=touch.apply(L, stride=int(os.environ.get('ST',1024)), groups=int(os.environ.get('GR',4)))
open(dst,'w').write(head+"\n".join(L)+"\n"+tail)
```

```python
from asmlib import *
from lay5 import *
from km_b import srd, Sync, SPIN_G, f2u, LCG_A, LCG_C
from km_b5 import OPT, P_, SC, cpoll
from ka import cmul, exp_acc, lds_map, PAIR
import struct, math, os
_stamp = stamp
FA = os.environ.get('FA', '')
_fc = [2]
def stamp(a, k):
    if not FA or k in (1, 12): _stamp(a, k)
def fa(a, mode, nm=''):
    if FA == mode and _fc[0] < 12:
        print('fineA', _fc[0], nm); _stamp(a, _fc[0]); _fc[0] += 1

def gen_a(a, common):
    M = lds_map(ABASE)
    assert M['END'] == LDS_TOTAL
    SWS = 12
    sRB, sHP, sWv, sT0, sT1, sF, sMH, sSTG, sCH, sPB = 24, 25, 26, 27, 28, 29, 30, 31, 33, 34
    sL, sLlo, sLn2 = 36, 37, 38
    sN, sSP, sCP, sC = 48, 49, 50, 51
    vFLW, vFLR, vJ, vP, vLIN, vFA, FLV = 56, 57, 58, 59, 60, 61, 88
    AB, AR = 512, 1024
    sy = Sync(a, vFLW, vJ, vP, sSP, 'A')
    def sigA(k): a(f"v_mov_b32 v{vJ}, {k}\nds_write_b32 v{vFLW}, v{vJ} offset:512")
    def sigAB(k): sy.signal(k)
    def bar(k):
        sigA(k); sy.poll(vFLR, AR); sy.check(k, vFLR, AR)
    a("""s_setprio 3
s_load_dwordx4 s[4:7], s[0:1], 8
s_load_dwordx4 s[8:11], s[0:1], 24
s_load_dwordx4 s[16:19], s[0:1], 40
s_load_dwordx2 s[12:13], s[0:1], 112""")
    common(a)
    a(f"v_mov_b32 v{vFLW}, v8\ns_sub_u32 s{sWv}, s{sWv}, 4")
    srd(a, SWS, WS_BYTES)
    L = 1.4426950408889634
    Lhi = struct.unpack('<f', struct.pack('<f', L))[0]
    a(f"""s_lshl_b32 s{sT0}, s{sCP}, 9
s_lshl_b32 s{sT1}, s{sWv}, 7
s_add_u32 s{sT0}, s{sT0}, s{sT1}
v_lshlrev_b32 v1, 1, v0
v_add_u32 v1, s{sT0}, v1
v_mov_b32 v8, 0
v_mov_b32 v9, 0
v_mov_b32 v10, 0
v_mov_b32 v11, 0
s_lshl_b32 s{sT1}, s{sWv}, 8
s_add_u32 s{sT1}, s{sT1}, {M['UZ']}
v_and_b32 v7, 15, v0
v_lshlrev_b32 v7, 4, v7
v_add_u32 v7, s{sT1}, v7
ds_write_b128 v7, v[8:11]
s_lshl_b32 s{sT1}, s{sCP}, 2
s_mov_b32 s60, {GEN}
s_mov_b32 s61, s{sT1}""")
    a("s_waitcnt lgkmcnt(0)")
    a("""global_load_ushort v2, v1, s[4:5]
global_load_ushort v3, v1, s[6:7]
global_load_ushort v4, v1, s[8:9]
global_load_ushort v5, v1, s[10:11]""")
    a.tag("par")
    a(f"""s_load_dword s20, s[16:17], s61
s_load_dword s21, s[18:19], s61
buffer_load_dword v62, v8, {sr(SWS,4)}, s60 offen {SC}
s_setprio {P_('PA0', 0)}
; @PROLOG_END""")
    vUD = 6
    a(f"""s_lshr_b32 s{sCH}, s{sWv}, 1
s_and_b32 s{sMH}, s{sWv}, 1
s_mov_b32 s{sL}, {f2u(Lhi):#x}
s_mov_b32 s{sLlo}, {f2u(L-Lhi):#x}
s_mov_b32 s{sLn2}, {f2u(math.log(2)):#x}
s_mov_b32 s{sSP}, 0
s_mul_i32 s{sPB}, s{sCH}, {PAIR}
s_add_u32 s{sPB}, s{sPB}, {M['STG']}
s_mul_i32 s{sSTG}, s{sMH}, 8448
s_add_u32 s{sSTG}, s{sSTG}, s{sPB}
v_bfe_u32 v7, v0, 4, 1
v_xor_b32 v7, v7, v0
v_lshlrev_b32 v{vUD}, 4, v7
v_lshrrev_b32 v7, 4, v0
v_lshlrev_b32 v7, 7, v7
v_and_b32 v8, 31, v0
v_lshl_add_u32 v7, v8, 2, v7
v_add_u32 v{vFLR}, {FL}, v7
v_lshlrev_b32 v{vLIN}, 4, v0""")
    UX, UO, vUT, vUS, vUC, CL = 64, 72, 80, 81, 82, 84
    a(f"""v_lshrrev_b32 v7, 4, v0
v_bfe_u32 v8, v0, 2, 2
v_lshl_add_u32 v9, v7, 4, v8
v_lshlrev_b32 v9, 7, v9
v_and_b32 v10, 1, v0
v_lshl_add_u32 v9, v10, 3, v9
s_lshr_b32 s{sT0}, s{sHP}, 3
s_lshl_b32 s{sT0}, s{sT0}, 1
s_add_u32 s{sT0}, s{sT0}, s{sMH}
s_lshl_b32 s{sT1}, s{sT0}, 1
v_bfe_u32 v10, v0, 1, 1
v_add_u32 v10, s{sT1}, v10
v_bfe_u32 v11, v0, 3, 1
v_xor_b32 v10, v10, v11
v_lshl_add_u32 v9, v10, 4, v9
s_lshl_b32 s{sT1}, s{sCH}, 13
s_add_u32 s{sT1}, s{sT1}, {S[2]}
v_add_u32 v{vUT}, s{sT1}, v9
v_lshlrev_b32 v9, 14, v8
v_lshl_add_u32 v9, v7, 6, v9
v_and_b32 v10, 3, v0
v_lshl_add_u32 v{vUS}, v10, 4, v9
s_lshl_b32 s{sT0}, s{sT0}, 16
s_lshl_b32 s{sT1}, s{sF}, 18
s_add_u32 s{sT0}, s{sT0}, s{sT1}
s_lshl_b32 s{sT1}, s{sRB}, 9
s_add_u32 s{sT0}, s{sT0}, s{sT1}
s_lshl_b32 s{sT1}, s{sCH}, 8
s_add_u32 s58, s{sT0}, s{sT1}
s_add_u32 s58, s58, {UT2}
s_add_u32 s59, s58, 8192
s_lshr_b32 s62, s58, 2
s_add_u32 s62, s62, {CK}
v_lshrrev_b32 v{vUC}, 2, v{vUS}
s_lshl_b32 s{sT0}, s{sCP}, 13
s_lshl_b32 s{sT1}, s{sWv}, 11
s_add_u32 s{sT0}, s{sT0}, s{sT1}
s_add_u32 s55, s{sT0}, {AP}
s_add_u32 s57, s{sT0}, {UT2}
s_lshr_b32 s54, s55, 2
s_add_u32 s54, s54, {CK}
s_lshr_b32 s56, s57, 2
s_add_u32 s56, s56, {CK}""")
    vSW, vSR0, vSR1 = 24, 25, 26
    a(f"""v_and_b32 v7, 7, v0
v_lshlrev_b32 v7, 4, v7
v_lshl_add_u32 v7, v0, 7, v7
v_add_u32 v{vSW}, s{sSTG}, v7""")
    a(f"""v_lshrrev_b32 v7, 5, v0
v_bfe_u32 v12, v0, 3, 1
v_lshl_add_u32 v7, v7, 2, v12
v_bfe_u32 v12, v0, 2, 1
v_bfe_u32 v13, v0, 4, 1
v_lshlrev_b32 v13, 1, v13
v_lshl_add_u32 v12, v12, 2, v13
v_bfe_u32 v13, v0, 1, 1
v_add_u32 v12, v12, v13
v_xor_b32 v12, v12, v7
v_lshlrev_b32 v12, 4, v12
v_lshl_add_u32 v12, v7, 7, v12
v_and_b32 v13, 1, v0
v_lshl_add_u32 v12, v13, 3, v12
v_add_u32 v{vSR0}, s{sSTG}, v12
v_xor_b32 v12, 32, v12
v_add_u32 v{vSR1}, s{sSTG}, v12
s_waitcnt lgkmcnt(0)
s_lshl_b32 s{sT0}, s{sCH}, 4
s_lshr_b32 s20, s20, s{sT0}
s_lshl_b32 s20, s20, 16
s_lshr_b32 s21, s21, s{sT0}
s_lshl_b32 s21, s21, 16
v_mov_b32 v7, s20""")
    vDT = 27
    exp_acc(a, vDT, 7, 12, sL, sLlo, sLn2)
    a(f"""v_cvt_pk_bf16_f32 v{vDT}, v{vDT}, v{vDT}
v_and_b32 v{vDT}, 0xffff0000, v{vDT}""")
    a.vmwait("par")
    stamp(a,1)
    for r in (2,3,4,5): a(f"v_lshlrev_b32 v{r}, 16, v{r}")
    exp_acc(a, 2, 2, 12, sL, sLlo, sLn2)
    E1, E2, E4, E8, E256, EX, W0, T = 8, 10, 12, 14, 16, 18, 20, 22
    a(f"""v_cvt_pk_bf16_f32 v2, v2, v2
v_and_b32 v2, 0xffff0000, v2
v_mul_f32 v2, v2, v{vDT}
v_mul_f32 v3, v3, v{vDT}
v_mul_f32 v2, s{sL}, v2
v_mul_f32 v3, 0.15915494, v3
v_mul_f32 v4, v4, v{vDT}
v_mul_f32 v5, v5, v{vDT}
v_add_f32 v{W0}, v4, v4
v_add_f32 v{W0+1}, v5, v5""")
    def anchor(E, x):
        if x == 1:
            a(f"v_exp_f32 v{T}, -v2\nv_fract_f32 v{T+1}, v3")
        else:
            a(f"v_mul_f32 v{T}, {f2u(-float(x)):#x}, v2\nv_mul_f32 v{T+1}, {f2u(float(x)):#x}, v3")
            a(f"v_exp_f32 v{T}, v{T}\nv_fract_f32 v{T+1}, v{T+1}")
        a(f"v_cos_f32 v{E}, v{T+1}\nv_sin_f32 v{E+1}, v{T+1}")
        a(f"v_mul_f32 v{E}, v{E}, v{T}\nv_mul_f32 v{E+1}, v{E+1}, v{T}")
    anchor(E8, 8)
    G, PK = 32, 48
    def stage(gi, regs, negim):
        n = '-' if negim else ''
        for j in range(4):
            a(f"v_cvt_pk_bf16_f32 v{PK+j}, v{regs[2*j]}, v{regs[2*j+1]}")
        for j in range(4):
            a(f"v_cvt_pk_bf16_f32 v{PK+4+j}, {n}v{regs[2*j]+1}, {n}v{regs[2*j+1]+1}")
        for part in range(2):
            g = 4*part+gi
            if g == 0: ad = vSW
            else:
                a(f"v_xor_b32 v{28+part}, {16*g}, v{vSW}"); ad = 28+part
            a(f"ds_write_b128 v{ad}, {vr(PK+4*part,4)}")
    def ut_reads():
        fa(a, 'l', 'pre barrier')
        a("s_barrier")
        fa(a, 'l', 'post barrier')
        for Y in range(2):
            for tt in range(2):
                sw = 4*Y+2*tt
                if sw == 0: ad = vUT
                else:
                    a(f"v_xor_b32 v83, {16*sw}, v{vUT}"); ad = 83
                a(f"ds_read_b64_tr_b16 {vr(UX+4*Y+2*tt,2)}, v{ad} offset:{(8*Y+4*tt)*128}")
        a.ltag("UX")
    def ut_stores():
        a.lwait("UX")
        a(f"s_mov_b32 vcc_lo, 0x33333333\ns_mov_b32 vcc_hi, 0x33333333")
        for j in range(4):
            a(f"v_cndmask_b32_dpp v{UO+j}, v{UX+4+j}, v{UX+j}, vcc quad_perm:[2,3,0,1] row_mask:0xf bank_mask:0xf")
        a("s_not_b64 vcc, vcc")
        for j in range(4):
            a(f"v_cndmask_b32_dpp v{UO+4+j}, v{UX+j}, v{UX+4+j}, vcc quad_perm:[2,3,0,1] row_mask:0xf bank_mask:0xf")
        a(f"""s_waitcnt vmcnt(0)
v_readfirstlane_b32 s{sN}, v62
v_mov_b32 v63, {NW}
s_mul_i32 s{sN}, s{sN}, {LCG_A:#x}
s_add_u32 s{sN}, s{sN}, {LCG_C:#x}
v_mov_b32 v62, s{sN}
ds_write_b32 v63, v62""")
        sigAB(1)
        for q in range(2):
            a(f"v_add3_u32 v{CL+q}, v{UO+4*q}, v{UO+4*q+1}, v{UO+4*q+2}\nv_add3_u32 v{CL+q}, v{CL+q}, v{UO+4*q+3}, s{sN}")
        fa(a, 'l', 'pre ut stores')
        a(f"s_setprio {PH}")
        a(f"buffer_store_dwordx4 {vr(UO,4)}, v{vUS}, {sr(SWS,4)}, s58 offen {SC}")
        a(f"buffer_store_dwordx4 {vr(UO+4,4)}, v{vUS}, {sr(SWS,4)}, s59 offen {SC}")
        a(f"buffer_store_dword v{CL}, v{vUC}, {sr(SWS,4)}, s62 offen {SC}")
        a(f"buffer_store_dword v{CL+1}, v{vUC}, {sr(SWS,4)}, s62 offen offset:2048 {SC}")
        a(f"s_setprio {PL}")
        stamp(a, 3)
        fa(a, 'l', 'post ut stores')
    PH, PL = P_('PAH', 3), P_('PAL', 0)
    UD, UK, vUK, vUW = 84, 92, 94, 95
    ugr = [([f"buffer_load_dword v{UK+k}, v{vUK}, {sr(SWS,4)}, s56 offen offset:{256*k} {SC}",
             f"buffer_load_dwordx4 {vr(UD+4*k,4)}, v{vUD}, {sr(SWS,4)}, s57 offen offset:{1024*k} {SC}"],
            list(range(UD+4*k, UD+4*k+4)), UK+k) for k in range(2)]
    def u_issue():
        a(f"""v_lshrrev_b32 v{vUK}, 2, v{vUD}
s_lshl_b32 s{sT1}, s{sWv}, 11
s_add_u32 s{sT1}, s{sT1}, {M['U']}
v_add_u32 v{vUW}, s{sT1}, v{vLIN}
s_setprio {PH}""")
        for g in ugr:
            for l in g[0]: a.L.append(l)
        a(f"s_setprio {PL}")
        stamp(a, 6)
    EV = {}
    for nm, d, fn in (('EUR', 1, ut_reads), ('EUS', 2, ut_stores), ('EUL', 10, u_issue)):
        EV.setdefault(P_(nm, d), []).append(fn)
    def ev(k):
        for fn in EV.get(k, []): fn()
    a(f"v_mov_b32 v{G}, 1.0\nv_mov_b32 v{G+1}, 0\nv_mov_b32 v{G+2}, v{E8}\nv_mov_b32 v{G+3}, v{E8+1}")
    for gi in range(4):
        for j in range(8):
            if gi == 0 and j < 2: continue
            prev = G+2*((j-1) % 8)
            cmul(a, G+2*j, prev, E8, T)
        stage(gi, [G+2*j for j in range(8)], False)
        fa(a, 'l', f'L{gi}')
        ev(gi)
    LF, HF, D, PT = 128, 160, 192, 208
    def trreads(dst):
        for ks in range(8):
            a(f"ds_read_b64_tr_b16 {vr(dst+4*ks,2)}, v{vSR0} offset:{1024*ks}")
            a(f"ds_read_b64_tr_b16 {vr(dst+4*ks+2,2)}, v{vSR1} offset:{1024*ks+256}")
    trreads(LF)
    ev(4)
    def hstage(gi, regs):
        if gi == 0: a("s_waitcnt lgkmcnt(0)")
        stage(gi, regs, True)
        fa(a, 'l', f'H{gi}'); fa(a, 'h', f'H{gi}')
        ev(5+gi)
    stamp(a,2); fa(a, 'h', 'L end')
    anchor(E1, 1); anchor(E256, 256)
    cmul(a, E2, E1, E1, T); cmul(a, E4, E2, E2, T)
    g = lambda j: G+2*j
    cmul(a, g(1), W0, E1, T)
    for j in range(2, 8): cmul(a, g(j), g(j-1), E1, T)
    hstage(0, [W0]+[g(j) for j in range(1,8)])
    cmul(a, g(0), W0, E256, T)
    for j in range(1, 5): cmul(a, g(j), g(j-1), E2, T)
    hstage(1, [g(0),g(1),g(2),g(2),g(2),g(3),g(4),g(4)])
    cmul(a, EX, E256, E256, T)
    cmul(a, g(0), W0, EX, T)
    cmul(a, g(1), g(0), E4, T); cmul(a, g(2), g(1), E4, T)
    cmul(a, g(3), g(0), E256, T)
    cmul(a, g(4), g(3), E4, T); cmul(a, g(5), g(4), E4, T)
    hstage(2, [g(0),g(1),g(2),g(2),g(3),g(4),g(5),g(5)])
    cmul(a, g(0), g(0), EX, T)
    cmul(a, g(1), g(0), E8, T)
    for j in range(1, 4):
        cmul(a, g(2*j), g(2*j-2), E256, T)
        cmul(a, g(2*j+1), g(2*j), E8, T)
    hstage(3, [g(j) for j in range(8)])
    trreads(HF)
    stamp(a,4); fa(a, 'h', 'trreads')
    vEX = 28
    a(f"""s_mul_i32 s{sT0}, s{sMH}, 12544
s_add_u32 s{sT0}, s{sT0}, s{sPB}
s_add_u32 s{sT1}, s{sPB}, s{sPB}
s_add_u32 s{sT1}, s{sT1}, 12544
s_sub_u32 s{sT1}, s{sT1}, s{sT0}
v_add_u32 v{vEX}, s{sT0}, v{vLIN}
v_add_u32 v{vEX+1}, s{sT1}, v{vLIN}""")
    for ks in range(8):
        a(f"s_waitcnt lgkmcnt({14-2*ks})")
        c = "0" if ks == 0 else vr(D,16)
        a(f"v_mfma_f32_32x32x16_bf16 {vr(D,16)}, {vr(HF+4*ks,4)}, {vr(LF+4*ks,4)}, {c}")
    fa(a, 'h', 'K mfma issued')
    vTQ, vT2, vT3 = 30, 31, 7
    a(f"""s_mul_i32 s{sT0}, s{sMH}, 4160
s_add_u32 s{sT0}, s{sT0}, s{sPB}
s_add_u32 s{sT0}, s{sT0}, {4080}
v_and_b32 v8, 31, v0
v_lshlrev_b32 v8, 4, v8
v_sub_u32 v8, s{sT0}, v8
v_lshrrev_b32 v9, 5, v0
v_lshlrev_b32 v10, 3, v9
v_sub_u32 v{vTQ}, v8, v10
v_lshlrev_b32 v10, 9, v9
v_sub_u32 v{vT2}, v8, v10
v_lshlrev_b32 v10, 10, v9
v_sub_u32 v{vT3}, v8, v10
v_add_u32 v11, s{sT0}, v{vLIN}
v_mov_b32 v12, 0
v_mov_b32 v13, 0
v_mov_b32 v14, 0
v_mov_b32 v15, 0""")
    for j in range(4): a(f"ds_write_b128 v{vEX}, {vr(D+4*j,4)} offset:{1024*j}")
    fa(a, 'h', 'pre bar1')
    bar(1)
    fa(a, 'h', 'bar1')
    for j in range(4): a(f"ds_read_b128 {vr(PT+4*j,4)}, v{vEX+1} offset:{1024*j}")
    a.ltag("PT")
    a(f"""s_mov_b64 exec, 7
ds_write_b128 v11, v[12:15] offset:4096
s_mov_b64 exec, 1
v_mov_b32 v12, s21
s_mov_b64 exec, -1""")
    ev(9)
    a.lwait("PT")
    a(f"""s_mov_b32 vcc_lo, 0xaaaaaaaa
s_mov_b32 vcc_hi, 0xaaaaaaaa""")
    a(f"v_add_f32 v{D}, v{D}, v12")
    for j in range(8): a(f"v_pk_add_f32 {vr(D+2*j,2)}, {vr(D+2*j,2)}, {vr(PT+2*j,2)}")
    stamp(a,5); fa(a, 'h', 'K done')
    r = lambda j: f"v{D+j}"
    P = 32
    L1, L2 = a.label('ATAP'), a.label('ATAP')
    a(f"s_cmp_eq_u32 s{sMH}, 0\ns_cbranch_scc1 {L1}")
    cv = lambda d, x, y: a(f"v_cvt_pk_bf16_f32 v{d}, {x}, {y}")
    cv(P, r(3), r(2)); cv(P+1, r(1), r(0)); a(f"ds_write_b64 v{vTQ}, {vr(P,2)} offset:{4096+8}")
    cv(P+2, r(6), r(5)); cv(P+3, r(4), r(4)); a(f"ds_write_b64 v{vTQ}, {vr(P+2,2)} offset:{4096+8-512}")
    cv(P+4, r(10), r(10)); cv(P+5, r(9), r(9)); cv(P+6, r(9), r(8)); cv(P+7, r(8), r(8))
    a(f"ds_write_b128 v{vT2}, {vr(P+4,4)} offset:{4096-1024}")
    for k in range(2):
        v0_, v1_ = r(12+2*k), r(13+2*k); Q = P+8+4*k
        a(f"v_cndmask_b32 v8, {v0_}, {v1_}, vcc")
        cv(Q, v1_, v1_); cv(Q+1, v1_, "v8"); cv(Q+2, v0_, v0_); cv(Q+3, v0_, v0_)
        a(f"ds_write_b128 v{vT3}, {vr(Q,4)} offset:{4096-2048-512*k}")
    a(f"s_branch {L2}\n{L1}:")
    cv(P+2, r(5), r(4)); cv(P+3, r(4), r(4)); a(f"ds_write_b64 v{vTQ}, {vr(P+2,2)} offset:{4096+8-512}")
    cv(P, r(2), r(1)); cv(P+1, r(0), r(3))
    a(f"ds_write_b32 v{vTQ}, v{P} offset:{4108-4}")
    a(f"ds_write_b16 v{vTQ}, v{P+1} offset:{4108}")
    a(f"ds_write_b16_d16_hi v{vTQ}, v{P+1} offset:{4108-6}")
    cv(P+4, r(10), r(9)); cv(P+5, r(9), r(9)); cv(P+6, r(8), r(8)); cv(P+7, r(8), r(8))
    a(f"ds_write_b128 v{vT2}, {vr(P+4,4)} offset:{4096-1024}")
    for k in range(2):
        v0_, v1_ = r(12+2*k), r(13+2*k); Q = P+8+4*k
        a(f"v_cndmask_b32 v8, {v0_}, {v1_}, vcc")
        cv(Q, v1_, v1_); cv(Q+1, "v8", v0_); cv(Q+2, v0_, v0_); cv(Q+3, v0_, v0_)
        a(f"ds_write_b128 v{vT3}, {vr(Q,4)} offset:{4096-2048-512*k}")
    a(f"{L2}:")
    sigA(2)
    ev(10)
    sy.poll(vFLR, AR)
    vTA = 8
    a(f"""v_and_b32 v12, 1, v0
v_mul_u32_u24 v13, {4160+2}, v12
v_and_b32 v12, 15, v0
v_lshlrev_b32 v12, 1, v12
v_sub_u32 v13, v13, v12
v_lshrrev_b32 v12, 4, v0
v_lshl_add_u32 v13, v12, 4, v13
s_lshl_b32 s{sT0}, s{sMH}, 6
s_sub_u32 s{sT0}, s{sPB}, s{sT0}
s_add_u32 s{sT0}, s{sT0}, {4080+12+4096-32-128*7}
v_add_u32 v{vTA}, s{sT0}, v13""")
    for gq in range(1, 4): a(f"v_add_u32 v{vTA+gq}, {(-1024*gq) & 0xffffffff:#x}, v{vTA}")
    vB0, vB1 = 12, 13
    a(f"""v_and_b32 v14, 15, v0
v_lshrrev_b32 v15, 4, v0
v_lshl_add_u32 v14, v14, 1, v15
s_lshl_b32 s{sT0}, s{sMH}, 2
s_sub_u32 s{sT0}, 6, s{sT0}
v_add_u32 v14, s{sT0}, v14
v_bfe_u32 v15, v14, 3, 1
v_xor_b32 v15, s{sCH}, v15
v_lshlrev_b32 v15, 4, v15
v_lshl_add_u32 v14, v14, 5, v15
v_add_u32 v{vB0}, {M['UZ']}, v14
v_xor_b32 v14, 16, v14
v_add_u32 v{vB1}, {M['UZ']}, v14""")
    sy.check(2, vFLR, AR)
    TF, ACC, BF = 128, 96, 64
    order = [m for s in (3,2,1,0) for m in range(s, 32, 4)]
    def treads(ms):
        for mu in ms:
            o = (7-(mu & 7))*32
            a(f"ds_read2_b32 {vr(TF+4*mu,2)}, v{vTA+(mu>>3)} offset0:{o} offset1:{o+1}")
            a(f"ds_read2_b32 {vr(TF+4*mu+2,2)}, v{vTA+(mu>>3)} offset0:{o+2} offset1:{o+3}")
    T2 = P_('T2', 18)
    treads(order[:T2])
    stamp(a,7)
    cpoll(a, 'AU', ugr, sN, 16, sC, P_('SLU', 3), lambda k: a(f"ds_write_b128 v{vUW}, {vr(UD+4*k,4)} offset:{1024*k}"), prio=(PH, PL))
    stamp(a,8)
    treads(order[T2:])
    vOW, vOR = 14, 15
    a(f"""v_and_b32 v16, 15, v0
v_lshrrev_b32 v17, 4, v0
v_lshlrev_b32 v18, 2, v17
v_xor_b32 v16, v16, v18
v_lshl_add_u32 v16, v17, 4, v16
v_lshlrev_b32 v16, 4, v16
s_lshl_b32 s{sT0}, s{sWv}, 13
s_add_u32 s{sT0}, s{sT0}, {M['STG']}
v_add_u32 v{vOW}, s{sT0}, v16
v_lshrrev_b32 v16, 2, v0
v_and_b32 v17, 3, v0
v_lshlrev_b32 v18, 2, v17
v_xor_b32 v16, v16, v18
v_lshl_add_u32 v16, v17, 4, v16
v_lshlrev_b32 v16, 4, v16
s_lshl_b32 s{sT0}, s{sWv}, 11
s_add_u32 s{sT0}, s{sT0}, {M['STG']}
v_add_u32 v{vOR}, s{sT0}, v16""")
    a("s_waitcnt lgkmcnt(0)")
    bar(3)
    stamp(a,9)
    NB = 8
    def bread(e):
        a(f"ds_read_b128 {vr(BF+4*(e%NB),4)}, v{vB0+(e&1)} offset:{256*e}")
    PF = 4
    for e in range(PF): bread(e)
    started = set()
    for e in range(32):
        if e+PF < 32: bread(e+PF)
        a(f"s_waitcnt lgkmcnt({min(PF, 31-e)})")
        for seg in range(7, -1, -1):
            mu = 4*seg-e+3
            if mu < 0: continue
            c = vr(ACC+4*seg,4) if seg in started else "0"
            started.add(seg)
            a(f"v_mfma_f32_16x16x32_bf16 {vr(ACC+4*seg,4)}, {vr(TF+4*mu,4)}, {vr(BF+4*(e%NB),4)}, {c}")
        if e % 4 == 3:
            seg = e//4
            if seg >= 1: a(f"ds_write_b128 v{vOW}, {vr(ACC+4*(seg-1),4)} offset:{1024*(seg-1)}")
    stamp(a,10)
    a(f"ds_write_b128 v{vOW}, {vr(ACC+28,4)} offset:{1024*7}")
    bar(4)
    R = 128
    for s in range(2):
        for w in range(4):
            a(f"ds_read_b128 {vr(R+16*s+4*w,4)}, v{vOR} offset:{8192*w+1024*s}")
    a(f"v_lshlrev_b32 v16, 2, v0\ns_setprio {PH}")
    for s in range(2):
        a(f"s_waitcnt lgkmcnt({4-4*s})")
        b = R+16*s
        for j in range(2):
            a(f"v_pk_add_f32 {vr(b+2*j,2)}, {vr(b+2*j,2)}, {vr(b+4+2*j,2)}")
            a(f"v_pk_add_f32 {vr(b+8+2*j,2)}, {vr(b+8+2*j,2)}, {vr(b+12+2*j,2)}")
        for j in range(4):
            a(f"v_cvt_pk_bf16_f32 v{b+4+j}, v{b+j}, v{b+8+j}")
        a(f"v_add3_u32 v{b}, v{b+4}, v{b+5}, v{b+6}\nv_add3_u32 v{b}, v{b}, v{b+7}, s{sN}")
        a(f"buffer_store_dwordx4 {vr(b+4,4)}, v{vLIN}, {sr(SWS,4)}, s55 offen offset:{1024*s} {SC}")
        a(f"buffer_store_dword v{b}, v16, {sr(SWS,4)}, s54 offen offset:{256*s} {SC}")
    stamp(a,11)
    if STAMPS:
        a("s_waitcnt vmcnt(0)")
        stamp(a,12)
        a(f"s_add_u32 s{sWv}, s{sWv}, 4")
        dump_stamps(a, 13, KD, sWv)
```

```python
from asmlib import *
from lay5 import *
from km_b import srd, softmax16, sum16, Sync, weave, f2u, SPIN_G, LCG_A, LCG_C
from ka import lds_map
import os
OPT = set(os.environ.get("OPT","").split(","))
def P_(name, d): return int(os.environ.get(name, d))
SC = "sc1"

def csum(a, vT, d, sN):
    a(f"v_add3_u32 v{vT}, v{d[0]}, v{d[1]}, v{d[2]}")
    for k in range(3, len(d)-1, 2): a(f"v_add3_u32 v{vT}, v{vT}, v{d[k]}, v{d[k+1]}")
    a(f"v_add3_u32 v{vT}, v{vT}, v{d[-1]}, s{sN}")

def cpoll(a, pref, groups, sN, vT, sCnt, sleep, consume, behind=0, prio=None, check=None):
    a(f"s_mov_b32 s{sCnt}, 0")
    for t, (ld, d, c) in enumerate(groups):
        rest = sum(len(g[0]) for g in groups[t+1:])
        C, R, K = a.label(pref+'C'), a.label(pref+'R'), a.label(pref+'K')
        a(f"{C}:\ns_waitcnt vmcnt({rest+behind})")
        if check: check(t)
        else:
            csum(a, vT, d, sN)
            a(f"v_cmp_ne_u32 vcc, v{vT}, v{c}")
        a(f"s_cbranch_vccnz {R}\n{K}:")
        consume(t)
        tl = [f"{R}:", f"s_add_u32 s{sCnt}, s{sCnt}, 1", f"s_cmp_ge_u32 s{sCnt}, {SPIN_G}", f"s_cbranch_scc1 {K}"]
        if sleep: tl.append(f"s_sleep {sleep}")
        if prio: tl.append(f"s_setprio {prio[0]}")
        for g in groups[t:]: tl += g[0]
        if prio: tl.append(f"s_setprio {prio[1]}")
        if behind: tl.append("s_waitcnt vmcnt(0)")
        tl.append(f"s_branch {C}")
        a.tail += tl

def kvp_addr(a, vKO, sWv, sHP, sRB, t0, t1, tv):
    a(f"""s_lshl_b32 s{t0}, s{sHP}, 15
s_lshl_b32 s{t1}, s{sWv}, 13
s_add_u32 s{t0}, s{t0}, s{t1}
s_lshl_b32 s{t1}, s{sRB}, 9
s_add_u32 s{t0}, s{t0}, s{t1}
s_add_u32 s{t0}, s{t0}, {KVP}
v_lshlrev_b32 v{tv}, 4, v0
v_add_u32 v{vKO}, s{t0}, v{tv}
s_lshl_b32 s{t0}, s{sHP}, 13
s_lshl_b32 s{t1}, s{sRB}, 9
s_add_u32 s{t0}, s{t0}, s{t1}
s_add_u32 s{t0}, s{t0}, {ZP}
v_and_b32 v{tv}, 0x70, v{tv}
v_add_u32 v{tv}, s{t0}, v{tv}
s_mov_b32 vcc_lo, 0
s_mov_b32 vcc_hi, -1
v_cndmask_b32 v{vKO}, v{vKO}, v{tv}, vcc""")

_stamp = stamp
FINE = os.environ.get('FINE', '')
_fc = [2]
def stamp(a, k):
    if not FINE or k in (1, 15): _stamp(a, k)
def fs(a, mode, nm=''):
    if FINE == mode and _fc[0] < 15:
        print('fine', _fc[0], nm); _stamp(a, _fc[0]); _fc[0] += 1

def gen_b(a, common):
    UZ = lds_map(ABASE)['UZ']
    SX, SW, SWS, SPH, SG, SWO, SOUT = 4, 8, 12, 16, 20, 40, 44
    sRB, sHP, sWv, sT0, sT1, sF, sXo, sM, sL = 24, 25, 26, 27, 28, 29, 30, 31, 32
    sOP, sEH, sEPS, sWO = 34, 35, 36, 37
    sN, sSP, sCP, sPC = 48, 49, 50, 51
    vG, vXA, vWA, vFLW, vFLR, T, vZW, vGA, vWD, vLIN, vJ, vP = 1, 2, 6, 8, 9, 10, 14, 15, 16, 17, 18, 19
    WF = [20, 36]; ACCK, ACCV, P, WP, B1, B2, XQ = 52, 68, [84, 100], 116, 124, 2, 128
    GACC, vXD, B2T = 68, 72, 76
    sy = Sync(a, vFLW, vJ, vP, sSP, 'B')
    AB = 512
    a(f"s_setprio {P_('PB', 2)}")
    a("""s_load_dwordx2 s[4:5], s[0:1], 0
s_load_dwordx2 s[8:9], s[0:1], 64
s_load_dwordx2 s[16:17], s[0:1], 72
s_load_dwordx2 s[20:21], s[0:1], 88
s_load_dwordx2 s[12:13], s[0:1], 112
s_load_dwordx2 s[40:41], s[0:1], 80
s_load_dwordx2 s[44:45], s[0:1], 96""")
    common(a)
    srd(a, SX, 2097152); srd(a, SW, 1572864); srd(a, SWS, WS_BYTES); srd(a, SPH, 16384); srd(a, SG, 1024)
    srd(a, SWO, 524288); srd(a, SOUT, 2097152)
    a(f"s_mov_b32 s{sL}, {LOG2E}\ns_mov_b32 s{sL+1}, {LOG2E}\ns_mov_b32 s{sSP}, 0")
    a(f"""v_lshrrev_b32 v20, 3, v0
v_and_b32 v21, 7, v0
v_lshrrev_b32 v22, 4, v0
v_xor_b32 v23, v21, v22
v_lshlrev_b32 v23, 4, v23
v_lshl_add_u32 v23, v20, 10, v23
s_lshl_b32 s{sT0}, s{sRB}, 17
s_lshl_b32 s{sT1}, s{sWv}, 15
s_add_u32 s{sT0}, s{sT0}, s{sT1}
v_add_u32 v{vXD}, s{sT0}, v23
v_xor_b32 v{vXD+1}, 64, v{vXD}
v_add_u32 v{vXD+1}, 0x1c00, v{vXD+1}
v_add_u32 v{vXD+2}, 0x3800, v{vXD}
v_add_u32 v{vXD+3}, 0x3800, v{vXD+1}
v_lshrrev_b32 v20, 2, v0
v_and_b32 v21, 3, v0
v_lshlrev_b32 v21, 4, v21
s_mul_i32 s{sT0}, s{sWv}, {16*3072}
s_lshl_b32 s{sT1}, s{sHP}, 6
s_add_u32 s{sT0}, s{sT0}, s{sT1}
s_add_u32 s{sT0}, s{sT0}, 1024
v_mul_u32_u24 v20, 0xc00, v20
v_add3_u32 v{vWD}, v20, v21, s{sT0}
v_lshlrev_b32 v{vLIN}, 4, v0
s_lshl_b32 s{sM}, s{sWv}, 12
s_lshl_b32 s{sT0}, s{sF}, 7
v_add_u32 v20, s{sT0}, v{vLIN}
v_and_b32 v20, 0x3ff, v20
s_lshl_b32 s{sXo}, s{sF}, 7
s_lshl_b32 s{sT1}, s{sHP}, 10
s_waitcnt lgkmcnt(0)""")
    stamp(a, 1)
    def phigate():
        L1, L2 = a.label('BP'), a.label('BP')
        a(f"s_cmp_eq_u32 s{sWv}, 0\ns_cbranch_scc0 {L1}\ns_mov_b32 m0, {PHI}")
        a.L.append(f"buffer_load_dwordx4 v{vLIN}, {sr(SPH,4)}, s{sT1} offen lds")
        a(f"{L1}:\ns_cmp_eq_u32 s{sWv}, 1\ns_cbranch_scc0 {L2}\ns_mov_b32 m0, {GATE}")
        a.L.append(f"buffer_load_dwordx4 v20, {sr(SG,4)}, 0 offen lds")
        a(f"{L2}:")
    def dX(i):
        so = sXo
        def f(t):
            def g():
                if t == 0:
                    if i > 0: a(f"s_add_u32 s{sXo}, s{sXo}, 128\ns_and_b32 s{sXo}, s{sXo}, 0x3ff")
                    a(f"s_add_u32 m0, s{sM}, {S[XS[i]]}")
                a(f"buffer_load_dwordx4 v{vXD+t}, {sr(SX,4)}, s{so} offen offset:{1024*t} lds")
                if t == 3: a.tag(f"X{i}")
            return g
        return [f(t) for t in range(4)]
    def dW(sec, i):
        def g():
            if i == 0 and sec == 'v': a(f"v_add_u32 v{vWD}, 1024, v{vWD}")
            if i == 0 and sec == 'q': a(f"v_add_u32 v{vWD}, {(-2048) & 0xffffffff:#x}, v{vWD}")
            a(f"s_add_u32 m0, s{sM}, {S[WSL[sec][i>>2]]+1024*(i&3)}")
            a(f"buffer_load_dwordx4 v{vWD}, {sr(SW,4)}, s{16+i} offen lds")
            a.tag(f"{sec}{i}")
        return g
    vWO = [16, 15]
    def dO(j):
        def f(t):
            def g():
                if t == 0: a(f"s_add_u32 m0, s{sM}, {S[WOS[j]]+2048*(j&1)}\ns_mov_b32 s{sWO}, {65536*j}")
                a(f"buffer_load_dwordx4 v{vWO[t]}, {sr(SWO,4)}, s{sWO} offen offset:{1024*t} lds")
                if t == 1: a.tag(f"o{j}")
            return g
        return [f(0), f(1)]
    def ops(txt):
        r = []
        for nm in txt.split():
            i = int(nm[1])
            r += dX(i) if nm[0] == 'X' else dO(i) if nm[0] == 'o' else [dW(nm[0], i)]
        return r
    def iss(txt):
        for g in ops(txt): g()
    iss('X0')
    phigate()
    for i in range(8):
        a(f"s_add_u32 s{sT0}, s{sF}, {i}\ns_and_b32 s{sT0}, s{sT0}, 7\ns_mul_i32 s{16+i}, s{sT0}, 196608")
        if i < 4: iss(f'k{i}')
    a(f"""v_and_b32 v20, 31, v0
v_lshrrev_b32 v21, 5, v0
v_bfe_u32 v22, v0, 1, 3
v_xor_b32 v22, v22, v21
v_lshlrev_b32 v22, 4, v22
v_lshl_add_u32 v22, v20, 7, v22
s_add_u32 s{sT0}, s{sM}, {S[2]}
v_add_u32 v{vXA}, s{sT0}, v22""")
    for ks in range(1, 4): a(f"v_xor_b32 v{vXA+ks}, {32*ks}, v{vXA}")
    a(f"""v_bfe_u32 v22, v0, 2, 2
v_bfe_u32 v23, v0, 4, 1
v_and_b32 v24, 3, v0
v_lshlrev_b32 v24, 3, v24
v_lshl_add_u32 v24, v23, 5, v24
v_lshl_add_u32 v24, v22, 6, v24
v_lshl_add_u32 v{vWA}, v21, 9, v24
v_add_u32 v{vWA+1}, 0x10000, v{vWA}
v_and_b32 v24, 1, v0
v_cmp_eq_u32 vcc, v24, v23
v_lshlrev_b32 v25, 4, v21
v_add_u32 v25, {GATE}, v25
v_mov_b32 v26, {UZ}
v_cndmask_b32 v{vGA}, v26, v25, vcc
v_lshrrev_b32 v25, 4, v0
v_lshlrev_b32 v25, 7, v25
v_lshl_add_u32 v25, v20, 2, v25
v_add_u32 v{vFLR}, {FL}, v25""")
    a(f"""v_bfe_u32 v26, v0, 2, 1
v_cmp_eq_u32 vcc, v26, v21
v_lshlrev_b32 v27, 4, v24
v_mov_b32 v28, 0x3f80
v_lshlrev_b32 v28, v27, v28
v_cndmask_b32 v28, 0, v28, vcc
v_bfe_u32 v27, v0, 3, 2
v_bfe_u32 v29, v0, 1, 1
v_lshl_add_u32 v30, v27, 1, v29""")
    for j in range(8):
        a(f"v_cmp_eq_u32 vcc, {j}, v30")
        a(f"v_cndmask_b32 v{(B1+j) if j < 4 else (B2T+j-4)}, 0, v28, vcc")
    a(f"""v_lshlrev_b32 v80, 31, v26
v_lshrrev_b32 v81, 16, v80
v_or_b32 v80, v80, v81
v_lshlrev_b32 v26, 6, v26
v_lshl_add_u32 v26, v27, 4, v26
v_and_b32 v28, 3, v0
v_lshl_add_u32 v26, v28, 2, v26
v_lshl_add_u32 v26, v21, 7, v26
s_add_u32 s{sT0}, s{sM}, {ZR}
v_add_u32 v{vZW}, s{sT0}, v26
v_lshl_add_u32 v26, v21, 2, v22
v_lshlrev_b32 v26, 5, v26
v_lshl_add_u32 v26, v23, 4, v26
v_lshl_add_u32 v26, v29, 3, v26
v_add_u32 v81, {PHI}, v26
s_lshl_b32 s{sT0}, s{sWv}, 7
s_add_u32 s{sT0}, s{sT0}, {GL}
v_lshlrev_b32 v82, 2, v20
v_add_u32 v82, s{sT0}, v82
s_lshl_b32 s{sOP}, s{sRB}, 17
s_lshl_b32 s{sT0}, s{sWv}, 15
s_add_u32 s{sOP}, s{sOP}, s{sT0}
s_lshl_b32 s{sT0}, s{sHP}, 11
s_add_u32 s{sOP}, s{sOP}, s{sT0}
s_add_u32 s{sOP}, s{sOP}, {OO}
s_cmp_eq_u32 s{sWv}, 0
s_cselect_b32 s{sEH}, 0xff, 0
s_mov_b32 s{sEPS}, {f2u(1e-6):#x}
s_lshl_b32 s52, s{sHP}, 15
s_lshl_b32 s{sT0}, s{sWv}, 13
s_add_u32 s52, s52, s{sT0}
s_add_u32 s52, s52, {KVP}
s_add_u32 s53, s52, 4096
s_lshl_b32 s54, s{sHP}, 13
s_lshl_b32 s{sT0}, s{sWv}, 11
s_add_u32 s54, s54, s{sT0}
s_add_u32 s54, s54, {ZP}
s_lshr_b32 s55, s52, 2
s_add_u32 s55, s55, {CK}
s_lshr_b32 s38, s54, 2
s_add_u32 s38, s38, {CK}
s_lshr_b32 s39, s{sOP}, 2
s_add_u32 s39, s39, {CK}
s_mov_b32 s62, {CK}
s_lshl_b32 s56, s{sRB}, 17
s_lshr_b32 s{sT0}, s{sHP}, 3
s_lshl_b32 s{sT0}, s{sT0}, 16
s_add_u32 s56, s56, s{sT0}
s_and_b32 s{sT0}, s{sHP}, 7
s_lshl_b32 s{sT0}, s{sT0}, 7
s_add_u32 s60, s56, s{sT0}
s_lshr_b32 s{sT0}, s{sWv}, 1
s_lshl_b32 s{sT0}, s{sT0}, 15
s_add_u32 s60, s60, s{sT0}
s_and_b32 s{sT0}, s{sWv}, 1
s_lshl_b32 s{sT0}, s{sT0}, 6
s_add_u32 s60, s60, s{sT0}
s_lshl_b32 s{sT0}, s{sWv}, 14
s_add_u32 s56, s56, s{sT0}
s_add_u32 s56, s56, {OO}
s_add_u32 s57, s56, 4096
s_add_u32 s58, s56, 8192
s_add_u32 s59, s56, 12288
s_lshr_b32 s61, s56, 2
s_add_u32 s61, s61, {CK}""")
    vGLW = 82
    def wrd(sec, i, b):
        base = S[WSL[sec][i>>2]] + 1024*(i&3)
        r = []
        for ks in range(4):
            for t in range(2):
                off = base+4096*ks+256*t
                ad = vWA + (off >> 16)
                r.append(f"ds_read_b64_tr_b16 {vr(WF[b]+4*ks+2*t,2)}, v{ad} offset:{off & 0xffff}")
        return r
    def wreads(sec, i, b):
        for l in wrd(sec, i, b): a(l)
        a.ltag(f"W{sec}{i}")
    GF = lambda i: P[i & 1] if i < 7 else WF[0]
    def grd(i):
        for ks in range(4): a(f"ds_read_b128 {vr(GF(i)+4*ks,4)}, v{vGA} offset:{128*i+32*ks}")
        a.ltag(f"G{i}")
    def mf(acc, i, b, ks, swap=False):
        c = "0" if (i == 0 and ks == 0) else vr(acc,16)
        x, w = vr(XQ+16*i+4*ks,4), vr(WF[b]+4*ks,4)
        return f"v_mfma_f32_32x32x16_bf16 {vr(acc,16)}, {x if swap else w}, {w if swap else x}, {c}"
    def gm(i, ks):
        c = "0" if (i == 0 and ks == 0) else vr(GACC,4)
        return f"v_mfma_f32_16x16x32_bf16 {vr(GACC,4)}, {vr(GF(i)+4*ks,4)}, {vr(XQ+16*i+4*ks,4)}, {c}"
    def xreads(i, pre=''):
        if i in (1,2,3,4,5): fs(a, 'e', f'pre X{i}')
        a.vmwait(f"X{i}")
        fs(a, 'k', f'X{i}')
        if i in (1,2,3,4,5): fs(a, 'e', f'X{i}')
        if i in (0, 1, 4, 7): stamp(a, {0: 2, 1: 4, 4: 5, 7: 6}[i])
        iss(pre)
        xo = 0 if i == 0 else S[XS[i]]-S[3]
        for ks in range(4):
            a(f"ds_read_b128 {vr(XQ+16*i+4*ks,4)}, v{vXA+ks} offset:{xo}"); a.ltag(f"X{i}_{ks}")
        if i == 0:
            for ks in range(4): a(f"v_add_u32 v{vXA+ks}, 0x4000, v{vXA+ks}")
            a("s_barrier")
    def wland(nm, j, more=''):
        if nm == 'k7': fs(a, 'e', 'pre k7')
        a.vmwait(nm)
        fs(a, 'k', nm)
        if nm == 'k7': fs(a, 'e', 'k7')
        sy.signal(j); sy.poll(vFLR)
        iss(more)
        if nm == 'k7': fs(a, 'e', 'k7 issued')
    def lcheck(j, tag, off=0):
        n = a.lcount(tag)
        if n is None or n == 0: sy.check(j, vFLR, off)
        else:
            sy.check(j, vFLR, off, n=min(n, 15))
            del a.lg[-3:]
    def block(i, extra=[]):
        b = i & 1
        w = wrd('k', i+2, b) if i+2 < 8 else []
        gi = i+2 if i+2 < 7 else (7 if i == 6 else None)
        a.lwait(f"Wk{i}")
        if i < 7: a.lwait(f"G{i}")
        ex = list(extra)
        for ks in range(4):
            a.lwait(f"X{i}_{ks}")
            a(mf(ACCK, i, b, ks))
            for l in w[2*ks:2*ks+2]: a(l)
            if ks == 3 and w: a.ltag(f"Wk{i+2}")
            if i < 7: a(gm(i, ks))
            if gi is not None:
                a(f"ds_read_b128 {vr(GF(gi)+4*ks,4)}, v{vGA} offset:{128*gi+32*ks}")
                if ks == 3: a.ltag(f"G{gi}")
            n = (len(ex)+3-ks)//(4-ks)
            for g in ex[:n]: g()
            ex = ex[n:]
    xreads(0, 'X1 k4 k5')
    wland("k3", 2, 'k6 k7 X2')
    stamp(a, 3)
    sy.check(2, vFLR)
    wreads('k', 0, 0); grd(0); wreads('k', 1, 1); grd(1)
    for q in range(4): a(f"ds_read_b64_tr_b16 {vr(WP+2*q,2)}, v81 offset:{256*q}")
    NX = ['X3 X4', 'X5', 'X6', 'X7', 'v0 v1 v2 v3', 'v4 v5 v6 v7', 'q0 q1 q2 q3', 'q4 q5 q6 q7']
    for i in range(8):
        if i == 7:
            xreads(7)
            lcheck(1, 'pAB', AB)
            a(f"v_mov_b32 v{T}, {NW}\nds_read_b32 v{T}, v{T}"); a.ltag('NW')
            block(7, ops(NX[7]))
            break
        if i > 0: a.lwait(f"X{i}_3")
        iss(NX[i])
        if i < 6: xreads(i+1)
        if i == 1: sy.signal(3); sy.poll(vFLR); a.ltag('p3')
        if i == 2: lcheck(3, 'p3')
        ex = []
        if i == 1: ex = [lambda j=j: a(f"v_xor_b32 v{WP+j}, v80, v{WP+j}") for j in range(8)]
        block(i, ex)
        if i == 6: sy.poll(vFLR, AB); a.ltag('pAB')
    a.lwait('NW')
    a(f"v_readfirstlane_b32 s{sN}, v{T}")
    for j in range(4): a(f"v_mov_b32 v{B2+j}, v{B2T+j}")
    f = Asm()
    KB, PK = ACCK, [ACCK+8, ACCK]
    for j in range(8): f(f"v_cvt_pk_bf16_f32 v{KB+j}, v{ACCK+2*j}, v{ACCK+2*j+1}")
    for h in range(2): f(f"v_mfma_f32_32x32x16_bf16 {vr(P[h],16)}, {vr(WP+4*h,4)}, {vr(KB+4*h,4)}, 0")
    f(f"""v_lshrrev_b32 v{T}, 3, v0
v_and_b32 v{T+1}, 7, v0
v_bfe_u32 v{T+2}, v0, 4, 1
v_lshlrev_b32 v{T+2}, 2, v{T+2}
v_xor_b32 v{T+1}, v{T+1}, v{T+2}
v_lshlrev_b32 v{T+1}, 4, v{T+1}
v_lshl_add_u32 v{T}, v{T}, 10, v{T+1}
s_lshl_b32 s{sT0}, s{sWv}, 14
s_and_b32 s{sT1}, s{sHP}, 7
s_lshl_b32 s{sT1}, s{sT1}, 7
s_add_u32 s{sT0}, s{sT0}, s{sT1}
v_add_u32 v{vWO[0]}, s{sT0}, v{T}
v_add_u32 v{vWO[1]}, 0x1c00, v{vWO[0]}""")
    nwo = len(f.L)
    for h in range(2):
        softmax16(f, P[h], PK[h], T, sL, pk=False)
        f(f"v_mfma_f32_32x32x16_bf16 {vr(P[h],16)}, {vr(PK[h],4)}, {vr(B1,4)}, 0")
        f(f"v_mfma_f32_32x32x16_bf16 {vr(P[h],16)}, {vr(PK[h]+4,4)}, {vr(B2,4)}, {vr(P[h],16)}")
    for h in range(2):
        sum16(f, P[h], T, False)
        if h == 1:
            f(f"v_permlane32_swap_b32 v{P[0]+8}, v{T}\nv_add_f32 v{T}, v{T}, v{P[0]+8}\nds_write_b32 v{vZW}, v{T}")
            nzw = len(f.L)
        for j in range(8): f(f"v_cvt_pk_bf16_f32 v{P[h]+j}, v{P[h]+2*j}, v{P[h]+2*j+1}")
        if h == 0: f(f"v_mov_b32 v{P[0]+8}, v{T}")
    for j in range(16): f(f"v_mov_b32 v{ACCK+j}, 0")
    vEW, vER, vKO = 2, 124, 126
    f(f"""v_bfe_u32 v{T}, v0, 1, 3
v_lshrrev_b32 v{T+1}, 5, v0
v_lshlrev_b32 v{T+1}, 2, v{T+1}
v_xor_b32 v{T}, v{T}, v{T+1}
v_lshlrev_b32 v{T}, 4, v{T}
v_and_b32 v{T+1}, 31, v0
v_lshl_add_u32 v{T}, v{T+1}, 7, v{T}
s_add_u32 s{sT0}, s{sM}, {EXB}
v_add_u32 v{vEW}, s{sT0}, v{T}
v_xor_b32 v{vEW+1}, 16, v{vEW}
v_xor_b32 v{vEW+2}, 32, v{vEW}
v_xor_b32 v{vEW+3}, 48, v{vEW}
v_and_b32 v{T}, 3, v0
v_lshlrev_b32 v{T+1}, 1, v{T}
v_bfe_u32 v{T+2}, v0, 3, 2
s_and_b32 s{sT0}, s{sWv}, 1
s_lshl_b32 s{sT0}, s{sT0}, 2
v_add_u32 v{T+2}, s{sT0}, v{T+2}
v_xor_b32 v{T+1}, v{T+1}, v{T+2}
v_lshlrev_b32 v{T+1}, 4, v{T+1}
v_lshrrev_b32 v{T+2}, 2, v0
v_lshl_add_u32 v{T+1}, v{T+2}, 7, v{T+1}
s_lshl_b32 s{sT0}, s{sWv}, 10
s_add_u32 s{sT0}, s{sT0}, {EXB}
v_add_u32 v{T+1}, s{sT0}, v{T+1}
v_and_b32 v{T+2}, 1, v{T+2}
v_lshlrev_b32 v{T+2}, 7, v{T+2}
v_lshl_add_u32 v{T+2}, v{T}, 5, v{T+2}
v_add_u32 v{T+2}, {ZR}, v{T+2}
s_mov_b32 vcc_lo, 0
s_mov_b32 vcc_hi, -1
v_cndmask_b32 v{vER}, v{T+1}, v{T+2}, vcc
v_xor_b32 v{vER+1}, 16, v{vER}""")
    fg = []
    i = 0
    while i < len(f.L):
        if f.L[i].startswith("s_mov_b32 vcc_lo"):
            fg.append("\n".join(f.L[i:i+3])); i += 3
        else:
            fg.append(f.L[i]); i += 1
    g2 = Asm(); kvp_addr(g2, vKO, sWv, sHP, sRB, sT0, sT1, T)
    fg += g2.L[:-3] + ["\n".join(g2.L[-3:])]
    print("kpost fg", len(fg))
    bg = []
    bg.append((10, lambda: a.lwait("G7")))
    for ks in range(4): bg.append(((0 if ks == 0 else 4), lambda ks=ks: a(gm(7, ks))))
    assert 22 <= nwo
    bg.append((nwo-22, lambda: iss('o0 o1')))
    def gatefin():
        a(f"""s_mov_b32 vcc_lo, 0xffff0000
s_mov_b32 vcc_hi, 0xffff0000
v_cndmask_b32 v{vG}, v{GACC}, v{GACC+1}, vcc
v_mul_f32 v{vG}, s{sL}, v{vG}
v_exp_f32 v{vG}, v{vG}
v_add_f32 v{vG}, 1.0, v{vG}
v_rcp_f32 v{vG}, v{vG}
ds_write_b32 v{vGLW}, v{vG}""")
    bg.append((4, gatefin))
    G = P_('KG', 5)
    bg.append((P_('KS3', 60), lambda: (wland("v3", 4), fs(a, 'v', 'v3 landed'))))
    bg.append((P_('KC3', 16), lambda: (sy.check(4, vFLR), fs(a, 'v', 'chk4'), wreads('v', 0, 0), wreads('v', 1, 1))))
    assert sum(g for g, _ in bg) < nzw
    for i in range(8):
        b = i & 1
        bg.append((P_('KW', 12) if i == 0 else G, lambda i=i: a.lwait(f"Wv{i}")))
        for ks in range(4): bg.append((G if ks else 0, lambda ks=ks, i=i, b=b: a(mf(ACCV, i, b, ks, True))))
        if i == 1: bg.append((0, lambda: (wreads('v', 3, 1), wland("v7", 5), fs(a, 'v', 'v7 landed'))))
        elif i == 2: bg.append((0, lambda: (sy.check(5, vFLR), fs(a, 'v', 'chk5'), wreads('v', 4, 0), iss('o2 o3'))))
        elif i < 6: bg.append((0, lambda i=i, b=b: wreads('v', i+2, b)))
    print("kpost bg gap total", sum(g for g, _ in bg))
    weave(a, fg, bg)
    stamp(a, 7)
    VB, KV = [ACCK, ACCK+8], WF[0]
    for h in range(2):
        m = "0x0000ffff" if h == 0 else "0xffff0000"
        a(f"s_mov_b32 exec_lo, {m}\ns_mov_b32 exec_hi, {m}")
        for j in range(8): a(f"v_cvt_pk_bf16_f32 v{VB[h]+j}, v{ACCV+2*j}, v{ACCV+2*j+1}")
        if h == 0:
            a("s_mov_b64 exec, -1")
            for q in range(2):
                c = "0" if q == 0 else vr(KV,16)
                a(f"v_mfma_f32_32x32x16_bf16 {vr(KV,16)}, {vr(P[0]+4*q,4)}, {vr(VB[0]+4*q,4)}, {c}")
    a("s_mov_b64 exec, -1")
    for q in range(2):
        a(f"v_mfma_f32_32x32x16_bf16 {vr(KV,16)}, {vr(P[1]+4*q,4)}, {vr(VB[1]+4*q,4)}, {vr(KV,16)}")
    a(f"v_lshrrev_b32 v{vKO+1}, 2, v{vKO}")
    for q in range(4): a(f"ds_write_b128 v{vEW+q}, {vr(KV+4*q,4)}")
    sy.signal(6); sy.poll(vFLR); sy.check(6, vFLR)
    E = ACCK
    a(f"s_mov_b32 exec_hi, s{sEH}")
    for s in range(4):
        for g in range(2): a(f"ds_read_b128 {vr(E+8*s+4*g,4)}, v{vER+g} offset:{4096*s}")
    a("s_waitcnt lgkmcnt(4)")
    for j in range(4): a(f"v_pk_add_f32 {vr(E+2*j,2)}, {vr(E+2*j,2)}, {vr(E+8+2*j,2)}")
    a("s_waitcnt lgkmcnt(0)")
    for j in range(4): a(f"v_pk_add_f32 {vr(E+16+2*j,2)}, {vr(E+16+2*j,2)}, {vr(E+24+2*j,2)}")
    for j in range(4):
        a(f"v_pk_add_f32 {vr(E+2*j,2)}, {vr(E+2*j,2)}, {vr(E+16+2*j,2)}")
    for j in range(4): a(f"v_cvt_pk_bf16_f32 v{E+8+j}, v{E+2*j}, v{E+2*j+1}")
    csum(a, E, list(range(E+8, E+12)), sN)
    a(f"buffer_store_dwordx4 {vr(E+8,4)}, v{vKO}, {sr(SWS,4)}, 0 offen {SC}")
    a(f"buffer_store_dword v{E}, v{vKO+1}, {sr(SWS,4)}, s62 offen {SC}")
    a("s_mov_b32 exec_hi, -1")
    stamp(a, 8)
    a.vmwait("q7")
    sy.signal(7); sy.poll(vFLR)
    iss('o4 o5')
    ID, vKW, vZW2, vKR, vZL = 2, 124, 125, 126, 14
    h = Asm()
    h(f"""v_bfe_u32 v{T}, v0, 3, 1
v_bfe_u32 v{T+1}, v0, 4, 1
v_cmp_eq_u32 vcc, v{T}, v{T+1}
v_and_b32 v{T}, 1, v0
v_lshlrev_b32 v{T}, 4, v{T}
v_mov_b32 v{T+2}, 0x3f80
v_lshlrev_b32 v{T+2}, v{T}, v{T+2}
v_cndmask_b32 v{T+2}, 0, v{T+2}, vcc
v_bfe_u32 v{T}, v0, 1, 2""")
    for j in range(4): h(f"v_cmp_eq_u32 vcc, {j}, v{T}\nv_cndmask_b32 v{ID+j}, 0, v{T+2}, vcc")
    for l in h.L: a(l)
    sy.check(7, vFLR)
    wreads('q', 0, 0); wreads('q', 1, 1)
    od = ops('o6 o7')
    h = Asm()
    h(f"""v_lshrrev_b32 v{T}, 5, v0
s_and_b32 s{sT0}, s{sWv}, 1
s_lshl_b32 s{sT0}, s{sT0}, 1
v_add_u32 v{T}, s{sT0}, v{T}
v_and_b32 v{T+1}, 3, v0
v_xor_b32 v{T+2}, v{T+1}, v{T}
v_lshlrev_b32 v{T+2}, 4, v{T+2}
v_lshl_add_u32 v{T+2}, v{T}, 8, v{T+2}
v_bfe_u32 v{T+3}, v0, 2, 2
v_lshl_add_u32 v{T+2}, v{T+3}, 6, v{T+2}
v_bfe_u32 v{T+3}, v0, 4, 1
v_lshl_add_u32 v{T+2}, v{T+3}, 3, v{T+2}
s_lshr_b32 s{sT0}, s{sWv}, 1
s_lshl_b32 s{sT0}, s{sT0}, 11
s_add_u32 s{sT0}, s{sT0}, {KF}
v_add_u32 v{vKW}, s{sT0}, v{T+2}
v_xor_b32 v{T+1}, s{sWv}, v{T+1}
v_lshlrev_b32 v{T+1}, 4, v{T+1}
v_bfe_u32 v{T+2}, v0, 3, 2
v_lshl_add_u32 v{T+1}, v{T+2}, 6, v{T+1}
v_bfe_u32 v{T+2}, v0, 2, 1
v_lshl_add_u32 v{T+1}, v{T+2}, 11, v{T+1}
s_lshl_b32 s{sT0}, s{sWv}, 8
s_add_u32 s{sT0}, s{sT0}, {KF+1024}
v_add_u32 v{vZW2}, s{sT0}, v{T+1}
v_lshrrev_b32 v{T}, 5, v0
v_lshlrev_b32 v{T}, 1, v{T}
v_bfe_u32 v{T+1}, v0, 2, 2
v_xor_b32 v{T}, v{T}, v{T+1}
v_lshlrev_b32 v{T}, 4, v{T}
v_and_b32 v{T+1}, 31, v0
v_lshl_add_u32 v{T}, v{T+1}, 6, v{T}
v_add_u32 v{vKR}, {KF}, v{T}
v_xor_b32 v{vKR+1}, 16, v{vKR}
v_bfe_u32 v{T}, v0, 3, 2
v_and_b32 v{vZL}, 0x70, v{vLIN}
v_lshl_add_u32 v{vZL}, v{T}, 9, v{vZL}""")
    vOA = [6, 7, 116, 117]
    fill = h.L
    fi = 0
    oi = 0
    for i in range(8):
        b = i & 1
        a.lwait(f"Wq{i}")
        for ks in range(4):
            a(mf(ACCK, i, b, ks))
            for l in fill[fi:fi+2]: a(l)
            fi += 2
            if ks in (1, 3) and oi < len(od) and i >= P_('QO', 0): od[oi](); oi += 1
        if i < 6: wreads('q', i+2, b)
    assert fi >= len(fill) and oi == len(od)
    stamp(a, 9)
    QB, PHQ, G1, SA = WF[0], ACCV, 28, 64
    for j in range(8): a(f"v_cvt_pk_bf16_f32 v{QB+j}, v{ACCK+2*j}, v{ACCK+2*j+1}")
    for hh in range(2): a(f"v_mfma_f32_32x32x16_bf16 {vr(P[hh],16)}, {vr(WP+4*hh,4)}, {vr(QB+4*hh,4)}, 0")
    vL4, vZC, G1C = 15, 16, XQ
    a(f"v_lshlrev_b32 v{vL4}, 2, v0\nv_lshrrev_b32 v{vZC}, 2, v{vZL}")
    g1g = [([f"buffer_load_dword v{G1C+t}, v{vL4}, {sr(SWS,4)}, s55 offen offset:{256*t} {SC}",
             f"buffer_load_dwordx4 {vr(G1+4*t,4)}, v{vLIN}, {sr(SWS,4)}, s{52+(t>>2)} offen offset:{1024*(t&3)} {SC}"],
            list(range(G1+4*t, G1+4*t+4)), G1C+t) for t in range(8)]
    g1g.append(([f"buffer_load_dword v{G1C+8}, v{vZC}, {sr(SWS,4)}, s38 offen {SC}",
                 f"buffer_load_dwordx4 {vr(G1+32,4)}, v{vZL}, {sr(SWS,4)}, s54 offen {SC}"], list(range(G1+32, G1+36)), G1C+8))
    g1l = [l for g in g1g for l in g[0]]
    f = Asm()
    f(f"""v_lshrrev_b32 v{T}, 5, v0
v_bfe_u32 v{T+1}, v0, 2, 2
v_lshl_add_u32 v{T}, v{T}, 2, v{T+1}
v_lshlrev_b32 v{T}, 7, v{T}
v_bfe_u32 v{T+2}, v0, 1, 1
v_lshl_add_u32 v{T}, v{T+2}, 3, v{T}
v_and_b32 v{T+2}, 1, v0
v_bfe_u32 v{T+3}, v0, 4, 1
v_lshl_add_u32 v{T+2}, v{T+2}, 1, v{T+3}
s_and_b32 s{sT0}, s{sWv}, 1
s_lshl_b32 s{sT1}, s{sT0}, 2
v_add_u32 v{T+2}, s{sT1}, v{T+2}
v_bfe_u32 v{T+3}, v0, 3, 1
v_lshlrev_b32 v{T+3}, 2, v{T+3}
v_xor_b32 v{T+2}, v{T+2}, v{T+3}
v_lshl_add_u32 v{T}, v{T+2}, 4, v{T}
s_mul_i32 s{sT1}, s{sT0}, {(S[WOS[6]]-S[WOS[2]]) & 0xffffffff:#x}
s_mul_i32 s{sT0}, s{sT0}, {(S[WOS[4]]-S[WOS[0]]) & 0xffffffff:#x}
s_add_u32 s{sT0}, s{sT0}, {S[WOS[0]]}
s_add_u32 s{sT1}, s{sT1}, {S[WOS[2]]}
v_add_u32 v{vOA[0]}, s{sT0}, v{T}
v_add_u32 v{vOA[1]}, s{sT1}, v{T}""")
    for hh in range(2): softmax16(f, P[hh], PHQ+8*hh, T, sL, pk=('qpk' in OPT))
    weave(a, f.L, [(P_('QG', 0), lambda: [a(l) for l in g1l])])
    a(f"v_xor_b32 v{vOA[2]}, 64, v{vOA[0]}\nv_xor_b32 v{vOA[3]}, 64, v{vOA[1]}")
    stamp(a, 10)
    def g1c(t):
        if t < 8: a(f"v_mfma_f32_16x16x32_bf16 {vr(SA,4)}, {vr(ID,4)}, {vr(G1+4*t,4)}, {'0' if t == 0 else vr(SA,4)}")
        else: a(f"ds_write_b128 v{vZW2}, {vr(G1+32,4)}")
    cpoll(a, 'BG', g1g, sN, T, sPC, P_('SL1', 3), g1c)
    stamp(a, 11)
    a(f"""v_cvt_pk_bf16_f32 v{SA}, v{SA}, v{SA+1}
v_cvt_pk_bf16_f32 v{SA+1}, v{SA+2}, v{SA+3}
ds_write_b64 v{vKW}, {vr(SA,2)}""")
    sy.signal(8); sy.poll(vFLR); sy.check(8, vFLR)
    wol = []
    for k in range(16):
        jj, g = k >> 2, k & 3
        for c in (1, 0):
            for t in range(2):
                off = 4096*g+2048*(jj&1)+1024*t
                wol.append(f"ds_read_b64_tr_b16 {vr(XQ+8*k+4*c+2*t,2)}, v{vOA[2*c+(jj>>1)]} offset:{off}")
    KR = 28
    for hh in range(2):
        for q in range(2): a(f"ds_read_b128 {vr(KR+8*hh+4*q,4)}, v{vKR+q} offset:{2048*hh}")
    for hh in range(2):
        a(f"s_waitcnt lgkmcnt({3-2*hh})")
        a(f"v_mfma_f32_32x32x16_bf16 {vr(P[hh],16)}, {vr(KR+8*hh,4)}, {vr(PHQ+8*hh,4)}, 0")
        a(f"s_waitcnt lgkmcnt({2-2*hh})")
        a(f"v_mfma_f32_32x32x16_bf16 {vr(P[hh],16)}, {vr(KR+8*hh+4,4)}, {vr(PHQ+8*hh+4,4)}, {vr(P[hh],16)}")
    WOE = P_('WOE', 16)
    for l in wol[:WOE]: a(l)
    for hh in range(2):
        d = P[hh]+8
        a(f"""v_pk_add_f32 {vr(d,2)}, {vr(d,2)}, {vr(d+2,2)}
v_pk_add_f32 {vr(d+4,2)}, {vr(d+4,2)}, {vr(d+6,2)}
v_pk_add_f32 {vr(d,2)}, {vr(d,2)}, {vr(d+4,2)}
v_add_f32 v{d}, v{d}, v{d+1}""")
    d0, d1 = P[0]+8, P[1]+8
    a(f"""v_permlane32_swap_b32 v{d0}, v{d1}
v_add_f32 v{d0}, v{d0}, v{d1}
v_add_f32 v{d0}, s{sEPS}, v{d0}
v_rcp_f32 v{d0}, v{d0}
v_mul_f32 v{d0}, v{d0}, v{vG}
v_mov_b32 v{d1}, v{d0}
v_permlane32_swap_b32 v{d0}, v{d1}""")
    for hh in range(2):
        d = P[hh]+8
        for j in range(4): a(f"v_pk_mul_f32 {vr(P[hh]+2*j,2)}, {vr(P[hh]+2*j,2)}, {vr(d,2)} op_sel_hi:[1,0]")
        for j in range(4): a(f"v_cvt_pk_bf16_f32 v{P[hh]+j}, v{P[hh]+2*j}, v{P[hh]+2*j+1}")
        if hh == 1: csum(a, T, list(range(P[0], P[0]+4))+list(range(P[1], P[1]+4)), sN)
        a(f"buffer_store_dwordx4 {vr(P[hh],4)}, v{vLIN}, {sr(SWS,4)}, s{sOP} offen offset:{1024*hh} {SC}")
    a(f"buffer_store_dword v{T}, v{vL4}, {sr(SWS,4)}, s39 offen {SC}")
    stamp(a, 12)
    vOUT, vXW, vXR, vAD, vAC, x = 14, 16, 3, 4, 5, 2
    APD, APK, H2, H2C = P[1]+4, P[1]+12, 20, 118
    a(f"""s_lshr_b32 s{sT0}, s{sHP}, 3
s_lshl_b32 s{sT0}, s{sT0}, 1
s_lshr_b32 s{sT1}, s{sWv}, 1
s_add_u32 s{sT0}, s{sT0}, s{sT1}
s_lshl_b32 s{sT0}, s{sT0}, 7
s_add_u32 s{sT1}, s{sT0}, {GL}
v_and_b32 v{T+1}, 31, v0
v_lshlrev_b32 v{vAD}, 2, v{T+1}
v_add_u32 v{x}, s{sT1}, v{vAD}
ds_read_b32 v{x}, v{x}
v_lshrrev_b32 v{T+2}, 5, v0
v_lshl_add_u32 v{vAD}, v{T+2}, 16, v{vAD}
s_lshl_b32 s{sT1}, s{sRB}, 9
s_add_u32 s16, s{sT0}, s{sT1}
s_and_b32 s{sT0}, s{sHP}, 7
s_lshl_b32 s{sT0}, s{sT0}, 18
s_add_u32 s16, s16, s{sT0}
s_and_b32 s{sT0}, s{sWv}, 1
s_lshl_b32 s{sT0}, s{sT0}, 17
s_add_u32 s16, s16, s{sT0}
s_add_u32 s16, s16, {AP}
s_lshr_b32 s52, s16, 2
s_add_u32 s52, s52, {CK}
s_add_u32 s53, s52, 8192
v_and_b32 v{vAC}, 28, v0
v_lshl_add_u32 v{vAC}, v{T+2}, 14, v{vAC}
v_and_b32 v{T+3}, 3, v0
v_lshl_add_u32 v{vAC}, v{T+3}, 11, v{vAC}""")
    for u in range(1, 8): a(f"s_add_u32 s{16+u}, s{16+u-1}, 8192")
    apl = [f"buffer_load_dword v{APK+q}, v{vAC}, {sr(SWS,4)}, s{52+q} offen {SC}" for q in range(2)]
    apl += [f"buffer_load_dword v{APD+u}, v{vAD}, {sr(SWS,4)}, s{16+u} offen {SC}" for u in range(8)]
    for l in apl: a(l)
    h2g = [([f"buffer_load_dword v{H2C+g}, v{vL4}, {sr(SWS,4)}, s61 offen offset:{512*g} {SC}"] +
            [f"buffer_load_dwordx4 {vr(H2+4*t,4)}, v{vLIN}, {sr(SWS,4)}, s{56+(t>>2)} offen offset:{1024*(t&3)} {SC}" for t in (2*g, 2*g+1)],
            list(range(H2+8*g, H2+8*g+8)), H2C+g) for g in range(8)]
    h2l = [l for g in h2g for l in g[0]]
    HP_ = P_('HPOS', 64)
    for l in wol[WOE:HP_]: a(l)
    a(f"""s_add_u32 s{sT0}, s{sM}, {OB}
v_add_u32 v{vXW}, s{sT0}, v{vLIN}
v_xor_b32 v{vXR}, 0x1000, v{vXW}
v_lshlrev_b32 v{T+2}, 5, v{T+2}
v_lshl_add_u32 v{vOUT}, v{T+1}, 10, v{T+2}
s_lshl_b32 s{sT0}, s{sN}, 1
s_sub_u32 s63, 0, s{sT0}""")
    def apcheck(t):
        a(f"""v_add3_u32 v{T}, v{APD}, v{APD+1}, v{APD+2}
v_add3_u32 v{T+1}, v{APK}, v{APK+1}, s63
v_add3_u32 v{T}, v{T}, v{APD+3}, v{APD+4}
v_sub_u32 v{T+1}, v{APD+7}, v{T+1}
v_add3_u32 v{T}, v{T}, v{APD+5}, v{APD+6}
v_add_u32 v{T}, v{T}, v{T+1}
v_add_u32_dpp v{T}, v{T}, v{T} quad_perm:[1,0,3,2] row_mask:0xf bank_mask:0xf
v_add_u32_dpp v{T}, v{T}, v{T} quad_perm:[2,3,0,1] row_mask:0xf bank_mask:0xf
v_cmp_ne_u32 vcc, 0, v{T}""")
    def apuse(t):
        for u in range(8):
            a(f"""v_lshlrev_b32 v{P[0]+2*u}, 16, v{APD+u}
v_and_b32 v{P[0]+2*u+1}, 0xffff0000, v{APD+u}""")
        for j in range(8): a(f"v_pk_mul_f32 {vr(P[0]+2*j,2)}, {vr(P[0]+2*j,2)}, {vr(x,2)} op_sel_hi:[1,0]")
    def apstage(behind):
        a(f"s_waitcnt lgkmcnt(0)\nv_sub_f32 v{x}, 1.0, v{x}")
        cpoll(a, 'BA', [(apl, None, None)], sN, T, sPC, P_('SLA', 3), apuse, behind=behind, check=apcheck)
    APF = P_('APF', 1)
    if APF: apstage(0)
    if P_('SL2F', 0): a(f"s_sleep {P_('SL2F', 0)}")
    for l in h2l: a.L.append(l)
    for l in wol[max(WOE, HP_):]: a(l)
    stamp(a, 13)
    if not APF: apstage(24)
    else: a("s_waitcnt lgkmcnt(0)")
    def h2c(g):
        for t in (2*g, 2*g+1):
            for c in (1, 0):
                a(f"v_mfma_f32_32x32x16_bf16 {vr(P[c],16)}, {vr(XQ+8*t+4*c,4)}, {vr(H2+4*t,4)}, {'0' if (t == 0 and c == 1) else vr(P[c],16)}")
    cpoll(a, 'BH', h2g, sN, T, sPC, P_('SL2', 3), h2c)
    stamp(a, 14)
    GA_, PX = 20, 36
    for q in range(4): a(f"ds_write_b128 v{vXW}, {vr(P[1]+4*q,4)} offset:{1024*q}")
    sy.signal(9); sy.poll(vFLR)
    sy.check(9, vFLR)
    for q in range(4): a(f"ds_read_b128 {vr(PX+4*q,4)}, v{vXR} offset:{1024*q}")
    for q in range(2):
        a(f"s_waitcnt lgkmcnt({2-2*q})")
        for j in range(4): a(f"v_pk_add_f32 {vr(P[0]+8*q+2*j,2)}, {vr(P[0]+8*q+2*j,2)}, {vr(PX+8*q+2*j,2)}")
        for j in range(4): a(f"v_cvt_pk_bf16_f32 v{GA_+4*q+j}, v{P[0]+8*q+2*j}, v{P[0]+8*q+2*j+1}")
        a(f"buffer_store_dwordx4 {vr(GA_+4*q,4)}, v{vOUT}, {sr(SOUT,4)}, s60 offen offset:{16*q}")
    LE = a.label('BE')
    a(f"""s_or_b32 s{sT0}, s2, s{sWv}
s_cmp_lg_u32 s{sT0}, 0
s_cbranch_scc1 {LE}
s_mov_b32 s{sT0}, {GEN}
v_mov_b32 v41, 0
v_mov_b32 v40, s{sN}
s_mov_b64 exec, 1
buffer_store_dword v40, v41, {sr(SWS,4)}, s{sT0} offen {SC}
s_mov_b64 exec, -1
{LE}:""")
    if STAMPS:
        a("s_waitcnt vmcnt(0)")
        stamp(a, 15)
        dump_stamps(a, 16, KD, sWv)
```

```python
UT2 = 0x000000
OO  = 0x200000
KVP = 0x600000
ZP  = 0x680000
AP  = 0x840000
KD  = 0xA40000
GEN = 0xB20000
CK  = 0xC00000
WS_BYTES = 0x10000000
LOG2E = 0x3fb8aa3b
S = [16384*i for i in range(7)]
PHI = 114688
GATE = PHI+1024
FL = 116736
GL = 118272
NW = 118784
ABASE = 121344
LDS_TOTAL = 163840
XS = [2,3,4,5,6,3,4,5]
WSL = {'k': [0,1], 'v': [6,3], 'q': [4,2]}
WOS = [5,5,6,6,3,3,1,1]
EXB = S[0]; ZR = S[1]; KF = S[0]; OB = S[2]
```

```python
import sys
sys.path.insert(0,'work'); sys.path.insert(0,'gen')
from asmlib import *
from lay5 import *
from gen_common import wrap, KN
import km_b5, km_a5
def common(a):
    a(f"""s_and_b32 s27, s2, 7
s_lshr_b32 s28, s2, 3
s_lshr_b32 s24, s27, 1
s_lshl_b32 s24, s24, 2
s_lshr_b32 s25, s28, 3
s_add_u32 s24, s24, s25
s_and_b32 s25, s27, 1
s_lshl_b32 s25, s25, 3
s_and_b32 s28, s28, 7
s_add_u32 s25, s25, s28
s_lshl_b32 s50, s24, 4
s_add_u32 s50, s50, s25
s_lshl_b32 s29, s24, 1
s_add_u32 s29, s29, s25
s_and_b32 s29, s29, 7
s_lshl_b32 s27, s26, 7
s_add_u32 s27, s27, {FL}
v_and_b32 v8, 31, v0
v_lshlrev_b32 v8, 2, v8
v_add_u32 v8, s27, v8
v_mov_b32 v9, 0
ds_write_b32 v8, v9
ds_write_b32 v8, v9 offset:512""")
def build():
    p = Asm()
    p("s_cmp_ge_u32 s2, 256\ns_cbranch_scc1 K_END")
    stamp(p, 0)
    p("""v_lshrrev_b32 v1, 6, v0
v_and_b32 v0, 63, v0
v_readfirstlane_b32 s26, v1
s_cmp_ge_u32 s26, 4
s_cbranch_scc0 K_B""")
    b = Asm(); km_b5.gen_b(b, common)
    a = Asm(); km_a5.gen_a(a, common)
    allc = Asm()
    ib = a.L.index('; @PROLOG_END')+1
    allc.L = p.L + a.L[:ib] + ["s_branch K_A", "K_B:"] + b.L + ["s_endpgm", "K_A:"] + a.L[ib:] + ["K_END:", "s_endpgm"] + b.tail + a.tail
    L = fix_hazards(allc.L, True)
    return dict(name=KN, grid=256, block=512, lds=LDS_TOTAL, body="\n".join(L))
open(sys.argv[1],'w').write(wrap([build()]).replace('.p2align 8\n', '.p2align 12\n.p2align 8\n', 1))
```

```python
from asmlib import *
from lay6 import *
from km_b import srd, Sync, SPIN_G, f2u, LCG_A, LCG_C
from km_b6 import OPT, P_, SC, cpoll
from ka import exp_acc, lds_map, PAIR
import ka
import struct, math, os
_stamp = stamp
FA = os.environ.get('FA', '')
_fc = [2]
def stamp(a, k):
    if not FA or k in (1, 12): _stamp(a, k)
def fa(a, mode, nm=''):
    if FA == mode and _fc[0] < 12:
        print('fineA', _fc[0], nm); _stamp(a, _fc[0]); _fc[0] += 1

def cmul(a, z, x, y, t):
    if P_('CPK', 0): return ka.cmul(a, z, x, y, t)
    if z == x or z == y:
        a(f"v_mul_f32 v{t}, v{x}, v{y}\nv_mul_f32 v{t+1}, v{x}, v{y+1}")
        a(f"v_fma_f32 v{t}, -v{x+1}, v{y+1}, v{t}\nv_fma_f32 v{z+1}, v{x+1}, v{y}, v{t+1}\nv_mov_b32 v{z}, v{t}")
    else:
        a(f"v_mul_f32 v{z}, v{x}, v{y}\nv_mul_f32 v{z+1}, v{x}, v{y+1}")
        a(f"v_fma_f32 v{z}, -v{x+1}, v{y+1}, v{z}\nv_fmac_f32 v{z+1}, v{x+1}, v{y}")

def gen_a(a, common):
    M = lds_map(ABASE)
    assert M['END'] == LDS_TOTAL
    SWS = 12
    sRB, sHP, sWv, sT0, sT1, sF, sMH, sSTG, sCH, sPB = 24, 25, 26, 27, 28, 29, 30, 31, 33, 34
    sL, sLlo, sLn2 = 36, 37, 38
    sN, sSP, sCP, sC = 48, 49, 50, 51
    vFLW, vFLR, vJ, vP, vLIN, vFA, FLV = 56, 57, 58, 59, 60, 61, 88
    AB, AR = 512, 1024
    sy = Sync(a, vFLW, vJ, vP, sSP, 'A')
    def sigA(k): a(f"v_mov_b32 v{vJ}, {k}\nds_write_b32 v{vFLW}, v{vJ} offset:512")
    def sigAB(k): sy.signal(k)
    def bar(k):
        sigA(k); sy.poll(vFLR, AR); sy.check(k, vFLR, AR)
    a("""s_setprio 3
s_load_dwordx4 s[4:7], s[0:1], 8
s_load_dwordx4 s[8:11], s[0:1], 24
s_load_dwordx4 s[16:19], s[0:1], 40
s_load_dwordx2 s[12:13], s[0:1], 112""")
    common(a)
    a(f"v_mov_b32 v{vFLW}, v8\ns_sub_u32 s{sWv}, s{sWv}, 4")
    srd(a, SWS, WS_BYTES)
    L = 1.4426950408889634
    Lhi = struct.unpack('<f', struct.pack('<f', L))[0]
    a(f"""s_lshl_b32 s{sT0}, s{sCP}, 9
s_lshl_b32 s{sT1}, s{sWv}, 7
s_add_u32 s{sT0}, s{sT0}, s{sT1}
v_lshlrev_b32 v1, 1, v0
v_add_u32 v1, s{sT0}, v1
v_mov_b32 v8, 0
v_mov_b32 v9, 0
v_mov_b32 v10, 0
v_mov_b32 v11, 0
s_lshl_b32 s{sT1}, s{sWv}, 8
s_add_u32 s{sT1}, s{sT1}, {M['UZ']}
v_and_b32 v7, 15, v0
v_lshlrev_b32 v7, 4, v7
v_add_u32 v7, s{sT1}, v7
ds_write_b128 v7, v[8:11]
s_lshl_b32 s{sT1}, s{sCP}, 2
s_mov_b32 s60, {GEN}
s_mov_b32 s61, s{sT1}""")
    a("s_waitcnt lgkmcnt(0)")
    a("""global_load_ushort v2, v1, s[4:5]
global_load_ushort v3, v1, s[6:7]
global_load_ushort v4, v1, s[8:9]
global_load_ushort v5, v1, s[10:11]""")
    a.tag("par")
    a(f"""s_load_dword s20, s[16:17], s61
s_load_dword s21, s[18:19], s61
buffer_load_dword v62, v8, {sr(SWS,4)}, s60 offen {SC}
s_setprio {P_('PA0', 0)}
; @PROLOG_END""")
    vUD = 6
    a(f"""s_lshr_b32 s{sCH}, s{sWv}, 1
s_and_b32 s{sMH}, s{sWv}, 1
s_mov_b32 s{sL}, {f2u(Lhi):#x}
s_mov_b32 s{sLlo}, {f2u(L-Lhi):#x}
s_mov_b32 s{sLn2}, {f2u(math.log(2)):#x}
s_mov_b32 s{sSP}, 0
s_mul_i32 s{sPB}, s{sCH}, {PAIR}
s_add_u32 s{sPB}, s{sPB}, {M['STG']}
s_mul_i32 s{sSTG}, s{sMH}, 8448
s_add_u32 s{sSTG}, s{sSTG}, s{sPB}
v_bfe_u32 v7, v0, 4, 1
v_xor_b32 v7, v7, v0
v_lshlrev_b32 v{vUD}, 4, v7
v_lshrrev_b32 v7, 4, v0
v_lshlrev_b32 v7, 7, v7
v_and_b32 v8, 31, v0
v_lshl_add_u32 v7, v8, 2, v7
v_add_u32 v{vFLR}, {FL}, v7
v_lshlrev_b32 v{vLIN}, 4, v0""")
    UX, UO, vUT, vUS, vUC, CL = 64, 72, 80, 81, 82, 84
    a(f"""v_lshrrev_b32 v7, 4, v0
v_bfe_u32 v8, v0, 2, 2
v_lshl_add_u32 v9, v7, 4, v8
v_lshlrev_b32 v9, 7, v9
v_and_b32 v10, 1, v0
v_lshl_add_u32 v9, v10, 3, v9
s_lshr_b32 s{sT0}, s{sHP}, 3
s_lshl_b32 s{sT0}, s{sT0}, 1
s_add_u32 s{sT0}, s{sT0}, s{sMH}
s_lshl_b32 s{sT1}, s{sT0}, 1
v_bfe_u32 v10, v0, 1, 1
v_add_u32 v10, s{sT1}, v10
v_bfe_u32 v11, v0, 3, 1
v_xor_b32 v10, v10, v11
v_lshl_add_u32 v9, v10, 4, v9
s_lshl_b32 s{sT1}, s{sCH}, 13
s_add_u32 s{sT1}, s{sT1}, {S[2]}
v_add_u32 v{vUT}, s{sT1}, v9
v_lshlrev_b32 v9, 14, v8
v_lshl_add_u32 v9, v7, 6, v9
v_and_b32 v10, 3, v0
v_lshl_add_u32 v{vUS}, v10, 4, v9
s_lshl_b32 s{sT0}, s{sT0}, 16
s_lshl_b32 s{sT1}, s{sF}, 18
s_add_u32 s{sT0}, s{sT0}, s{sT1}
s_lshl_b32 s{sT1}, s{sRB}, 9
s_add_u32 s{sT0}, s{sT0}, s{sT1}
s_lshl_b32 s{sT1}, s{sCH}, 8
s_add_u32 s58, s{sT0}, s{sT1}
s_add_u32 s58, s58, {UT2}
s_add_u32 s59, s58, 8192
s_lshr_b32 s62, s58, 2
s_add_u32 s62, s62, {CK}
v_lshrrev_b32 v{vUC}, 2, v{vUS}
s_lshl_b32 s{sT0}, s{sCP}, 13
s_lshl_b32 s{sT1}, s{sWv}, 11
s_add_u32 s{sT0}, s{sT0}, s{sT1}
s_add_u32 s55, s{sT0}, {AP}
s_add_u32 s57, s{sT0}, {UT2}
s_lshr_b32 s54, s55, 2
s_add_u32 s54, s54, {CK}
s_lshr_b32 s56, s57, 2
s_add_u32 s56, s56, {CK}""")
    vSW, vSR0, vSR1 = 24, 25, 26
    a(f"""v_and_b32 v7, 7, v0
v_lshlrev_b32 v7, 4, v7
v_lshl_add_u32 v7, v0, 7, v7
v_add_u32 v{vSW}, s{sSTG}, v7""")
    a(f"""v_lshrrev_b32 v7, 5, v0
v_bfe_u32 v12, v0, 3, 1
v_lshl_add_u32 v7, v7, 2, v12
v_bfe_u32 v12, v0, 2, 1
v_bfe_u32 v13, v0, 4, 1
v_lshlrev_b32 v13, 1, v13
v_lshl_add_u32 v12, v12, 2, v13
v_bfe_u32 v13, v0, 1, 1
v_add_u32 v12, v12, v13
v_xor_b32 v12, v12, v7
v_lshlrev_b32 v12, 4, v12
v_lshl_add_u32 v12, v7, 7, v12
v_and_b32 v13, 1, v0
v_lshl_add_u32 v12, v13, 3, v12
v_add_u32 v{vSR0}, s{sSTG}, v12
v_xor_b32 v12, 32, v12
v_add_u32 v{vSR1}, s{sSTG}, v12
s_waitcnt lgkmcnt(0)
s_lshl_b32 s{sT0}, s{sCH}, 4
s_lshr_b32 s20, s20, s{sT0}
s_lshl_b32 s20, s20, 16
s_lshr_b32 s21, s21, s{sT0}
s_lshl_b32 s21, s21, 16
v_mov_b32 v7, s20""")
    vDT = 27
    exp_acc(a, vDT, 7, 12, sL, sLlo, sLn2)
    a(f"""v_cvt_pk_bf16_f32 v{vDT}, v{vDT}, v{vDT}
v_and_b32 v{vDT}, 0xffff0000, v{vDT}""")
    a.vmwait("par")
    stamp(a,1)
    for r in (2,3,4,5): a(f"v_lshlrev_b32 v{r}, 16, v{r}")
    exp_acc(a, 2, 2, 12, sL, sLlo, sLn2)
    E1, E2, E4, E8, E256, EX, W0, T = 8, 10, 12, 14, 16, 18, 20, 22
    a(f"""v_cvt_pk_bf16_f32 v2, v2, v2
v_and_b32 v2, 0xffff0000, v2
v_mul_f32 v2, v2, v{vDT}
v_mul_f32 v3, v3, v{vDT}
v_mul_f32 v2, s{sL}, v2
v_mul_f32 v3, 0.15915494, v3
v_mul_f32 v4, v4, v{vDT}
v_mul_f32 v5, v5, v{vDT}
v_add_f32 v{W0}, v4, v4
v_add_f32 v{W0+1}, v5, v5""")
    def anchor(E, x):
        if x == 1:
            a(f"v_exp_f32 v{T}, -v2\nv_fract_f32 v{T+1}, v3")
        else:
            a(f"v_mul_f32 v{T}, {f2u(-float(x)):#x}, v2\nv_mul_f32 v{T+1}, {f2u(float(x)):#x}, v3")
            a(f"v_exp_f32 v{T}, v{T}\nv_fract_f32 v{T+1}, v{T+1}")
        a(f"v_cos_f32 v{E}, v{T+1}\nv_sin_f32 v{E+1}, v{T+1}")
        a(f"v_mul_f32 v{E}, v{E}, v{T}\nv_mul_f32 v{E+1}, v{E+1}, v{T}")
    anchor(E8, 8)
    G, PK = 32, 48
    def stage(gi, regs, negim):
        n = '-' if negim else ''
        for j in range(4):
            a(f"v_cvt_pk_bf16_f32 v{PK+j}, v{regs[2*j]}, v{regs[2*j+1]}")
        for j in range(4):
            a(f"v_cvt_pk_bf16_f32 v{PK+4+j}, {n}v{regs[2*j]+1}, {n}v{regs[2*j+1]+1}")
        for part in range(2):
            g = 4*part+gi
            if g == 0: ad = vSW
            else:
                a(f"v_xor_b32 v{28+part}, {16*g}, v{vSW}"); ad = 28+part
            a(f"ds_write_b128 v{ad}, {vr(PK+4*part,4)}")
    def ut_reads():
        fa(a, 'l', 'pre barrier')
        a("s_barrier")
        fa(a, 'l', 'post barrier')
        for Y in range(2):
            for tt in range(2):
                sw = 4*Y+2*tt
                if sw == 0: ad = vUT
                else:
                    a(f"v_xor_b32 v83, {16*sw}, v{vUT}"); ad = 83
                a(f"ds_read_b64_tr_b16 {vr(UX+4*Y+2*tt,2)}, v{ad} offset:{(8*Y+4*tt)*128}")
        a.ltag("UX")
    def ut_stores():
        a.lwait("UX")
        a(f"s_mov_b32 vcc_lo, 0x33333333\ns_mov_b32 vcc_hi, 0x33333333")
        for j in range(4):
            a(f"v_cndmask_b32_dpp v{UO+j}, v{UX+4+j}, v{UX+j}, vcc quad_perm:[2,3,0,1] row_mask:0xf bank_mask:0xf")
        a("s_not_b64 vcc, vcc")
        for j in range(4):
            a(f"v_cndmask_b32_dpp v{UO+4+j}, v{UX+j}, v{UX+4+j}, vcc quad_perm:[2,3,0,1] row_mask:0xf bank_mask:0xf")
        a(f"""s_waitcnt vmcnt(0)
v_readfirstlane_b32 s{sN}, v62
v_mov_b32 v63, {NW}
s_mul_i32 s{sN}, s{sN}, {LCG_A:#x}
s_add_u32 s{sN}, s{sN}, {LCG_C:#x}
v_mov_b32 v62, s{sN}
ds_write_b32 v63, v62""")
        sigAB(1)
        for q in range(2):
            a(f"v_add3_u32 v{CL+q}, v{UO+4*q}, v{UO+4*q+1}, v{UO+4*q+2}\nv_add3_u32 v{CL+q}, v{CL+q}, v{UO+4*q+3}, s{sN}")
        fa(a, 'l', 'pre ut stores')
        a(f"s_setprio {PH}")
        a(f"buffer_store_dwordx4 {vr(UO,4)}, v{vUS}, {sr(SWS,4)}, s58 offen {SC}")
        a(f"buffer_store_dwordx4 {vr(UO+4,4)}, v{vUS}, {sr(SWS,4)}, s59 offen {SC}")
        a(f"buffer_store_dword v{CL}, v{vUC}, {sr(SWS,4)}, s62 offen {SC}")
        a(f"buffer_store_dword v{CL+1}, v{vUC}, {sr(SWS,4)}, s62 offen offset:2048 {SC}")
        a(f"s_setprio {PL}")
        stamp(a, 3)
        fa(a, 'l', 'post ut stores')
        if P_('NOA', 0): a("s_endpgm")
    PH, PL = P_('PAH', 3), P_('PAL', 0)
    UD, UK, vUK, vUW = 84, 92, 94, 95
    ugr = [([f"buffer_load_dword v{UK+k}, v{vUK}, {sr(SWS,4)}, s56 offen offset:{256*k} {SC}",
             f"buffer_load_dwordx4 {vr(UD+4*k,4)}, v{vUD}, {sr(SWS,4)}, s57 offen offset:{1024*k} {SC}"],
            list(range(UD+4*k, UD+4*k+4)), UK+k) for k in range(2)]
    def u_issue():
        a(f"""v_lshrrev_b32 v{vUK}, 2, v{vUD}
s_lshl_b32 s{sT1}, s{sWv}, 11
s_add_u32 s{sT1}, s{sT1}, {M['U']}
v_add_u32 v{vUW}, s{sT1}, v{vLIN}
s_setprio {PH}""")
        for g in ugr:
            for l in g[0]: a.L.append(l)
        a(f"s_setprio {PL}")
        stamp(a, 6)
    EV = {}
    for nm, d, fn in (('EUR', 1, ut_reads), ('EUS', 2, ut_stores), ('EUL', 10, u_issue)):
        EV.setdefault(P_(nm, d), []).append(fn)
    def ev(k):
        for fn in EV.get(k, []): fn()
    a(f"v_mov_b32 v{G}, 1.0\nv_mov_b32 v{G+1}, 0\nv_mov_b32 v{G+2}, v{E8}\nv_mov_b32 v{G+3}, v{E8+1}")
    for gi in range(4):
        for j in range(8):
            if gi == 0 and j < 2: continue
            prev = G+2*((j-1) % 8)
            cmul(a, G+2*j, prev, E8, T)
        stage(gi, [G+2*j for j in range(8)], False)
        fa(a, 'l', f'L{gi}')
        ev(gi)
    LF, HF, D, PT = 128, 160, 192, 208
    def trreads(dst):
        for ks in range(8):
            a(f"ds_read_b64_tr_b16 {vr(dst+4*ks,2)}, v{vSR0} offset:{1024*ks}")
            a(f"ds_read_b64_tr_b16 {vr(dst+4*ks+2,2)}, v{vSR1} offset:{1024*ks+256}")
    trreads(LF)
    ev(4)
    def hstage(gi, regs):
        if gi == 0: a("s_waitcnt lgkmcnt(0)")
        stage(gi, regs, True)
        fa(a, 'l', f'H{gi}'); fa(a, 'h', f'H{gi}')
        ev(5+gi)
    stamp(a,2); fa(a, 'h', 'L end')
    anchor(E1, 1); anchor(E256, 256)
    cmul(a, E2, E1, E1, T); cmul(a, E4, E2, E2, T)
    g = lambda j: G+2*j
    cmul(a, g(1), W0, E1, T)
    for j in range(2, 8): cmul(a, g(j), g(j-1), E1, T)
    hstage(0, [W0]+[g(j) for j in range(1,8)])
    cmul(a, g(0), W0, E256, T)
    for j in range(1, 5): cmul(a, g(j), g(j-1), E2, T)
    hstage(1, [g(0),g(1),g(2),g(2),g(2),g(3),g(4),g(4)])
    cmul(a, EX, E256, E256, T)
    cmul(a, g(0), W0, EX, T)
    cmul(a, g(1), g(0), E4, T); cmul(a, g(2), g(1), E4, T)
    cmul(a, g(3), g(0), E256, T)
    cmul(a, g(4), g(3), E4, T); cmul(a, g(5), g(4), E4, T)
    hstage(2, [g(0),g(1),g(2),g(2),g(3),g(4),g(5),g(5)])
    cmul(a, g(0), g(0), EX, T)
    cmul(a, g(1), g(0), E8, T)
    for j in range(1, 4):
        cmul(a, g(2*j), g(2*j-2), E256, T)
        cmul(a, g(2*j+1), g(2*j), E8, T)
    hstage(3, [g(j) for j in range(8)])
    trreads(HF)
    stamp(a,4); fa(a, 'h', 'trreads')
    vEX = 28
    a(f"""s_mul_i32 s{sT0}, s{sMH}, 12544
s_add_u32 s{sT0}, s{sT0}, s{sPB}
s_add_u32 s{sT1}, s{sPB}, s{sPB}
s_add_u32 s{sT1}, s{sT1}, 12544
s_sub_u32 s{sT1}, s{sT1}, s{sT0}
v_add_u32 v{vEX}, s{sT0}, v{vLIN}
v_add_u32 v{vEX+1}, s{sT1}, v{vLIN}""")
    for ks in range(8):
        a(f"s_waitcnt lgkmcnt({14-2*ks})")
        c = "0" if ks == 0 else vr(D,16)
        a(f"v_mfma_f32_32x32x16_bf16 {vr(D,16)}, {vr(HF+4*ks,4)}, {vr(LF+4*ks,4)}, {c}")
    fa(a, 'h', 'K mfma issued')
    vTQ, vT2, vT3 = 30, 31, 7
    a(f"""s_mul_i32 s{sT0}, s{sMH}, 4160
s_add_u32 s{sT0}, s{sT0}, s{sPB}
s_add_u32 s{sT0}, s{sT0}, {4080}
v_and_b32 v8, 31, v0
v_lshlrev_b32 v8, 4, v8
v_sub_u32 v8, s{sT0}, v8
v_lshrrev_b32 v9, 5, v0
v_lshlrev_b32 v10, 3, v9
v_sub_u32 v{vTQ}, v8, v10
v_lshlrev_b32 v10, 9, v9
v_sub_u32 v{vT2}, v8, v10
v_lshlrev_b32 v10, 10, v9
v_sub_u32 v{vT3}, v8, v10
v_add_u32 v11, s{sT0}, v{vLIN}
v_mov_b32 v12, 0
v_mov_b32 v13, 0
v_mov_b32 v14, 0
v_mov_b32 v15, 0""")
    for j in range(4): a(f"ds_write_b128 v{vEX}, {vr(D+4*j,4)} offset:{1024*j}")
    fa(a, 'h', 'pre bar1')
    bar(1)
    fa(a, 'h', 'bar1')
    for j in range(4): a(f"ds_read_b128 {vr(PT+4*j,4)}, v{vEX+1} offset:{1024*j}")
    a.ltag("PT")
    a(f"""s_mov_b64 exec, 7
ds_write_b128 v11, v[12:15] offset:4096
s_mov_b64 exec, 1
v_mov_b32 v12, s21
s_mov_b64 exec, -1""")
    ev(9)
    a.lwait("PT")
    a(f"""s_mov_b32 vcc_lo, 0xaaaaaaaa
s_mov_b32 vcc_hi, 0xaaaaaaaa""")
    a(f"v_add_f32 v{D}, v{D}, v12")
    for j in range(8): a(f"v_pk_add_f32 {vr(D+2*j,2)}, {vr(D+2*j,2)}, {vr(PT+2*j,2)}")
    stamp(a,5); fa(a, 'h', 'K done')
    r = lambda j: f"v{D+j}"
    P = 32
    L1, L2 = a.label('ATAP'), a.label('ATAP')
    a(f"s_cmp_eq_u32 s{sMH}, 0\ns_cbranch_scc1 {L1}")
    cv = lambda d, x, y: a(f"v_cvt_pk_bf16_f32 v{d}, {x}, {y}")
    cv(P, r(3), r(2)); cv(P+1, r(1), r(0)); a(f"ds_write_b64 v{vTQ}, {vr(P,2)} offset:{4096+8}")
    cv(P+2, r(6), r(5)); cv(P+3, r(4), r(4)); a(f"ds_write_b64 v{vTQ}, {vr(P+2,2)} offset:{4096+8-512}")
    cv(P+4, r(10), r(10)); cv(P+5, r(9), r(9)); cv(P+6, r(9), r(8)); cv(P+7, r(8), r(8))
    a(f"ds_write_b128 v{vT2}, {vr(P+4,4)} offset:{4096-1024}")
    for k in range(2):
        v0_, v1_ = r(12+2*k), r(13+2*k); Q = P+8+4*k
        a(f"v_cndmask_b32 v8, {v0_}, {v1_}, vcc")
        cv(Q, v1_, v1_); cv(Q+1, v1_, "v8"); cv(Q+2, v0_, v0_); cv(Q+3, v0_, v0_)
        a(f"ds_write_b128 v{vT3}, {vr(Q,4)} offset:{4096-2048-512*k}")
    a(f"s_branch {L2}\n{L1}:")
    cv(P+2, r(5), r(4)); cv(P+3, r(4), r(4)); a(f"ds_write_b64 v{vTQ}, {vr(P+2,2)} offset:{4096+8-512}")
    cv(P, r(2), r(1)); cv(P+1, r(0), r(3))
    a(f"ds_write_b32 v{vTQ}, v{P} offset:{4108-4}")
    a(f"ds_write_b16 v{vTQ}, v{P+1} offset:{4108}")
    a(f"ds_write_b16_d16_hi v{vTQ}, v{P+1} offset:{4108-6}")
    cv(P+4, r(10), r(9)); cv(P+5, r(9), r(9)); cv(P+6, r(8), r(8)); cv(P+7, r(8), r(8))
    a(f"ds_write_b128 v{vT2}, {vr(P+4,4)} offset:{4096-1024}")
    for k in range(2):
        v0_, v1_ = r(12+2*k), r(13+2*k); Q = P+8+4*k
        a(f"v_cndmask_b32 v8, {v0_}, {v1_}, vcc")
        cv(Q, v1_, v1_); cv(Q+1, "v8", v0_); cv(Q+2, v0_, v0_); cv(Q+3, v0_, v0_)
        a(f"ds_write_b128 v{vT3}, {vr(Q,4)} offset:{4096-2048-512*k}")
    a(f"{L2}:")
    sigA(2)
    ev(10)
    sy.poll(vFLR, AR)
    vTA = 8
    a(f"""v_and_b32 v12, 1, v0
v_mul_u32_u24 v13, {4160+2}, v12
v_and_b32 v12, 15, v0
v_lshlrev_b32 v12, 1, v12
v_sub_u32 v13, v13, v12
v_lshrrev_b32 v12, 4, v0
v_lshl_add_u32 v13, v12, 4, v13
s_lshl_b32 s{sT0}, s{sMH}, 6
s_sub_u32 s{sT0}, s{sPB}, s{sT0}
s_add_u32 s{sT0}, s{sT0}, {4080+12+4096-32-128*7}
v_add_u32 v{vTA}, s{sT0}, v13""")
    for gq in range(1, 4): a(f"v_add_u32 v{vTA+gq}, {(-1024*gq) & 0xffffffff:#x}, v{vTA}")
    vB0, vB1 = 12, 13
    a(f"""v_and_b32 v14, 15, v0
v_lshrrev_b32 v15, 4, v0
v_lshl_add_u32 v14, v14, 1, v15
s_lshl_b32 s{sT0}, s{sMH}, 2
s_sub_u32 s{sT0}, 6, s{sT0}
v_add_u32 v14, s{sT0}, v14
v_bfe_u32 v15, v14, 3, 1
v_xor_b32 v15, s{sCH}, v15
v_lshlrev_b32 v15, 4, v15
v_lshl_add_u32 v14, v14, 5, v15
v_add_u32 v{vB0}, {M['UZ']}, v14
v_xor_b32 v14, 16, v14
v_add_u32 v{vB1}, {M['UZ']}, v14""")
    sy.check(2, vFLR, AR)
    TF, ACC, BF = 128, 96, 64
    order = [m for s in (3,2,1,0) for m in range(s, 32, 4)]
    def treads(ms):
        for mu in ms:
            o = (7-(mu & 7))*32
            a(f"ds_read2_b32 {vr(TF+4*mu,2)}, v{vTA+(mu>>3)} offset0:{o} offset1:{o+1}")
            a(f"ds_read2_b32 {vr(TF+4*mu+2,2)}, v{vTA+(mu>>3)} offset0:{o+2} offset1:{o+3}")
    T2 = P_('T2', 18)
    treads(order[:T2])
    stamp(a,7)
    cpoll(a, 'AU', ugr, sN, 16, sC, P_('SLU', 3), lambda k: a(f"ds_write_b128 v{vUW}, {vr(UD+4*k,4)} offset:{1024*k}"), prio=(PH, PL))
    stamp(a,8)
    treads(order[T2:])
    vOW, vOR = 14, 15
    a(f"""v_and_b32 v16, 15, v0
v_lshrrev_b32 v17, 4, v0
v_lshlrev_b32 v18, 2, v17
v_xor_b32 v16, v16, v18
v_lshl_add_u32 v16, v17, 4, v16
v_lshlrev_b32 v16, 4, v16
s_lshl_b32 s{sT0}, s{sWv}, 13
s_add_u32 s{sT0}, s{sT0}, {M['STG']}
v_add_u32 v{vOW}, s{sT0}, v16
v_lshrrev_b32 v16, 2, v0
v_and_b32 v17, 3, v0
v_lshlrev_b32 v18, 2, v17
v_xor_b32 v16, v16, v18
v_lshl_add_u32 v16, v17, 4, v16
v_lshlrev_b32 v16, 4, v16
s_lshl_b32 s{sT0}, s{sWv}, 11
s_add_u32 s{sT0}, s{sT0}, {M['STG']}
v_add_u32 v{vOR}, s{sT0}, v16""")
    a("s_waitcnt lgkmcnt(0)")
    bar(3)
    stamp(a,9)
    NB = 8
    def bread(e):
        a(f"ds_read_b128 {vr(BF+4*(e%NB),4)}, v{vB0+(e&1)} offset:{256*e}")
    PF = 4
    for e in range(PF): bread(e)
    started = set()
    for e in range(32):
        if e+PF < 32: bread(e+PF)
        a(f"s_waitcnt lgkmcnt({min(PF, 31-e)})")
        for seg in range(7, -1, -1):
            mu = 4*seg-e+3
            if mu < 0: continue
            c = vr(ACC+4*seg,4) if seg in started else "0"
            started.add(seg)
            a(f"v_mfma_f32_16x16x32_bf16 {vr(ACC+4*seg,4)}, {vr(TF+4*mu,4)}, {vr(BF+4*(e%NB),4)}, {c}")
        if e % 4 == 3:
            seg = e//4
            if seg >= 1: a(f"ds_write_b128 v{vOW}, {vr(ACC+4*(seg-1),4)} offset:{1024*(seg-1)}")
    stamp(a,10)
    a(f"ds_write_b128 v{vOW}, {vr(ACC+28,4)} offset:{1024*7}")
    bar(4)
    R = 128
    for s in range(2):
        for w in range(4):
            a(f"ds_read_b128 {vr(R+16*s+4*w,4)}, v{vOR} offset:{8192*w+1024*s}")
    a(f"v_lshlrev_b32 v16, 2, v0\ns_setprio {PH}")
    for s in range(2):
        a(f"s_waitcnt lgkmcnt({4-4*s})")
        b = R+16*s
        for j in range(2):
            a(f"v_pk_add_f32 {vr(b+2*j,2)}, {vr(b+2*j,2)}, {vr(b+4+2*j,2)}")
            a(f"v_pk_add_f32 {vr(b+8+2*j,2)}, {vr(b+8+2*j,2)}, {vr(b+12+2*j,2)}")
        for j in range(4):
            a(f"v_cvt_pk_bf16_f32 v{b+4+j}, v{b+j}, v{b+8+j}")
        a(f"v_add3_u32 v{b}, v{b+4}, v{b+5}, v{b+6}\nv_add3_u32 v{b}, v{b}, v{b+7}, s{sN}")
        a(f"buffer_store_dwordx4 {vr(b+4,4)}, v{vLIN}, {sr(SWS,4)}, s55 offen offset:{1024*s} {SC}")
        a(f"buffer_store_dword v{b}, v16, {sr(SWS,4)}, s54 offen offset:{256*s} {SC}")
    stamp(a,11)
    if STAMPS:
        a("s_waitcnt vmcnt(0)")
        stamp(a,12)
        a(f"s_add_u32 s{sWv}, s{sWv}, 4")
        dump_stamps(a, 13, KD, sWv)
```

```python
from asmlib import *
from lay6 import *
from km_b import srd, softmax16, sum16, Sync, weave, f2u, SPIN_G, LCG_A, LCG_C
from ka import lds_map
import os
OPT = set(os.environ.get("OPT","").split(","))
def P_(name, d): return int(os.environ.get(name, d))
SC = "sc1"
SKIP = os.environ.get("SKIP", "")

def csum(a, vT, d, sN):
    a(f"v_add3_u32 v{vT}, v{d[0]}, v{d[1]}, v{d[2]}")
    for k in range(3, len(d)-1, 2): a(f"v_add3_u32 v{vT}, v{vT}, v{d[k]}, v{d[k+1]}")
    a(f"v_add3_u32 v{vT}, v{vT}, v{d[-1]}, s{sN}")

def cpoll(a, pref, groups, sN, vT, sCnt, sleep, consume, behind=0, prio=None, check=None):
    a(f"s_mov_b32 s{sCnt}, 0")
    for t, (ld, d, c) in enumerate(groups):
        rest = sum(len(g[0]) for g in groups[t+1:])
        C, R, K = a.label(pref+'C'), a.label(pref+'R'), a.label(pref+'K')
        a(f"{C}:\ns_waitcnt vmcnt({rest+behind})")
        if check: check(t)
        else:
            csum(a, vT, d, sN)
            a(f"v_cmp_ne_u32 vcc, v{vT}, v{c}")
        a(f"s_cbranch_vccnz {R}\n{K}:")
        consume(t)
        tl = [f"{R}:", f"s_add_u32 s{sCnt}, s{sCnt}, 1", f"s_cmp_ge_u32 s{sCnt}, {SPIN_G}", f"s_cbranch_scc1 {K}"]
        if sleep: tl.append(f"s_sleep {sleep}")
        if prio: tl.append(f"s_setprio {prio[0]}")
        for g in groups[t:]: tl += g[0]
        if prio: tl.append(f"s_setprio {prio[1]}")
        if behind: tl.append("s_waitcnt vmcnt(0)")
        tl.append(f"s_branch {C}")
        a.tail += tl

def kvp_addr(a, vKO, sWv, sHP, sRB, t0, t1, tv):
    a(f"""s_lshl_b32 s{t0}, s{sHP}, 15
s_lshl_b32 s{t1}, s{sWv}, 13
s_add_u32 s{t0}, s{t0}, s{t1}
s_lshl_b32 s{t1}, s{sRB}, 9
s_add_u32 s{t0}, s{t0}, s{t1}
s_add_u32 s{t0}, s{t0}, {KVP}
v_lshlrev_b32 v{tv}, 4, v0
v_add_u32 v{vKO}, s{t0}, v{tv}
s_lshl_b32 s{t0}, s{sHP}, 13
s_lshl_b32 s{t1}, s{sRB}, 9
s_add_u32 s{t0}, s{t0}, s{t1}
s_add_u32 s{t0}, s{t0}, {ZP}
v_and_b32 v{tv}, 0x70, v{tv}
v_add_u32 v{tv}, s{t0}, v{tv}
s_mov_b32 vcc_lo, 0
s_mov_b32 vcc_hi, -1
v_cndmask_b32 v{vKO}, v{vKO}, v{tv}, vcc""")

_stamp = stamp
FINE = os.environ.get('FINE', '')
_fc = [2]
def stamp(a, k):
    if not FINE or k in (1, 15): _stamp(a, k)
def fs(a, mode, nm=''):
    if FINE == mode and _fc[0] < 15:
        print('fine', _fc[0], nm); _stamp(a, _fc[0]); _fc[0] += 1

def gen_b(a, common):
    UZ = lds_map(ABASE)['UZ']
    SX, SW, SWS, SPH, SG, SWO, SOUT = 4, 8, 12, 16, 20, 40, 44
    sRB, sHP, sWv, sT0, sT1, sF, sXo, sM, sL = 24, 25, 26, 27, 28, 29, 30, 31, 32
    sOP, sEH, sEPS, sWO = 34, 35, 36, 37
    sN, sSP, sCP, sPC = 48, 49, 50, 51
    vG, vXA, vWA, vFLW, vFLR, T, vZW, vGA, vWD, vLIN, vJ, vP = 1, 2, 6, 8, 9, 10, 14, 15, 16, 17, 18, 19
    WF = [20, 36]; ACCK, ACCV, P, WP, B1, B2, XQ = 52, 68, [84, 100], 116, 124, 2, 128
    GACC, vXD, B2T = 68, 72, 76
    sy = Sync(a, vFLW, vJ, vP, sSP, 'B')
    AB = 512
    a(f"s_setprio {P_('PB', 2)}")
    a("""s_load_dwordx2 s[4:5], s[0:1], 0
s_load_dwordx2 s[8:9], s[0:1], 64
s_load_dwordx2 s[16:17], s[0:1], 72
s_load_dwordx2 s[20:21], s[0:1], 88
s_load_dwordx2 s[12:13], s[0:1], 112
s_load_dwordx2 s[40:41], s[0:1], 80
s_load_dwordx2 s[44:45], s[0:1], 96""")
    common(a)
    srd(a, SX, 2097152); srd(a, SW, 1572864); srd(a, SWS, WS_BYTES); srd(a, SPH, 16384); srd(a, SG, 1024)
    srd(a, SWO, 524288); srd(a, SOUT, 2097152)
    a(f"s_mov_b32 s{sL}, {LOG2E}\ns_mov_b32 s{sL+1}, {LOG2E}\ns_mov_b32 s{sSP}, 0")
    a(f"""v_lshrrev_b32 v20, 3, v0
v_and_b32 v21, 7, v0
v_lshrrev_b32 v22, 4, v0
v_xor_b32 v23, v21, v22
v_lshlrev_b32 v23, 4, v23
v_lshl_add_u32 v23, v20, 10, v23
s_lshl_b32 s{sT0}, s{sRB}, 17
s_lshl_b32 s{sT1}, s{sWv}, 15
s_add_u32 s{sT0}, s{sT0}, s{sT1}
v_add_u32 v{vXD}, s{sT0}, v23
v_xor_b32 v{vXD+1}, 64, v{vXD}
v_add_u32 v{vXD+1}, 0x1c00, v{vXD+1}
v_add_u32 v{vXD+2}, 0x3800, v{vXD}
v_add_u32 v{vXD+3}, 0x3800, v{vXD+1}
v_lshrrev_b32 v20, 2, v0
v_and_b32 v21, 3, v0
v_lshlrev_b32 v21, 4, v21
s_mul_i32 s{sT0}, s{sWv}, {16*3072}
s_lshl_b32 s{sT1}, s{sHP}, 6
s_add_u32 s{sT0}, s{sT0}, s{sT1}
s_add_u32 s{sT0}, s{sT0}, 1024
v_mul_u32_u24 v20, 0xc00, v20
v_add3_u32 v{vWD}, v20, v21, s{sT0}
v_lshlrev_b32 v{vLIN}, 4, v0
s_lshl_b32 s{sM}, s{sWv}, 12
s_lshl_b32 s{sT0}, s{sF}, 7
v_add_u32 v20, s{sT0}, v{vLIN}
v_and_b32 v20, 0x3ff, v20
s_lshl_b32 s{sXo}, s{sF}, 7
s_lshl_b32 s{sT1}, s{sHP}, 10
s_waitcnt lgkmcnt(0)""")
    stamp(a, 1)
    def phigate():
        L1, L2 = a.label('BP'), a.label('BP')
        a(f"s_cmp_eq_u32 s{sWv}, 0\ns_cbranch_scc0 {L1}\ns_mov_b32 m0, {PHI}")
        a.L.append(f"buffer_load_dwordx4 v{vLIN}, {sr(SPH,4)}, s{sT1} offen lds")
        a(f"{L1}:\ns_cmp_eq_u32 s{sWv}, 1\ns_cbranch_scc0 {L2}\ns_mov_b32 m0, {GATE}")
        a.L.append(f"buffer_load_dwordx4 v20, {sr(SG,4)}, 0 offen lds")
        a(f"{L2}:")
    def dX(i):
        so = sXo
        def f(t):
            def g():
                if t == 0:
                    if i > 0: a(f"s_add_u32 s{sXo}, s{sXo}, 128\ns_and_b32 s{sXo}, s{sXo}, 0x3ff")
                    a(f"s_add_u32 m0, s{sM}, {S[XS[i]]}")
                a(f"buffer_load_dwordx4 v{vXD+t}, {sr(SX,4)}, s{so} offen offset:{1024*t} lds")
                if t == 3: a.tag(f"X{i}")
            return g
        return [f(t) for t in range(4)]
    def dW(sec, i):
        def g():
            if i == 0 and sec == 'v': a(f"v_add_u32 v{vWD}, 1024, v{vWD}")
            if i == 0 and sec == 'q': a(f"v_add_u32 v{vWD}, {(-2048) & 0xffffffff:#x}, v{vWD}")
            a(f"s_add_u32 m0, s{sM}, {S[WSL[sec][i>>2]]+1024*(i&3)}")
            if sec in SKIP: a(f"buffer_load_dword off, {sr(SW,4)}, s{16+i} lds")
            else: a(f"buffer_load_dwordx4 v{vWD}, {sr(SW,4)}, s{16+i} offen lds")
            a.tag(f"{sec}{i}")
        return g
    vWO = 15
    def dO(j):
        def f(t):
            def g():
                a(f"s_add_u32 m0, s{sM}, {S[WOS[j]]+2048*(j&1)}\ns_mov_b32 s{sWO}, {65536*j+0x1c00*t}")
                if 'o' in SKIP: a(f"buffer_load_dword off, {sr(SWO,4)}, s{sWO} offset:{1024*t} lds")
                else: a(f"buffer_load_dwordx4 v{vWO}, {sr(SWO,4)}, s{sWO} offen offset:{1024*t} lds")
                if t == 1: a.tag(f"o{j}")
            return g
        return [f(0), f(1)]
    def ops(txt):
        r = []
        for nm in txt.split():
            i = int(nm[1])
            r += dX(i) if nm[0] == 'X' else dO(i) if nm[0] == 'o' else [dW(nm[0], i)]
        return r
    def iss(txt):
        for g in ops(txt): g()
    iss('X0')
    phigate()
    for i in range(8):
        a(f"s_add_u32 s{sT0}, s{sF}, {i}\ns_and_b32 s{sT0}, s{sT0}, 7\ns_mul_i32 s{16+i}, s{sT0}, 196608")
        if i < 4: iss(f'k{i}')
    aS = Asm()
    aS(f"""v_and_b32 v20, 31, v0
v_lshrrev_b32 v21, 5, v0
v_bfe_u32 v22, v0, 1, 3
v_xor_b32 v22, v22, v21
v_lshlrev_b32 v22, 4, v22
v_lshl_add_u32 v22, v20, 7, v22
s_add_u32 s{sT0}, s{sM}, {S[2]}
v_add_u32 v{vXA}, s{sT0}, v22""")
    for ks in range(1, 4): aS(f"v_xor_b32 v{vXA+ks}, {32*ks}, v{vXA}")
    aS(f"""v_bfe_u32 v22, v0, 2, 2
v_bfe_u32 v23, v0, 4, 1
v_and_b32 v24, 3, v0
v_lshlrev_b32 v24, 3, v24
v_lshl_add_u32 v24, v23, 5, v24
v_lshl_add_u32 v24, v22, 6, v24
v_lshl_add_u32 v{vWA}, v21, 9, v24
v_add_u32 v{vWA+1}, 0x10000, v{vWA}
v_and_b32 v24, 1, v0
v_cmp_eq_u32 vcc, v24, v23
v_lshlrev_b32 v25, 4, v21
v_add_u32 v25, {GATE}, v25
v_mov_b32 v26, {UZ}
v_cndmask_b32 v{vGA}, v26, v25, vcc
v_lshrrev_b32 v25, 4, v0
v_lshlrev_b32 v25, 7, v25
v_lshl_add_u32 v25, v20, 2, v25
v_add_u32 v{vFLR}, {FL}, v25""")
    aS(f"""v_bfe_u32 v26, v0, 2, 1
v_cmp_eq_u32 vcc, v26, v21
v_lshlrev_b32 v27, 4, v24
v_mov_b32 v28, 0x3f80
v_lshlrev_b32 v28, v27, v28
v_cndmask_b32 v28, 0, v28, vcc
v_bfe_u32 v27, v0, 3, 2
v_bfe_u32 v29, v0, 1, 1
v_lshl_add_u32 v30, v27, 1, v29""")
    for j in range(8):
        aS(f"v_cmp_eq_u32 vcc, {j}, v30")
        aS(f"v_cndmask_b32 v{(B1+j) if j < 4 else (B2T+j-4)}, 0, v28, vcc")
    aS(f"""v_lshlrev_b32 v80, 31, v26
v_lshrrev_b32 v81, 16, v80
v_or_b32 v80, v80, v81
v_lshlrev_b32 v26, 6, v26
v_lshl_add_u32 v26, v27, 4, v26
v_and_b32 v28, 3, v0
v_lshl_add_u32 v26, v28, 2, v26
v_lshl_add_u32 v26, v21, 7, v26
s_add_u32 s{sT0}, s{sM}, {ZR}
v_add_u32 v{vZW}, s{sT0}, v26
v_lshl_add_u32 v26, v21, 2, v22
v_lshlrev_b32 v26, 5, v26
v_lshl_add_u32 v26, v23, 4, v26
v_lshl_add_u32 v26, v29, 3, v26
v_add_u32 v81, {PHI}, v26
s_lshl_b32 s{sT0}, s{sWv}, 7
s_add_u32 s{sT0}, s{sT0}, {GL}
v_lshlrev_b32 v82, 2, v20
v_add_u32 v82, s{sT0}, v82
s_lshl_b32 s{sOP}, s{sRB}, 17
s_lshl_b32 s{sT0}, s{sWv}, 15
s_add_u32 s{sOP}, s{sOP}, s{sT0}
s_lshl_b32 s{sT0}, s{sHP}, 11
s_add_u32 s{sOP}, s{sOP}, s{sT0}
s_add_u32 s{sOP}, s{sOP}, {OO}
s_cmp_eq_u32 s{sWv}, 0
s_cselect_b32 s{sEH}, 0xff, 0
s_mov_b32 s{sEPS}, {f2u(1e-6):#x}
s_lshl_b32 s52, s{sHP}, 15
s_lshl_b32 s{sT0}, s{sWv}, 13
s_add_u32 s52, s52, s{sT0}
s_add_u32 s52, s52, {KVP}
s_add_u32 s53, s52, 4096
s_lshl_b32 s54, s{sHP}, 13
s_lshl_b32 s{sT0}, s{sWv}, 11
s_add_u32 s54, s54, s{sT0}
s_add_u32 s54, s54, {ZP}
s_lshr_b32 s55, s52, 2
s_add_u32 s55, s55, {CK}
s_lshr_b32 s38, s54, 2
s_add_u32 s38, s38, {CK}
s_lshr_b32 s39, s{sOP}, 2
s_add_u32 s39, s39, {CK}
s_mov_b32 s62, {CK}
s_lshl_b32 s56, s{sRB}, 17
s_lshr_b32 s{sT0}, s{sHP}, 3
s_lshl_b32 s{sT0}, s{sT0}, 16
s_add_u32 s56, s56, s{sT0}
s_and_b32 s{sT0}, s{sHP}, 7
s_lshl_b32 s{sT0}, s{sT0}, 7
s_add_u32 s60, s56, s{sT0}
s_lshr_b32 s{sT0}, s{sWv}, 1
s_lshl_b32 s{sT0}, s{sT0}, 15
s_add_u32 s60, s60, s{sT0}
s_and_b32 s{sT0}, s{sWv}, 1
s_lshl_b32 s{sT0}, s{sT0}, 6
s_add_u32 s60, s60, s{sT0}
s_lshl_b32 s{sT0}, s{sWv}, 14
s_add_u32 s56, s56, s{sT0}
s_add_u32 s56, s56, {OO}
s_add_u32 s57, s56, 4096
s_add_u32 s58, s56, 8192
s_add_u32 s59, s56, 12288
s_lshr_b32 s61, s56, 2
s_add_u32 s61, s61, {CK}""")
    su = []
    for l in aS.L:
        if su and su[-1].startswith('s_cmp') and '\n' not in su[-1]: su[-1] += "\n" + l
        else: su.append(l)
    up = ops(os.environ.get('UPF', 'X1'))
    print("setup", len(su), "upfront", len(up))
    weave(a, su, [(P_('UG0', 110) if n == 0 else P_('UG', 2), g) for n, g in enumerate(up)])
    vGLW = 82
    def wrd(sec, i, b):
        base = S[WSL[sec][i>>2]] + 1024*(i&3)
        r = []
        for ks in range(4):
            for t in range(2):
                off = base+4096*ks+256*t
                ad = vWA + (off >> 16)
                r.append(f"ds_read_b64_tr_b16 {vr(WF[b]+4*ks+2*t,2)}, v{ad} offset:{off & 0xffff}")
        return r
    def wreads(sec, i, b):
        for l in wrd(sec, i, b): a(l)
        a.ltag(f"W{sec}{i}")
    GF = lambda i: P[i & 1] if i < 7 else WF[0]
    def grd(i):
        for ks in range(4): a(f"ds_read_b128 {vr(GF(i)+4*ks,4)}, v{vGA} offset:{128*i+32*ks}")
        a.ltag(f"G{i}")
    def mf(acc, i, b, ks, swap=False):
        c = "0" if (i == 0 and ks == 0) else vr(acc,16)
        x, w = vr(XQ+16*i+4*ks,4), vr(WF[b]+4*ks,4)
        return f"v_mfma_f32_32x32x16_bf16 {vr(acc,16)}, {x if swap else w}, {w if swap else x}, {c}"
    def gm(i, ks):
        c = "0" if (i == 0 and ks == 0) else vr(GACC,4)
        return f"v_mfma_f32_16x16x32_bf16 {vr(GACC,4)}, {vr(GF(i)+4*ks,4)}, {vr(XQ+16*i+4*ks,4)}, {c}"
    def xreads(i, pre=''):
        if i in (1,2,3,4,5): fs(a, 'e', f'pre X{i}')
        a.vmwait(f"X{i}")
        fs(a, 'k', f'X{i}')
        if i in (1,2,3,4,5): fs(a, 'e', f'X{i}')
        if i in (0, 1, 4, 7): stamp(a, {0: 2, 1: 4, 4: 5, 7: 6}[i])
        iss(pre)
        xo = 0 if i == 0 else S[XS[i]]-S[3]
        for ks in range(4):
            a(f"ds_read_b128 {vr(XQ+16*i+4*ks,4)}, v{vXA+ks} offset:{xo}"); a.ltag(f"X{i}_{ks}")
        if i == 0:
            for ks in range(4): a(f"v_add_u32 v{vXA+ks}, 0x4000, v{vXA+ks}")
            a("s_barrier")
    def wland(nm, j, more=''):
        if nm == 'k7': fs(a, 'e', 'pre k7')
        a.vmwait(nm)
        fs(a, 'k', nm)
        if nm == 'k7': fs(a, 'e', 'k7')
        sy.signal(j); sy.poll(vFLR)
        iss(more)
        if nm == 'k7': fs(a, 'e', 'k7 issued')
    def lcheck(j, tag, off=0):
        n = a.lcount(tag)
        if n is None or n == 0: sy.check(j, vFLR, off)
        else:
            sy.check(j, vFLR, off, n=min(n, 15))
            del a.lg[-3:]
    def block(i, extra=[]):
        b = i & 1
        w = wrd('k', i+2, b) if i+2 < 8 else []
        gi = i+2 if i+2 < 7 else (7 if i == 6 else None)
        a.lwait(f"Wk{i}")
        if i < 7: a.lwait(f"G{i}")
        ex = list(extra)
        for ks in range(4):
            a.lwait(f"X{i}_{ks}")
            a(mf(ACCK, i, b, ks))
            for l in w[2*ks:2*ks+2]: a(l)
            if ks == 3 and w: a.ltag(f"Wk{i+2}")
            if i < 7: a(gm(i, ks))
            if gi is not None:
                a(f"ds_read_b128 {vr(GF(gi)+4*ks,4)}, v{vGA} offset:{128*gi+32*ks}")
                if ks == 3: a.ltag(f"G{gi}")
            n = (len(ex)+3-ks)//(4-ks)
            for g in ex[:n]: g()
            ex = ex[n:]
    xreads(0)
    wland("k3", 2, os.environ.get('UP2', 'k4 k5 k6 k7 X2'))
    stamp(a, 3)
    sy.check(2, vFLR)
    wreads('k', 0, 0); grd(0); wreads('k', 1, 1); grd(1)
    for q in range(4): a(f"ds_read_b64_tr_b16 {vr(WP+2*q,2)}, v81 offset:{256*q}")
    NX = os.environ.get('NX', 'X3 X4,X5,X6,X7,,,,').split(',')
    NB = os.environ.get('NB', ',,,,v0 v1 v2 v3,v4 v5 v6 v7,,').split(',')
    for i in range(8):
        if i == 7:
            xreads(7)
            block(7, ops(NB[7]))
            break
        if i > 0: a.lwait(f"X{i}_3")
        iss(NX[i])
        if i < 6: xreads(i+1)
        if i == 1: sy.signal(3); sy.poll(vFLR); a.ltag('p3')
        if i == 2: lcheck(3, 'p3')
        if i == 5:
            lcheck(1, 'pAB', AB)
            a(f"v_mov_b32 v{T}, {NW}\nds_read_b32 v{T}, v{T}"); a.ltag('NW')
        ex = ops(NB[i])
        if i == 1: ex = [lambda j=j: a(f"v_xor_b32 v{WP+j}, v80, v{WP+j}") for j in range(8)]
        block(i, ex)
        if i == 4: sy.poll(vFLR, AB); a.ltag('pAB')
    a.lwait('NW')
    a(f"v_readfirstlane_b32 s{sN}, v{T}")
    for j in range(4): a(f"v_mov_b32 v{B2+j}, v{B2T+j}")
    f = Asm()
    KB, PK = ACCK, [ACCK+8, ACCK]
    for j in range(8): f(f"v_cvt_pk_bf16_f32 v{KB+j}, v{ACCK+2*j}, v{ACCK+2*j+1}")
    for h in range(2): f(f"v_mfma_f32_32x32x16_bf16 {vr(P[h],16)}, {vr(WP+4*h,4)}, {vr(KB+4*h,4)}, 0")
    f(f"""v_lshrrev_b32 v{T}, 3, v0
v_and_b32 v{T+1}, 7, v0
v_bfe_u32 v{T+2}, v0, 4, 1
v_lshlrev_b32 v{T+2}, 2, v{T+2}
v_xor_b32 v{T+1}, v{T+1}, v{T+2}
v_lshlrev_b32 v{T+1}, 4, v{T+1}
v_lshl_add_u32 v{T}, v{T}, 10, v{T+1}
s_lshl_b32 s{sT0}, s{sWv}, 14
s_and_b32 s{sT1}, s{sHP}, 7
s_lshl_b32 s{sT1}, s{sT1}, 7
s_add_u32 s{sT0}, s{sT0}, s{sT1}
v_add_u32 v{vWO}, s{sT0}, v{T}""")
    nwo = len(f.L)
    for h in range(2):
        softmax16(f, P[h], PK[h], T, sL, pk=False)
        f(f"v_mfma_f32_32x32x16_bf16 {vr(P[h],16)}, {vr(PK[h],4)}, {vr(B1,4)}, 0")
        f(f"v_mfma_f32_32x32x16_bf16 {vr(P[h],16)}, {vr(PK[h]+4,4)}, {vr(B2,4)}, {vr(P[h],16)}")
    for h in range(2):
        sum16(f, P[h], T, False)
        if h == 1:
            f(f"v_permlane32_swap_b32 v{P[0]+8}, v{T}\nv_add_f32 v{T}, v{T}, v{P[0]+8}\nds_write_b32 v{vZW}, v{T}")
            nzw = len(f.L)
        for j in range(8): f(f"v_cvt_pk_bf16_f32 v{P[h]+j}, v{P[h]+2*j}, v{P[h]+2*j+1}")
        if h == 0: f(f"v_mov_b32 v{P[0]+8}, v{T}")
    for j in range(16): f(f"v_mov_b32 v{ACCK+j}, 0")
    vEW, vER, vKO = 2, 124, 126
    f(f"""v_bfe_u32 v{T}, v0, 1, 3
v_lshrrev_b32 v{T+1}, 5, v0
v_lshlrev_b32 v{T+1}, 2, v{T+1}
v_xor_b32 v{T}, v{T}, v{T+1}
v_lshlrev_b32 v{T}, 4, v{T}
v_and_b32 v{T+1}, 31, v0
v_lshl_add_u32 v{T}, v{T+1}, 7, v{T}
s_add_u32 s{sT0}, s{sM}, {EXB}
v_add_u32 v{vEW}, s{sT0}, v{T}
v_xor_b32 v{vEW+1}, 16, v{vEW}
v_xor_b32 v{vEW+2}, 32, v{vEW}
v_xor_b32 v{vEW+3}, 48, v{vEW}
v_and_b32 v{T}, 3, v0
v_lshlrev_b32 v{T+1}, 1, v{T}
v_bfe_u32 v{T+2}, v0, 3, 2
s_and_b32 s{sT0}, s{sWv}, 1
s_lshl_b32 s{sT0}, s{sT0}, 2
v_add_u32 v{T+2}, s{sT0}, v{T+2}
v_xor_b32 v{T+1}, v{T+1}, v{T+2}
v_lshlrev_b32 v{T+1}, 4, v{T+1}
v_lshrrev_b32 v{T+2}, 2, v0
v_lshl_add_u32 v{T+1}, v{T+2}, 7, v{T+1}
s_lshl_b32 s{sT0}, s{sWv}, 10
s_add_u32 s{sT0}, s{sT0}, {EXB}
v_add_u32 v{T+1}, s{sT0}, v{T+1}
v_and_b32 v{T+2}, 1, v{T+2}
v_lshlrev_b32 v{T+2}, 7, v{T+2}
v_lshl_add_u32 v{T+2}, v{T}, 5, v{T+2}
v_add_u32 v{T+2}, {ZR}, v{T+2}
s_mov_b32 vcc_lo, 0
s_mov_b32 vcc_hi, -1
v_cndmask_b32 v{vER}, v{T+1}, v{T+2}, vcc
v_xor_b32 v{vER+1}, 16, v{vER}""")
    fg = []
    i = 0
    while i < len(f.L):
        if f.L[i].startswith("s_mov_b32 vcc_lo"):
            fg.append("\n".join(f.L[i:i+3])); i += 3
        else:
            fg.append(f.L[i]); i += 1
    g2 = Asm(); kvp_addr(g2, vKO, sWv, sHP, sRB, sT0, sT1, T)
    fg += g2.L[:-3] + ["\n".join(g2.L[-3:])]
    print("kpost fg", len(fg))
    bg = []
    bg.append((10, lambda: a.lwait("G7")))
    for ks in range(4): bg.append(((0 if ks == 0 else 3), lambda ks=ks: a(gm(7, ks))))
    def gatefin():
        a(f"""s_mov_b32 vcc_lo, 0xffff0000
s_mov_b32 vcc_hi, 0xffff0000
v_cndmask_b32 v{vG}, v{GACC}, v{GACC+1}, vcc
v_mul_f32 v{vG}, s{sL}, v{vG}
v_exp_f32 v{vG}, v{vG}
v_add_f32 v{vG}, 1.0, v{vG}
v_rcp_f32 v{vG}, v{vG}
ds_write_b32 v{vGLW}, v{vG}""")
    bg.append((6, gatefin))
    G = P_('KG', 5)
    bg.append((P_('KS3', 10), lambda: (wland("v3", 4), fs(a, 'v', 'v3 landed'))))
    bg.append((P_('KC3', 16), lambda: (sy.check(4, vFLR), fs(a, 'v', 'chk4'), wreads('v', 0, 0), wreads('v', 1, 1))))
    assert sum(g for g, _ in bg) < nzw
    chk5 = [0]
    def vstep(i, ks):
        b = i & 1
        a(mf(ACCV, i, b, ks, True))
        if i+2 < 8:
            for l in wrd('v', i+2, b)[2*ks:2*ks+2]: a(l)
            if ks == 3: a.ltag(f"Wv{i+2}")
    for i in range(8):
        bg.append((P_('KW', 12) if i == 0 else G, lambda i=i: a.lwait(f"Wv{i}")))
        if i == 2:
            bg.append((0, lambda: (lcheck(5, 'p5'), fs(a, 'v', 'chk5'))))
            chk5[0] = sum(g for g, _ in bg)
        for ks in range(4): bg.append((G if ks else 0, lambda ks=ks, i=i: vstep(i, ks)))
        if i == P_('KV7', 1): bg.append((0, lambda: (wland("v7", 5), a.ltag('p5'), fs(a, 'v', 'v7 landed'))))
    print("kpost bg gap total", sum(g for g, _ in bg), "chk5 at", chk5[0])
    ev = []; pos = 0
    for g, op in bg:
        pos += g; ev.append((pos, op))
    kd = ops(os.environ.get('KD', 'q0 q1 q2 q3 q4 q5 q6 q7 o0 o1 o2 o3'))
    pos = P_('KD0', 30)
    for n, op in enumerate(kd):
        if n == 8: pos = max(pos, nwo, chk5[0])
        ev.append((pos, op))
        pos += P_('KDG', 24) if n < 8 else P_('KDO', 10)
    ev.sort(key=lambda t: t[0])
    bg2 = []; last = 0
    for p_, op in ev:
        bg2.append((p_-last, op)); last = p_
    if P_('KX', 0) == 1:
        fs(a, 'v', 'fg0')
        for op in kd: op()
        for n, l in enumerate(fg):
            a(l)
            if n % 30 == 29: fs(a, 'v', f'fg{n}')
    elif P_('KX', 0) == 2:
        fs(a, 'v', 'bg0')
        a(f"v_add_u32 v{vWO}, 0, v{vLIN}")
        weave(a, [], bg2)
        fs(a, 'v', 'bg end')
        for l in fg[-60:]: a(l)
    else: weave(a, fg, bg2)
    stamp(a, 7)
    VB, KV = [ACCK, ACCK+8], WF[0]
    for h in range(2):
        m = "0x0000ffff" if h == 0 else "0xffff0000"
        a(f"s_mov_b32 exec_lo, {m}\ns_mov_b32 exec_hi, {m}")
        for j in range(8): a(f"v_cvt_pk_bf16_f32 v{VB[h]+j}, v{ACCV+2*j}, v{ACCV+2*j+1}")
        if h == 0:
            a("s_mov_b64 exec, -1")
            for q in range(2):
                c = "0" if q == 0 else vr(KV,16)
                a(f"v_mfma_f32_32x32x16_bf16 {vr(KV,16)}, {vr(P[0]+4*q,4)}, {vr(VB[0]+4*q,4)}, {c}")
    a("s_mov_b64 exec, -1")
    for q in range(2):
        a(f"v_mfma_f32_32x32x16_bf16 {vr(KV,16)}, {vr(P[1]+4*q,4)}, {vr(VB[1]+4*q,4)}, {vr(KV,16)}")
    a(f"v_lshrrev_b32 v{vKO+1}, 2, v{vKO}")
    for q in range(4): a(f"ds_write_b128 v{vEW+q}, {vr(KV+4*q,4)}")
    sy.signal(6); sy.poll(vFLR); sy.check(6, vFLR)
    E = ACCK
    a(f"s_mov_b32 exec_hi, s{sEH}")
    for s in range(4):
        for g in range(2): a(f"ds_read_b128 {vr(E+8*s+4*g,4)}, v{vER+g} offset:{4096*s}")
    a("s_waitcnt lgkmcnt(4)")
    for j in range(4): a(f"v_pk_add_f32 {vr(E+2*j,2)}, {vr(E+2*j,2)}, {vr(E+8+2*j,2)}")
    a("s_waitcnt lgkmcnt(0)")
    for j in range(4): a(f"v_pk_add_f32 {vr(E+16+2*j,2)}, {vr(E+16+2*j,2)}, {vr(E+24+2*j,2)}")
    for j in range(4):
        a(f"v_pk_add_f32 {vr(E+2*j,2)}, {vr(E+2*j,2)}, {vr(E+16+2*j,2)}")
    for j in range(4): a(f"v_cvt_pk_bf16_f32 v{E+8+j}, v{E+2*j}, v{E+2*j+1}")
    csum(a, E, list(range(E+8, E+12)), sN)
    a(f"buffer_store_dwordx4 {vr(E+8,4)}, v{vKO}, {sr(SWS,4)}, 0 offen {SC}")
    a(f"buffer_store_dword v{E}, v{vKO+1}, {sr(SWS,4)}, s62 offen {SC}")
    a("s_mov_b32 exec_hi, -1")
    stamp(a, 8)
    a.vmwait("q7")
    sy.signal(7); sy.poll(vFLR)
    iss('o4 o5')
    ID, vKW, vZW2, vKR, vZL = 2, 124, 125, 126, 14
    h = Asm()
    h(f"""v_bfe_u32 v{T}, v0, 3, 1
v_bfe_u32 v{T+1}, v0, 4, 1
v_cmp_eq_u32 vcc, v{T}, v{T+1}
v_and_b32 v{T}, 1, v0
v_lshlrev_b32 v{T}, 4, v{T}
v_mov_b32 v{T+2}, 0x3f80
v_lshlrev_b32 v{T+2}, v{T}, v{T+2}
v_cndmask_b32 v{T+2}, 0, v{T+2}, vcc
v_bfe_u32 v{T}, v0, 1, 2""")
    for j in range(4): h(f"v_cmp_eq_u32 vcc, {j}, v{T}\nv_cndmask_b32 v{ID+j}, 0, v{T+2}, vcc")
    for l in h.L: a(l)
    sy.check(7, vFLR)
    wreads('q', 0, 0); wreads('q', 1, 1)
    od = ops('o6 o7')
    h = Asm()
    h(f"""v_lshrrev_b32 v{T}, 5, v0
s_and_b32 s{sT0}, s{sWv}, 1
s_lshl_b32 s{sT0}, s{sT0}, 1
v_add_u32 v{T}, s{sT0}, v{T}
v_and_b32 v{T+1}, 3, v0
v_xor_b32 v{T+2}, v{T+1}, v{T}
v_lshlrev_b32 v{T+2}, 4, v{T+2}
v_lshl_add_u32 v{T+2}, v{T}, 8, v{T+2}
v_bfe_u32 v{T+3}, v0, 2, 2
v_lshl_add_u32 v{T+2}, v{T+3}, 6, v{T+2}
v_bfe_u32 v{T+3}, v0, 4, 1
v_lshl_add_u32 v{T+2}, v{T+3}, 3, v{T+2}
s_lshr_b32 s{sT0}, s{sWv}, 1
s_lshl_b32 s{sT0}, s{sT0}, 11
s_add_u32 s{sT0}, s{sT0}, {KF}
v_add_u32 v{vKW}, s{sT0}, v{T+2}
v_xor_b32 v{T+1}, s{sWv}, v{T+1}
v_lshlrev_b32 v{T+1}, 4, v{T+1}
v_bfe_u32 v{T+2}, v0, 3, 2
v_lshl_add_u32 v{T+1}, v{T+2}, 6, v{T+1}
v_bfe_u32 v{T+2}, v0, 2, 1
v_lshl_add_u32 v{T+1}, v{T+2}, 11, v{T+1}
s_lshl_b32 s{sT0}, s{sWv}, 8
s_add_u32 s{sT0}, s{sT0}, {KF+1024}
v_add_u32 v{vZW2}, s{sT0}, v{T+1}
v_lshrrev_b32 v{T}, 5, v0
v_lshlrev_b32 v{T}, 1, v{T}
v_bfe_u32 v{T+1}, v0, 2, 2
v_xor_b32 v{T}, v{T}, v{T+1}
v_lshlrev_b32 v{T}, 4, v{T}
v_and_b32 v{T+1}, 31, v0
v_lshl_add_u32 v{T}, v{T+1}, 6, v{T}
v_add_u32 v{vKR}, {KF}, v{T}
v_xor_b32 v{vKR+1}, 16, v{vKR}
v_bfe_u32 v{T}, v0, 3, 2
v_and_b32 v{vZL}, 0x70, v{vLIN}
v_lshl_add_u32 v{vZL}, v{T}, 9, v{vZL}""")
    vOA = [6, 7, 116, 117]
    fill = h.L
    fi = 0
    oi = 0
    for i in range(8):
        b = i & 1
        a.lwait(f"Wq{i}")
        w = wrd('q', i+2, b) if i+2 < 8 else []
        for ks in range(4):
            a(mf(ACCK, i, b, ks))
            for l in w[2*ks:2*ks+2]: a(l)
            if ks == 3 and w: a.ltag(f"Wq{i+2}")
            for l in fill[fi:fi+2]: a(l)
            fi += 2
            if ks in (1, 3) and oi < len(od) and i >= P_('QO', 0): od[oi](); oi += 1
    assert fi >= len(fill) and oi == len(od)
    stamp(a, 9)
    QB, PHQ, G1, SA = WF[0], ACCV, 28, 64
    for j in range(8): a(f"v_cvt_pk_bf16_f32 v{QB+j}, v{ACCK+2*j}, v{ACCK+2*j+1}")
    for hh in range(2): a(f"v_mfma_f32_32x32x16_bf16 {vr(P[hh],16)}, {vr(WP+4*hh,4)}, {vr(QB+4*hh,4)}, 0")
    vL4, vZC, G1C = 15, 16, XQ
    a(f"v_lshlrev_b32 v{vL4}, 2, v0\nv_lshrrev_b32 v{vZC}, 2, v{vZL}")
    g1g = [([f"buffer_load_dword v{G1C+t}, v{vL4}, {sr(SWS,4)}, s55 offen offset:{256*t} {SC}",
             f"buffer_load_dwordx4 {vr(G1+4*t,4)}, v{vLIN}, {sr(SWS,4)}, s{52+(t>>2)} offen offset:{1024*(t&3)} {SC}"],
            list(range(G1+4*t, G1+4*t+4)), G1C+t) for t in range(8)]
    g1g.append(([f"buffer_load_dword v{G1C+8}, v{vZC}, {sr(SWS,4)}, s38 offen {SC}",
                 f"buffer_load_dwordx4 {vr(G1+32,4)}, v{vZL}, {sr(SWS,4)}, s54 offen {SC}"], list(range(G1+32, G1+36)), G1C+8))
    g1l = [l for g in g1g for l in g[0]]
    f = Asm()
    f(f"""v_lshrrev_b32 v{T}, 5, v0
v_bfe_u32 v{T+1}, v0, 2, 2
v_lshl_add_u32 v{T}, v{T}, 2, v{T+1}
v_lshlrev_b32 v{T}, 7, v{T}
v_bfe_u32 v{T+2}, v0, 1, 1
v_lshl_add_u32 v{T}, v{T+2}, 3, v{T}
v_and_b32 v{T+2}, 1, v0
v_bfe_u32 v{T+3}, v0, 4, 1
v_lshl_add_u32 v{T+2}, v{T+2}, 1, v{T+3}
s_and_b32 s{sT0}, s{sWv}, 1
s_lshl_b32 s{sT1}, s{sT0}, 2
v_add_u32 v{T+2}, s{sT1}, v{T+2}
v_bfe_u32 v{T+3}, v0, 3, 1
v_lshlrev_b32 v{T+3}, 2, v{T+3}
v_xor_b32 v{T+2}, v{T+2}, v{T+3}
v_lshl_add_u32 v{T}, v{T+2}, 4, v{T}
s_mul_i32 s{sT1}, s{sT0}, {(S[WOS[6]]-S[WOS[2]]) & 0xffffffff:#x}
s_mul_i32 s{sT0}, s{sT0}, {(S[WOS[4]]-S[WOS[0]]) & 0xffffffff:#x}
s_add_u32 s{sT0}, s{sT0}, {S[WOS[0]]}
s_add_u32 s{sT1}, s{sT1}, {S[WOS[2]]}
v_add_u32 v{vOA[0]}, s{sT0}, v{T}
v_add_u32 v{vOA[1]}, s{sT1}, v{T}""")
    for hh in range(2): softmax16(f, P[hh], PHQ+8*hh, T, sL, pk=('qpk' in OPT))
    weave(a, f.L, [(P_('QG', 0), lambda: [a(l) for l in g1l])])
    a(f"v_xor_b32 v{vOA[2]}, 64, v{vOA[0]}\nv_xor_b32 v{vOA[3]}, 64, v{vOA[1]}")
    stamp(a, 10)
    def g1c(t):
        if t < 8: a(f"v_mfma_f32_16x16x32_bf16 {vr(SA,4)}, {vr(ID,4)}, {vr(G1+4*t,4)}, {'0' if t == 0 else vr(SA,4)}")
        else: a(f"ds_write_b128 v{vZW2}, {vr(G1+32,4)}")
    cpoll(a, 'BG', g1g, sN, T, sPC, P_('SL1', 3), g1c)
    stamp(a, 11)
    a(f"""v_cvt_pk_bf16_f32 v{SA}, v{SA}, v{SA+1}
v_cvt_pk_bf16_f32 v{SA+1}, v{SA+2}, v{SA+3}
ds_write_b64 v{vKW}, {vr(SA,2)}""")
    sy.signal(8); sy.poll(vFLR); sy.check(8, vFLR)
    wol = []
    for k in range(16):
        jj, g = k >> 2, k & 3
        for c in (1, 0):
            for t in range(2):
                off = 4096*g+2048*(jj&1)+1024*t
                wol.append(f"ds_read_b64_tr_b16 {vr(XQ+8*k+4*c+2*t,2)}, v{vOA[2*c+(jj>>1)]} offset:{off}")
    KR = 28
    for hh in range(2):
        for q in range(2): a(f"ds_read_b128 {vr(KR+8*hh+4*q,4)}, v{vKR+q} offset:{2048*hh}")
    for hh in range(2):
        a(f"s_waitcnt lgkmcnt({3-2*hh})")
        a(f"v_mfma_f32_32x32x16_bf16 {vr(P[hh],16)}, {vr(KR+8*hh,4)}, {vr(PHQ+8*hh,4)}, 0")
        a(f"s_waitcnt lgkmcnt({2-2*hh})")
        a(f"v_mfma_f32_32x32x16_bf16 {vr(P[hh],16)}, {vr(KR+8*hh+4,4)}, {vr(PHQ+8*hh+4,4)}, {vr(P[hh],16)}")
    WOE = P_('WOE', 16)
    for l in wol[:WOE]: a(l)
    for hh in range(2):
        d = P[hh]+8
        a(f"""v_pk_add_f32 {vr(d,2)}, {vr(d,2)}, {vr(d+2,2)}
v_pk_add_f32 {vr(d+4,2)}, {vr(d+4,2)}, {vr(d+6,2)}
v_pk_add_f32 {vr(d,2)}, {vr(d,2)}, {vr(d+4,2)}
v_add_f32 v{d}, v{d}, v{d+1}""")
    d0, d1 = P[0]+8, P[1]+8
    a(f"""v_permlane32_swap_b32 v{d0}, v{d1}
v_add_f32 v{d0}, v{d0}, v{d1}
v_add_f32 v{d0}, s{sEPS}, v{d0}
v_rcp_f32 v{d0}, v{d0}
v_mul_f32 v{d0}, v{d0}, v{vG}
v_mov_b32 v{d1}, v{d0}
v_permlane32_swap_b32 v{d0}, v{d1}""")
    for hh in range(2):
        d = P[hh]+8
        for j in range(4): a(f"v_pk_mul_f32 {vr(P[hh]+2*j,2)}, {vr(P[hh]+2*j,2)}, {vr(d,2)} op_sel_hi:[1,0]")
        for j in range(4): a(f"v_cvt_pk_bf16_f32 v{P[hh]+j}, v{P[hh]+2*j}, v{P[hh]+2*j+1}")
        if hh == 1: csum(a, T, list(range(P[0], P[0]+4))+list(range(P[1], P[1]+4)), sN)
        a(f"buffer_store_dwordx4 {vr(P[hh],4)}, v{vLIN}, {sr(SWS,4)}, s{sOP} offen offset:{1024*hh} {SC}")
    a(f"buffer_store_dword v{T}, v{vL4}, {sr(SWS,4)}, s39 offen {SC}")
    stamp(a, 12)
    vOUT, vXW, vXR, vAD, vAC, x = 14, 16, 3, 4, 5, 2
    APD, APK, H2, H2C = P[1]+4, P[1]+12, 20, 118
    a(f"""s_lshr_b32 s{sT0}, s{sHP}, 3
s_lshl_b32 s{sT0}, s{sT0}, 1
s_lshr_b32 s{sT1}, s{sWv}, 1
s_add_u32 s{sT0}, s{sT0}, s{sT1}
s_lshl_b32 s{sT0}, s{sT0}, 7
s_add_u32 s{sT1}, s{sT0}, {GL}
v_and_b32 v{T+1}, 31, v0
v_lshlrev_b32 v{vAD}, 2, v{T+1}
v_add_u32 v{x}, s{sT1}, v{vAD}
ds_read_b32 v{x}, v{x}
v_lshrrev_b32 v{T+2}, 5, v0
v_lshl_add_u32 v{vAD}, v{T+2}, 16, v{vAD}
s_lshl_b32 s{sT1}, s{sRB}, 9
s_add_u32 s16, s{sT0}, s{sT1}
s_and_b32 s{sT0}, s{sHP}, 7
s_lshl_b32 s{sT0}, s{sT0}, 18
s_add_u32 s16, s16, s{sT0}
s_and_b32 s{sT0}, s{sWv}, 1
s_lshl_b32 s{sT0}, s{sT0}, 17
s_add_u32 s16, s16, s{sT0}
s_add_u32 s16, s16, {AP}
s_lshr_b32 s52, s16, 2
s_add_u32 s52, s52, {CK}
s_add_u32 s53, s52, 8192
v_and_b32 v{vAC}, 28, v0
v_lshl_add_u32 v{vAC}, v{T+2}, 14, v{vAC}
v_and_b32 v{T+3}, 3, v0
v_lshl_add_u32 v{vAC}, v{T+3}, 11, v{vAC}""")
    for u in range(1, 8): a(f"s_add_u32 s{16+u}, s{16+u-1}, 8192")
    apl = [f"buffer_load_dword v{APK+q}, v{vAC}, {sr(SWS,4)}, s{52+q} offen {SC}" for q in range(2)]
    apl += [f"buffer_load_dword v{APD+u}, v{vAD}, {sr(SWS,4)}, s{16+u} offen {SC}" for u in range(8)]
    for l in apl: a(l)
    h2g = [([f"buffer_load_dword v{H2C+g}, v{vL4}, {sr(SWS,4)}, s61 offen offset:{512*g} {SC}"] +
            [f"buffer_load_dwordx4 {vr(H2+4*t,4)}, v{vLIN}, {sr(SWS,4)}, s{56+(t>>2)} offen offset:{1024*(t&3)} {SC}" for t in (2*g, 2*g+1)],
            list(range(H2+8*g, H2+8*g+8)), H2C+g) for g in range(8)]
    h2l = [l for g in h2g for l in g[0]]
    HP_ = P_('HPOS', 64)
    for l in wol[WOE:HP_]: a(l)
    a(f"""s_add_u32 s{sT0}, s{sM}, {OB}
v_add_u32 v{vXW}, s{sT0}, v{vLIN}
v_xor_b32 v{vXR}, 0x1000, v{vXW}
v_lshlrev_b32 v{T+2}, 5, v{T+2}
v_lshl_add_u32 v{vOUT}, v{T+1}, 10, v{T+2}
s_lshl_b32 s{sT0}, s{sN}, 1
s_sub_u32 s63, 0, s{sT0}""")
    def apcheck(t):
        a(f"""v_add3_u32 v{T}, v{APD}, v{APD+1}, v{APD+2}
v_add3_u32 v{T+1}, v{APK}, v{APK+1}, s63
v_add3_u32 v{T}, v{T}, v{APD+3}, v{APD+4}
v_sub_u32 v{T+1}, v{APD+7}, v{T+1}
v_add3_u32 v{T}, v{T}, v{APD+5}, v{APD+6}
v_add_u32 v{T}, v{T}, v{T+1}
v_add_u32_dpp v{T}, v{T}, v{T} quad_perm:[1,0,3,2] row_mask:0xf bank_mask:0xf
v_add_u32_dpp v{T}, v{T}, v{T} quad_perm:[2,3,0,1] row_mask:0xf bank_mask:0xf
v_cmp_ne_u32 vcc, 0, v{T}""")
    def apuse(t):
        for u in range(8):
            a(f"""v_lshlrev_b32 v{P[0]+2*u}, 16, v{APD+u}
v_and_b32 v{P[0]+2*u+1}, 0xffff0000, v{APD+u}""")
        for j in range(8): a(f"v_pk_mul_f32 {vr(P[0]+2*j,2)}, {vr(P[0]+2*j,2)}, {vr(x,2)} op_sel_hi:[1,0]")
    def apstage(behind):
        a(f"s_waitcnt lgkmcnt(0)\nv_sub_f32 v{x}, 1.0, v{x}")
        if P_('NOA', 0):
            a(f"s_waitcnt vmcnt({behind})"); apuse(0); return
        cpoll(a, 'BA', [(apl, None, None)], sN, T, sPC, P_('SLA', 3), apuse, behind=behind, check=apcheck)
    APF = P_('APF', 1)
    if APF: apstage(0)
    if P_('SL2F', 0): a(f"s_sleep {P_('SL2F', 0)}")
    for l in h2l: a.L.append(l)
    for l in wol[max(WOE, HP_):]: a(l)
    stamp(a, 13)
    if not APF: apstage(24)
    else: a("s_waitcnt lgkmcnt(0)")
    def h2c(g):
        for t in (2*g, 2*g+1):
            for c in (1, 0):
                a(f"v_mfma_f32_32x32x16_bf16 {vr(P[c],16)}, {vr(XQ+8*t+4*c,4)}, {vr(H2+4*t,4)}, {'0' if (t == 0 and c == 1) else vr(P[c],16)}")
    cpoll(a, 'BH', h2g, sN, T, sPC, P_('SL2', 3), h2c)
    stamp(a, 14)
    GA_, PX = 20, 36
    for q in range(4): a(f"ds_write_b128 v{vXW}, {vr(P[1]+4*q,4)} offset:{1024*q}")
    sy.signal(9); sy.poll(vFLR)
    sy.check(9, vFLR)
    for q in range(4): a(f"ds_read_b128 {vr(PX+4*q,4)}, v{vXR} offset:{1024*q}")
    for q in range(2):
        a(f"s_waitcnt lgkmcnt({2-2*q})")
        for j in range(4): a(f"v_pk_add_f32 {vr(P[0]+8*q+2*j,2)}, {vr(P[0]+8*q+2*j,2)}, {vr(PX+8*q+2*j,2)}")
        for j in range(4): a(f"v_cvt_pk_bf16_f32 v{GA_+4*q+j}, v{P[0]+8*q+2*j}, v{P[0]+8*q+2*j+1}")
        a(f"buffer_store_dwordx4 {vr(GA_+4*q,4)}, v{vOUT}, {sr(SOUT,4)}, s60 offen offset:{16*q}")
    LE = a.label('BE')
    a(f"""s_or_b32 s{sT0}, s2, s{sWv}
s_cmp_lg_u32 s{sT0}, 0
s_cbranch_scc1 {LE}
s_mov_b32 s{sT0}, {GEN}
v_mov_b32 v41, 0
v_mov_b32 v40, s{sN}
s_mov_b64 exec, 1
buffer_store_dword v40, v41, {sr(SWS,4)}, s{sT0} offen {SC}
s_mov_b64 exec, -1
{LE}:""")
    if STAMPS:
        a("s_waitcnt vmcnt(0)")
        stamp(a, 15)
        dump_stamps(a, 16, KD, sWv)
```

```python
UT2 = 0x000000
OO  = 0x200000
KVP = 0x600000
ZP  = 0x680000
AP  = 0x840000
KD  = 0xA40000
GEN = 0xB20000
CK  = 0xC00000
WS_BYTES = 0x10000000
LOG2E = 0x3fb8aa3b
S = [16384*i for i in range(7)]
PHI = 114688
GATE = PHI+1024
FL = 116736
GL = 118272
NW = 118784
ABASE = 121344
LDS_TOTAL = 163840
XS = [2,3,4,5,6,3,4,5]
WSL = {'k': [0,1], 'v': [6,2], 'q': [3,4]}
WOS = [5,5,6,6,2,2,1,1]
EXB = S[0]; ZR = S[1]; KF = S[0]; OB = S[3]
```

```python
import sys
sys.path.insert(0,'work'); sys.path.insert(0,'gen')
from asmlib import *
from lay6 import *
from gen_common import wrap, KN
import km_b6, km_a6
def common(a):
    a(f"""s_and_b32 s27, s2, 7
s_lshr_b32 s28, s2, 3
s_lshr_b32 s24, s27, 1
s_lshl_b32 s24, s24, 2
s_lshr_b32 s25, s28, 3
s_add_u32 s24, s24, s25
s_and_b32 s25, s27, 1
s_lshl_b32 s25, s25, 3
s_and_b32 s28, s28, 7
s_add_u32 s25, s25, s28
s_lshl_b32 s50, s24, 4
s_add_u32 s50, s50, s25
s_lshl_b32 s29, s24, 1
s_add_u32 s29, s29, s25
s_and_b32 s29, s29, 7
s_lshl_b32 s27, s26, 7
s_add_u32 s27, s27, {FL}
v_and_b32 v8, 31, v0
v_lshlrev_b32 v8, 2, v8
v_add_u32 v8, s27, v8
v_mov_b32 v9, 0
ds_write_b32 v8, v9
ds_write_b32 v8, v9 offset:512""")
def build():
    p = Asm()
    p("s_cmp_ge_u32 s2, 256\ns_cbranch_scc1 K_END")
    stamp(p, 0)
    p("""v_lshrrev_b32 v1, 6, v0
v_and_b32 v0, 63, v0
v_readfirstlane_b32 s26, v1
s_cmp_ge_u32 s26, 4
s_cbranch_scc0 K_B""")
    b = Asm(); km_b6.gen_b(b, common)
    a = Asm(); km_a6.gen_a(a, common)
    allc = Asm()
    ib = a.L.index('; @PROLOG_END')+1
    allc.L = p.L + a.L[:ib] + ["s_branch K_A", "K_B:"] + b.L + ["s_endpgm", "K_A:"] + a.L[ib:] + ["K_END:", "s_endpgm"] + b.tail + a.tail
    L = fix_hazards(allc.L, True)
    return dict(name=KN, grid=256, block=512, lds=LDS_TOTAL, body="\n".join(L))
open(sys.argv[1],'w').write(wrap([build()]).replace('.p2align 8\n', '.p2align 12\n.p2align 8\n', 1))
```
